```python
import torch

def _softmax(x, axis=-1):
    return torch.softmax(x, dim=axis)
def _gelu(x):
    return torch.nn.functional.gelu(x, approximate="tanh")
def _silu(x):
    return torch.nn.functional.silu(x)
def _sigmoid(x):
    return torch.sigmoid(x)
def _layernorm(x, axis=-1, eps=1e-5):
    m = x.mean(dim=axis, keepdim=True)
    v = x.var(dim=axis, keepdim=True, unbiased=False)
    return (x - m) / torch.sqrt(v + eps)
def _scatter_add(tgt, idx, src, axis=0):
    return tgt.clone().index_add_(axis, idx, src)
def _segment_sum(src, seg, n):
    out = torch.zeros((n,) + src.shape[1:], dtype=src.dtype)
    return out.index_add_(0, seg, src)
def _pad(x, pw):
    flat = tuple(v for pair in reversed(pw) for v in pair)
    return torch.nn.functional.pad(x, flat)

kernel_name = 'sequential_preLN__ssm_conv_s4__glu_gated_reglu__prompt'

def setup_inputs():

    _w = (lambda a: (lambda t: t.to(torch.bfloat16) if t.is_floating_point() else t)(torch.as_tensor(a)))
    def _A_setup():
        B, L, D, N = 1, 2048, 640, 192
        A_re = -(lambda _x: torch.exp(torch.as_tensor(_x)))((lambda *s: torch.randn(*s, dtype=torch.bfloat16) * 3.2)(D, N))
        A_im = torch.pi * (lambda *s: torch.randn(*s, dtype=torch.bfloat16) * 0.05)(D, N)
        B_re = (lambda *s: torch.randn(*s, dtype=torch.bfloat16) * 0.05)(D, N)
        B_im = (lambda *s: torch.randn(*s, dtype=torch.bfloat16) * 0.1)(D, N)
        C_re = (lambda *s: torch.randn(*s, dtype=torch.bfloat16) * 0.1)(D, N)
        C_im = (lambda *s: torch.randn(*s, dtype=torch.bfloat16) * 0.05)(D, N)
        log_dt = (lambda *s: torch.randn(*s, dtype=torch.bfloat16) * 0.05)(D) * 0.5 - 4.0
        Dskip = (lambda *s: torch.randn(*s, dtype=torch.bfloat16) * 0.05)(D)
        return {
            "u": _w((lambda *s: torch.randn(*s, dtype=torch.bfloat16) * 0.05)(B, L, D)),
            "A_re": _w(A_re),
            "A_im": _w(A_im),
            "B_re": _w(B_re),
            "B_im": _w(B_im),
            "C_re": _w(C_re),
            "C_im": _w(C_im),
            "log_dt": _w(log_dt),
            "Dskip": _w(Dskip),
        }
    _A_in = _A_setup()

    def _B_setup():
        B, S, D, F = 1, 2048, 640, 1536
        return {
            "x": _w((lambda *s: torch.randn(*s, dtype=torch.bfloat16) * 0.05)(B, S, D)),
            "W_gate": _w((lambda *s: torch.randn(*s, dtype=torch.bfloat16) * 0.4)(D, F) * (2.0 / D) ** 0.5),
            "W_up": _w((lambda *s: torch.randn(*s, dtype=torch.bfloat16) * 0.4)(D, F) * (2.0 / D) ** 0.5),
            "W_down": _w((lambda *s: torch.randn(*s, dtype=torch.bfloat16) * 0.4)(F, D) * (1.0 / F) ** 0.5),
        }
    _B_in = _B_setup()

    return {
        "A_u": _A_in["u"],
        "A_A_re": _A_in["A_re"],
        "A_A_im": _A_in["A_im"],
        "A_B_re": _A_in["B_re"],
        "A_B_im": _A_in["B_im"],
        "A_C_re": _A_in["C_re"],
        "A_C_im": _A_in["C_im"],
        "A_log_dt": _A_in["log_dt"],
        "A_Dskip": _A_in["Dskip"],
        "B_x": _B_in["x"],
        "B_W_gate": _B_in["W_gate"],
        "B_W_up": _B_in["W_up"],
        "B_W_down": _B_in["W_down"],
    }

def reference(A_u, A_A_re, A_A_im, A_B_re, A_B_im, A_C_re, A_C_im, A_log_dt, A_Dskip, B_x, B_W_gate, B_W_up, B_W_down):
    def _A_ref(u, A_re, A_im, B_re, B_im, C_re, C_im, log_dt, Dskip):
        Bsz, L, D = u.shape
        dt = torch.exp(log_dt)[:, None]
        A = A_re + 1j * A_im
        Bc = B_re + 1j * B_im
        Cc = C_re + 1j * C_im
        logdA = dt * A
        dB = dt * Bc
        l = (lambda x, dt: x.to(dt))(torch.arange(L), A_re.dtype)
        P = torch.exp(logdA[:, :, None] * l[None, None, :])
        K = torch.einsum("dn,dnl,dn->dl", Cc, P, dB).real
        L2 = 2 * L
        Kp = _pad(K, ((0, 0), (0, L)))
        up = (lambda x, *d: x.permute(*d))(u, 0, 2, 1)
        up = _pad(up, ((0, 0), (0, 0), (0, L)))
        Kf = (lambda x, axes=(-2,-1): torch.fft.rfft2(x.float(), dim=axes))(Kp[:, None, :], axes=(-2, -1))
        Uf = (lambda x, axes=(-2,-1): torch.fft.rfft2(x.float(), dim=axes))(up[:, :, None, :], axes=(-2, -1))
        Yf = Uf * Kf[None, :, :, :]
        y = (lambda x, s, axes=(-2,-1): torch.fft.irfft2(x, s=s, dim=axes).to(torch.bfloat16))(Yf, (1, L2), axes=(-2, -1))[:, :, 0, :L]
        y = (lambda x, *d: x.permute(*d))(y, 0, 2, 1) + u * Dskip[None, None, :]
        return y

    def _B_ref(x, W_gate, W_up, W_down):
        gate = torch.einsum("bsd,df->bsf", x, W_gate)
        up = torch.einsum("bsd,df->bsf", x, W_up)
        gate = gate * (lambda x, dt: x.to(dt))(gate > 0, gate.dtype)
        h = gate * up
        return torch.einsum("bsf,fd->bsd", h, W_down)

    x = A_u
    h = x + _A_ref(_layernorm(x, axis=-1), A_A_re, A_A_im, A_B_re, A_B_im, A_C_re, A_C_im, A_log_dt, A_Dskip)
    h2 = h + _B_ref(_layernorm(h, axis=-1), B_W_gate, B_W_up, B_W_down)
    return h2
```

```python
import re

TRANS = ("v_exp_f32", "v_log_f32", "v_rcp_f32", "v_rsq_f32", "v_sqrt_f32", "v_sin_f32", "v_cos_f32",
         "v_rcp_iflag_f32")

_reg_re = re.compile(r"^-?\|?(?:abs\()?([vas])(?:(\d+)|\[(\d+):(\d+)\])\)?\|?$")


def regs_of(tok):
    tok = tok.strip()
    if tok in ("vcc",):
        return {("s", 106), ("s", 107)}
    if tok == "vcc_lo":
        return {("s", 106)}
    if tok == "vcc_hi":
        return {("s", 107)}
    if tok == "exec":
        return {("s", 126), ("s", 127)}
    if tok == "exec_lo":
        return {("s", 126)}
    if tok == "exec_hi":
        return {("s", 127)}
    if tok == "m0":
        return {("s", 124)}
    m = _reg_re.match(tok)
    if not m:
        return set()
    k = m.group(1)
    if m.group(2) is not None:
        return {(k, int(m.group(2)))}
    return {(k, i) for i in range(int(m.group(3)), int(m.group(4)) + 1)}


def split_ops(s):
    out, depth, cur = [], 0, ""
    for ch in s:
        if ch in "[(":
            depth += 1
        if ch in "])":
            depth -= 1
        if ch == "," and depth == 0:
            out.append(cur.strip())
            cur = ""
        else:
            cur += ch
    if cur.strip():
        out.append(cur.strip())
    return out


class Ins:
    def __init__(self, text):
        self.text = text
        code = text.split(";")[0].strip()
        self.label = None
        self.op = None
        self.kind = "other"
        self.w = set()
        self.r = set()
        self.ws = 1
        self.target = None
        self.mods = ""
        if not code:
            self.kind = "comment"
            self.ws = 0
            return
        if code.endswith(":"):
            self.label = code[:-1]
            self.kind = "label"
            self.ws = 0
            return
        if code.startswith("."):
            self.kind = "directive"
            self.ws = 0
            return
        parts = code.split(None, 1)
        op = parts[0]
        self.op = op
        rest = parts[1] if len(parts) > 1 else ""
        ops = split_ops(rest)
        if ops:
            lp = ops[-1].split()
            ops[-1] = lp[0]
            self.mods = " ".join(lp[1:])
        self.ops = ops
        R = lambda i: regs_of(ops[i]) if i < len(ops) else set()
        allr = lambda a: set().union(*[regs_of(o) for o in ops[a:]]) if len(ops) > a else set()
        base = re.sub(r"_(e32|e64|dpp|sdwa)$", "", op)
        self.base = base
        if op == "s_nop":
            self.kind = "nop"
            self.ws = int(ops[0], 0) + 1
        elif op.startswith("s_waitcnt"):
            self.kind = "wait"
            self.vm = self.lgkm = None
            m = re.search(r"vmcnt\((\d+)\)", code)
            if m:
                self.vm = int(m.group(1))
            m = re.search(r"lgkmcnt\((\d+)\)", code)
            if m:
                self.lgkm = int(m.group(1))
        elif op in ("s_branch",) or op.startswith("s_cbranch"):
            self.kind = "branch"
            self.target = ops[0]
        elif op == "s_endpgm":
            self.kind = "end"
        elif op.startswith("s_load") or op.startswith("s_buffer_load") or op in ("s_memtime", "s_memrealtime"):
            self.kind = "smem"
            self.w = R(0)
            self.r = allr(1)
        elif op.startswith("s_atomic"):
            self.kind = "smem"
            self.w = R(0)
            self.r = allr(0)
        elif op.startswith("s_cmp") or op.startswith("s_bitcmp") or op in ("s_barrier", "s_setprio", "s_sleep"):
            self.kind = "salu"
            self.r = allr(0)
        elif op.startswith("s_"):
            self.kind = "salu"
            self.w = R(0)
            self.r = allr(1)
            if "saveexec" in op:
                self.w |= regs_of("exec")
                self.r |= regs_of("exec")
            if op in ("s_addk_i32", "s_mulk_i32"):
                self.r |= R(0)
        elif op.startswith("v_mfma"):
            self.kind = "mfma"
            self.w = R(0)
            self.a = R(1)
            self.b = R(2)
            self.c = R(3)
            self.r = self.a | self.b | self.c
            self.passes = 8 if "32x32x16" in op else 4 if "16x16x32" in op else None
            assert self.passes, op
        elif op.startswith("v_"):
            self.kind = "valu"
            if base.startswith("v_cmpx"):
                self.w = R(0) | regs_of("exec")
                self.r = allr(1)
            elif base in ("v_add_co_u32", "v_sub_co_u32", "v_addc_co_u32", "v_subb_co_u32", "v_mad_u64_u32"):
                self.w = R(0) | R(1)
                self.r = allr(2)
            elif base.startswith("v_permlane") and "swap" in base:
                self.w = R(0) | R(1)
                self.r = R(0) | R(1)
            else:
                self.w = R(0)
                self.r = allr(1)
                if base in ("v_fmac_f32", "v_dot2c_f32_bf16", "v_writelane_b32", "v_pk_fmac_f16"):
                    self.r |= R(0)
                if "dpp" in op or "row_" in self.mods or "quad_perm" in self.mods or "wave_" in self.mods:
                    self.r |= R(0)
            self.trans = base in TRANS
            self.dot = base.startswith("v_dot")
            self.dpp = ("dpp" in op) or any(k in self.mods for k in ("row_", "quad_perm", "wave_"))
            self.rdlane = base in ("v_readlane_b32", "v_readfirstlane_b32")
            self.perml = base.startswith("v_permlane")
        elif op.startswith("buffer_") or op.startswith("global_"):
            self.kind = "vmem"
            self.lds = " lds" in (" " + self.mods) or "_lds_" in op
            self.store = "store" in op or ("atomic" in op)
            self.data = set()
            if op in ("buffer_wbl2", "buffer_inv"):
                self.store = True
            elif self.lds:
                self.r = allr(0) | regs_of("m0")
            elif op.startswith("buffer_"):
                if self.store:
                    self.r = allr(0)
                    self.data = R(0)
                    if "atomic" in op and "sc0" in self.mods:
                        self.w = R(0)
                else:
                    self.w = R(0)
                    self.r = allr(1)
                    if "d16" in op:
                        self.r |= R(0)
            else:
                if "store" in op:
                    self.r = allr(0)
                    self.data = R(1)
                elif "atomic" in op:
                    if "sc0" in self.mods:
                        self.w = R(0)
                        self.r = allr(1)
                    else:
                        self.r = allr(0)
                else:
                    self.w = R(0)
                    self.r = allr(1)
            self.wide = self.store and len(self.data) >= 3
        elif op.startswith("ds_"):
            self.kind = "ds"
            if op.startswith("ds_read") or op.startswith("ds_swizzle") or op.startswith("ds_bpermute") or "_rtn" in op:
                self.w = R(0)
                self.r = allr(1)
            else:
                self.r = allr(0)
        else:
            raise ValueError("unknown instruction: " + text)


def _vg(s):
    return {x for x in s if x[0] in "va"}


def _sg(s):
    return {x for x in s if x[0] == "s"}


EXEC = regs_of("exec")
M0 = regs_of("m0")


def need(p, c):
    n = 0
    if p.kind == "valu":
        wv = _vg(p.w)
        wsg = _sg(p.w)
        if c.kind == "mfma" and wv & c.r:
            n = max(n, 3 if p.dot else 2)
        if c.kind == "valu":
            if p.trans and wv & c.r:
                n = max(n, 1)
            if wv & c.r and c.rdlane:
                n = max(n, 1)
            if wv & c.r and (c.dpp or c.perml):
                n = max(n, 2)
            if p.dot:
                if c.base == p.base:
                    srcab = set().union(*[regs_of(o) for o in c.ops[1:3]])
                    if wv & srcab:
                        n = max(n, 3)
                elif wv & (c.r | c.w):
                    n = max(n, 3)
            if wsg & c.r:
                n = max(n, 4 if c.base in ("v_readlane_b32", "v_writelane_b32") else 2)
            if wsg & EXEC:
                if c.dpp:
                    n = max(n, 5)
                if c.rdlane or c.perml or c.base == "v_writelane_b32":
                    n = max(n, 4)
        if c.kind in ("vmem", "ds"):
            if (p.trans or p.dot) and wv & c.r:
                n = max(n, 3 if p.dot else 1)
        if c.kind == "vmem" and wsg & c.r:
            n = max(n, 5)
        if c.kind == "mfma" and wsg & EXEC:
            n = max(n, 4)
        if c.kind in ("salu", "smem") and wsg & c.r:
            n = max(n, 1)
    if p.kind == "mfma":
        big = p.passes == 8
        if c.kind == "mfma":
            if p.w & c.c and not (p.w == c.c and p.passes == c.passes):
                n = max(n, 10 if big else 6)
            if p.w & (c.a | c.b):
                n = max(n, 12 if big else 8)
            if p.w & c.w and not (p.w == c.c and p.passes == c.passes):
                n = max(n, 10 if big else 6)
        elif c.kind in ("valu", "vmem", "ds"):
            if p.w & (c.r | c.w):
                n = max(n, 12 if big else 8)
            if c.kind == "valu" and p.c & c.w:
                n = max(n, 7 if big else 3)
    if p.kind == "salu" and p.w & M0 and c.kind == "vmem" and getattr(c, "lds", False):
        n = max(n, 1)
    if p.kind == "vmem" and getattr(p, "wide", False) and p.data & c.w:
        n = max(n, 2 if c.kind == "valu" else 1)
    return n


class Asm:
    def __init__(self):
        self.ins = []

    def __call__(self, text):
        for line in text.split("\n"):
            line = line.strip()
            if line:
                self.ins.append(Ins(line))

    def label(self, name):
        self.ins.append(Ins(name + ":"))

    def fix_hazards(self):
        out = []
        ins = self.ins
        labels_src = {}
        for i in ins:
            if i.kind == "branch":
                labels_src.setdefault(i.target, []).append(i)
        work = list(ins)
        idx = 0
        pos = {id(x): k for k, x in enumerate(work)}
        ninserted = 0

        def deficit(k, c, dist, seen):
            worst = 0
            while k >= 0 and dist < 20:
                p = work[k]
                if p.kind == "label":
                    for b in labels_src.get(p.label, []):
                        key = (id(b), dist)
                        if key not in seen:
                            seen.add(key)
                            worst = max(worst, deficit(pos[id(b)], c, dist, seen | {"viabranch"}))
                    k -= 1
                    continue
                if p.kind == "end" or (p.kind == "branch" and p.op == "s_branch" and "viabranch" not in seen):
                    break
                seen = seen - {"viabranch"}
                if p.ws:
                    worst = max(worst, need(p, c) - dist)
                dist += p.ws
                k -= 1
            return worst

        while idx < len(work):
            c = work[idx]
            if c.kind in ("valu", "mfma", "vmem", "ds", "salu", "smem"):
                d = deficit(idx - 1, c, 0, set())
                if d > 0:
                    while d > 0:
                        n = min(d, 16)
                        work.insert(idx, Ins("s_nop %d ; hz" % (n - 1)))
                        idx += 1
                        d -= n
                        ninserted += 1
                    pos = {id(x): k for k, x in enumerate(work)}
            idx += 1
        self.ins = work
        return ninserted

    def check_waits(self):
        vm = []
        lg = []
        errs = []
        for i in self.ins:
            if i.kind == "end" or (i.kind == "branch" and i.op == "s_branch"):
                vm, lg = [], []
                continue
            if i.kind == "wait":
                if i.vm is not None:
                    while len(vm) > i.vm:
                        vm.pop(0)
                if i.lgkm is not None:
                    if any(x.kind == "smem" for x in lg):
                        if i.lgkm == 0:
                            lg = []
                    else:
                        while len(lg) > i.lgkm:
                            lg.pop(0)
                continue
            if i.kind in ("label", "comment", "directive", "nop"):
                continue
            touch = i.r | i.w
            for q in vm + lg:
                if q.w & touch:
                    if q.kind == i.kind and q.kind in ("vmem", "ds") and not (q.w & i.r):
                        continue
                    errs.append("pending load '%s' touched by '%s'" % (q.text, i.text))
            if i.kind == "vmem":
                vm.append(i)
                if len(vm) > 63:
                    vm.pop(0)
            elif i.kind in ("ds", "smem"):
                lg.append(i)
        return errs

    def maxregs(self):
        mv = ma = ms = -1
        for i in self.ins:
            for k, n in (i.r | i.w):
                if k == "v":
                    mv = max(mv, n)
                elif k == "a":
                    ma = max(ma, n)
                elif k == "s" and n < 102:
                    ms = max(ms, n)
        return mv + 1, ma + 1, ms + 1

    def text(self):
        o = []
        for i in self.ins:
            if i.kind == "label":
                o.append(i.text)
            else:
                o.append("    " + i.text)
        return "\n".join(o)


def kernel_text(name, asm, verbose=True):
    n = asm.fix_hazards()
    errs = asm.check_waits()
    for e in errs:
        print("WAITCHECK[%s]: %s" % (name, e))
    v, a, s = asm.maxregs()
    acc = max(4, (v + 3) // 4 * 4)
    nfv = acc + a if a else v
    if verbose:
        print("%s: %d instr, %d nops inserted, vgpr %d agpr %d sgpr %d" % (name, len(asm.ins), n, v, a, s))
    body = """.globl {n}
.p2align 8
.type {n},@function
{n}:
{b}
""".format(n=name, b=asm.text())
    desc = """.p2align 6
.amdhsa_kernel {n}
  .amdhsa_next_free_vgpr {nfv}
  .amdhsa_next_free_sgpr {s}
  .amdhsa_accum_offset {acc}
  .amdhsa_group_segment_fixed_size 0
  .amdhsa_kernarg_size 128
  .amdhsa_user_sgpr_count 2
  .amdhsa_user_sgpr_kernarg_segment_ptr 1
  .amdhsa_system_sgpr_workgroup_id_x 1
.end_amdhsa_kernel
""".format(n=name, nfv=nfv, s=max(s, 16), acc=acc)
    return body, desc, errs
```

```python
import sys
import struct
from asmgen import Asm, kernel_text

L, D, N, F = 2048, 640, 192, 1536
KA = dict(x=0, are=8, aim=16, bre=24, bim=32, cre=40, cim=48, ldt=56, dsk=64, wg=80, wu=88, wd=96, out=104, dbg=112, ws=120)
XT, HT, ST1, CM, ST2, W1P, W2P, HM = 0x0, 0x300000, 0x600000, 0x610000, 0x620000, 0x700000, 0xB00000, 0xE00000
SZ_XT = D * L * 2
SZ_W = D * F * 2


def f2u(x):
    return struct.unpack("<I", struct.pack("<f", x))[0]


def srd(a, s, base, off, size):
    if off:
        a(f"s_add_u32 s{s}, s{base}, {off:#x}")
        a(f"s_addc_u32 s{s+1}, s{base+1}, 0")
    else:
        a(f"s_mov_b32 s{s}, s{base}")
        a(f"s_mov_b32 s{s+1}, s{base+1}")
    a(f"s_mov_b32 s{s+2}, {size:#x}")
    a(f"s_mov_b32 s{s+3}, 0x20000")


def vr(b, n):
    return f"v[{b}:{b+n-1}]"


def ar(b, n):
    return f"a[{b}:{b+n-1}]"


K1_P1, K1_CM, K1_W2 = 128, 48, 60
K1_GRID = K1_P1 + K1_CM + K1_W2
K1_LDS = 16 * 1344


def ln_finish(a, vs, vq, t0, t1):
    inv = f2u(1.0 / D)
    a(f"v_mul_f32 v{vs}, {inv:#x}, v{vs}")
    a(f"v_mul_f32 v{vq}, {inv:#x}, v{vq}")
    a(f"v_fma_f32 v{vq}, -v{vs}, v{vs}, v{vq}")
    a(f"v_max_f32 v{vq}, 0, v{vq}")
    a(f"v_cvt_pk_bf16_f32 v{t0}, v{vq}, v{vs}")
    a(f"v_and_b32 v{vs}, 0xffff0000, v{t0}")
    a(f"v_lshlrev_b32 v{vq}, 16, v{t0}")
    a(f"v_add_f32 v{vq}, {f2u(1e-5):#x}, v{vq}")
    a(f"v_cvt_pk_bf16_f32 v{t0}, v{vq}, v{vq}")
    a(f"v_lshlrev_b32 v{vq}, 16, v{t0}")
    a(f"v_sqrt_f32 v{vq}, v{vq}")
    a(f"v_cvt_pk_bf16_f32 v{t0}, v{vq}, v{vq}")
    a(f"v_lshlrev_b32 v{vq}, 16, v{t0}")


def gen_k1():
    a = Asm()
    a(f"s_cmp_ge_u32 s2, {K1_GRID}")
    a("s_cbranch_scc1 K1_END")
    a(f"s_cmp_ge_u32 s2, {K1_P1 + K1_CM}")
    a("s_cbranch_scc1 K1_W2")
    a(f"s_cmp_ge_u32 s2, {K1_P1}")
    a("s_cbranch_scc1 K1_CM")
    a(f"s_load_dwordx2 s[4:5], s[0:1], {KA['x']}")
    a(f"s_load_dwordx2 s[6:7], s[0:1], {KA['ws']}")
    a("s_and_b32 s3, s2, 7")
    a("s_lshl_b32 s3, s3, 4")
    a("s_lshr_b32 s20, s2, 3")
    a("s_add_u32 s3, s3, s20            ; tb16")
    a(f"s_mul_i32 s20, s3, {16*1280}")
    a("v_lshrrev_b32 v1, 4, v0          ; row r")
    a("v_and_b32 v2, 15, v0             ; j")
    a("v_mul_u32_u24 v3, 1280, v1")
    a("v_lshl_add_u32 v3, v2, 4, v3")
    a("s_waitcnt lgkmcnt(0)")
    srd(a, 8, 4, 0, SZ_XT)
    for c in range(5):
        a(f"buffer_load_dwordx4 {vr(8+4*c,4)}, v3, s[8:11], s20 offen offset:{256*c}")
    srd(a, 12, 6, XT, SZ_XT)
    srd(a, 16, 6, ST1, L * 8)
    a("v_mul_u32_u24 v4, 1344, v1")
    a("v_lshl_add_u32 v4, v2, 4, v4")
    a("v_bfe_u32 v5, v0, 5, 1           ; th")
    a("v_bfe_u32 v6, v0, 2, 2           ; rr")
    a("v_lshl_add_u32 v6, v5, 3, v6")
    a("v_mul_u32_u24 v6, 1344, v6")
    a("v_lshrrev_b32 v7, 6, v0          ; w")
    a("v_lshl_add_u32 v6, v7, 6, v6")
    a("v_bfe_u32 v30, v0, 4, 1          ; cb")
    a("v_lshl_add_u32 v6, v30, 5, v6")
    a("v_and_b32 v31, 3, v0")
    a("v_lshl_add_u32 v6, v31, 3, v6")
    a("v_lshlrev_b32 v7, 5, v7")
    a("v_lshl_add_u32 v7, v30, 4, v7")
    a("v_add_u32 v7, v7, v2")
    a("v_lshlrev_b32 v7, 12, v7")
    a("v_lshl_add_u32 v7, v5, 4, v7")
    a("s_mov_b32 s21, 0x3f803f80")
    a("s_lshl_b32 s22, s3, 5            ; 2*t0")
    for c in range(5):
        a(f"s_waitcnt vmcnt({4-c})")
        a(f"ds_write_b128 v4, {vr(8+4*c,4)} offset:{256*c}")
        for k in range(4):
            r = 8 + 4 * c + k
            first = c == 0 and k == 0
            a(f"v_dot2_f32_bf16 v28, v{r}, s21, {'0' if first else 'v28'}")
            a(f"v_dot2_f32_bf16 v29, v{r}, v{r}, {'0' if first else 'v29'}")
    a("s_waitcnt lgkmcnt(0)")
    a("s_barrier")
    for k in range(5):
        a(f"ds_read_b64_tr_b16 {vr(32+4*k,2)}, v6 offset:{256*k}")
        a(f"ds_read_b64_tr_b16 {vr(34+4*k,2)}, v6 offset:{256*k+4*1344}")
    for sh in (8, 4, 2, 1):
        a(f"v_add_f32_dpp v28, v28, v28 row_ror:{sh} row_mask:0xf bank_mask:0xf")
        a(f"v_add_f32_dpp v29, v29, v29 row_ror:{sh} row_mask:0xf bank_mask:0xf")
    for k in range(5):
        a(f"s_waitcnt lgkmcnt({8-2*k})")
        a(f"buffer_store_dwordx4 {vr(32+4*k,4)}, v7, s[12:15], s22 offen")
        if k < 4:
            a(f"s_add_u32 s22, s22, {128*4096}")
    ln_finish(a, 28, 29, 30, 31)
    a("v_rcp_f32 v29, v29")
    a("v_xor_b32 v28, 0x80000000, v28")
    a("v_lshlrev_b32 v1, 3, v1")
    a("s_lshl_b32 s23, s3, 7            ; t0*8")
    a("v_cmp_eq_u32 vcc, 0, v2")
    a("s_and_saveexec_b64 s[24:25], vcc")
    a("buffer_store_dwordx2 v[28:29], v1, s[16:19], s23 offen")
    a("s_endpgm")
    a.label("K1_CM")
    a(f"s_sub_u32 s3, s2, {K1_P1}")
    a("s_cmp_ge_u32 s3, 24")
    a(f"s_load_dwordx4 s[40:43], s[0:1], {KA['wg']}")
    a(f"s_load_dwordx2 s[6:7], s[0:1], {KA['ws']}")
    a("s_cselect_b32 s21, 24, 0")
    a("s_sub_u32 s21, s3, s21           ; fb")
    a("s_lshl_b32 s21, s21, 7")
    a("v_and_b32 v1, 7, v0")
    a("v_lshrrev_b32 v2, 3, v0")
    a("v_mul_u32_u24 v3, 3072, v2")
    a("v_lshl_add_u32 v3, v1, 4, v3")
    a("s_waitcnt lgkmcnt(0)")
    a("s_cmp_ge_u32 s3, 24")
    a("s_cselect_b64 s[4:5], s[42:43], s[40:41]")
    srd(a, 8, 4, 0, SZ_W)
    for k in range(20):
        a(f"buffer_load_dwordx4 {vr(16+4*k,4)}, v3, s[8:11], s21 offen")
        if k < 19:
            a(f"s_add_u32 s21, s21, {32*3072}")
    srd(a, 12, 6, CM, 3072 * 4)
    a("s_mov_b32 s22, 0x3f80")
    a("s_mov_b32 s23, 0x3f800000")
    a("v_lshlrev_b32 v4, 5, v0")
    for k in range(20):
        a(f"s_waitcnt vmcnt({19-k})")
        for m in range(4):
            r = 16 + 4 * k + m
            a(f"v_dot2_f32_bf16 v{8+2*m}, v{r}, s22, {'0' if k == 0 else 'v%d' % (8+2*m)}")
            a(f"v_dot2_f32_bf16 v{9+2*m}, v{r}, s23, {'0' if k == 0 else 'v%d' % (9+2*m)}")
    a("ds_write_b128 v4, v[8:11]")
    a("ds_write_b128 v4, v[12:15] offset:16")
    a("s_waitcnt lgkmcnt(0)")
    a("s_barrier")
    a("v_readfirstlane_b32 s24, v0")
    a("s_cmp_ge_u32 s24, 64")
    a("s_cbranch_scc1 K1_END")
    a("v_lshlrev_b32 v4, 2, v0")
    for k in range(16):
        a(f"ds_read2st64_b32 {vr(16+2*k,2)}, v4 offset0:{2*k} offset1:{2*k+1}")
        if k == 7:
            a("s_waitcnt lgkmcnt(0)")
    a("s_waitcnt lgkmcnt(0)")
    for st in (16, 8, 4, 2, 1):
        for k in range(st):
            a(f"v_add_f32 v{16+k}, v{16+k}, v{16+st+k}")
    a(f"v_mul_f32 v16, {f2u(-1.0/D):#x}, v16")
    a("s_lshl_b32 s3, s3, 8")
    a("buffer_store_dword v16, v4, s[12:15], s3 offen")
    a("s_endpgm")
    a.label("K1_W2")
    a(f"s_load_dwordx2 s[4:5], s[0:1], {KA['wd']}")
    a(f"s_load_dwordx2 s[6:7], s[0:1], {KA['ws']}")
    a("v_lshrrev_b32 v1, 6, v0")
    a(f"s_sub_u32 s3, s2, {K1_P1 + K1_CM}")
    a("v_readfirstlane_b32 s20, v1")
    a("s_lshl_b32 s3, s3, 2")
    a("s_add_u32 s3, s3, s20")
    a("s_mul_i32 s21, s3, 205")
    a("s_lshr_b32 s21, s21, 11")
    a("s_mul_i32 s22, s21, 10")
    a("s_sub_u32 s22, s3, s22           ; cg")
    a(f"s_mul_i32 s23, s21, {64*1280}")
    a("s_lshl_b32 s24, s22, 7")
    a("s_add_u32 s23, s23, s24")
    a("v_and_b32 v1, 7, v0              ; c")
    a("v_bfe_u32 v2, v0, 3, 2           ; g")
    a("v_bfe_u32 v3, v0, 5, 1           ; hi")
    a("v_lshlrev_b32 v4, 4, v3")
    a("v_add_u32 v4, v4, v2")
    a("v_mul_u32_u24 v4, 2560, v4")
    a("v_lshl_add_u32 v4, v1, 4, v4")
    a("s_waitcnt lgkmcnt(0)")
    srd(a, 8, 4, 0, SZ_W)
    for jj in range(4):
        a(f"buffer_load_dwordx4 {vr(16+8*jj,4)}, v4, s[8:11], s23 offen")
        a(f"buffer_load_dwordx4 {vr(20+8*jj,4)}, v4, s[8:11], s23 offen offset:1280")
        if jj < 3:
            a(f"s_add_u32 s23, s23, {8*1280}")
    srd(a, 12, 6, W2P, SZ_W)
    a("s_lshl_b32 s24, s22, 3")
    a("v_add_u32 v5, s24, v1            ; chunk")
    a("v_mul_u32_u24 v6, 205, v5")
    a("v_lshrrev_b32 v6, 11, v6         ; db")
    a("v_mul_u32_u24 v7, 10, v6")
    a("v_sub_u32 v7, v5, v7             ; cl")
    a("s_mov_b32 s25, 245760")
    a("v_mul_lo_u32 v6, v6, s25")
    a("v_mul_u32_u24 v8, 5120, v3")
    a("v_add_u32 v6, v6, v8")
    a("v_lshl_add_u32 v6, v2, 4, v6")
    a("v_lshrrev_b32 v8, 2, v7")
    a("v_lshlrev_b32 v8, 11, v8")
    a("v_and_b32 v9, 3, v7")
    a("v_cmp_gt_u32 vcc, 8, v7")
    a("v_mov_b32 v10, 9")
    a("v_cndmask_b32 v10, v10, 8, vcc")
    a("v_lshlrev_b32 v9, v10, v9")
    a("v_add3_u32 v6, v6, v8, v9")
    a("v_mov_b32 v10, 256")
    a("v_mov_b32 v11, 1024")
    a("v_cndmask_b32 v10, v10, v11, vcc")
    a("v_add_u32 v7, v6, v10")
    a("s_mul_i32 s26, s21, 10240")
    a("s_mov_b32 s27, 0x05040100")
    a("s_mov_b32 s28, 0x07060302")
    a("s_waitcnt vmcnt(0)")
    for dl in range(8):
        o = 48 + 4 * dl
        for jj in range(4):
            a(f"v_perm_b32 v{o+jj}, v{20+8*jj+(dl>>1)}, v{16+8*jj+(dl>>1)}, s{27+(dl&1)}")
        a(f"buffer_store_dwordx4 {vr(o,4)}, v{6 if dl < 4 else 7}, s[12:15], s26 offen offset:{64*(dl&3)}")
    a.label("K1_END")
    a("s_endpgm")
    return a


K2_W1 = 120
K2_GRID = K2_W1 + D
STG = 9216
UB0 = 32768
UB2 = UB0 + 4640
KO = UB0 + 9280
KE = KO + 4224
K2_LDS = 51200


def cmul1(a, d, x, y):
    a(f"v_pk_mul_f32 {vr(d,2)}, {vr(x,2)}, {vr(y,2)} op_sel:[0,0] op_sel_hi:[0,1]")


def cmul2(a, d, x, y):
    a(f"v_pk_fma_f32 {vr(d,2)}, {vr(x,2)}, {vr(y,2)}, {vr(d,2)} op_sel:[1,1,0] op_sel_hi:[1,0,1] neg_lo:[1,0,0]")


def cmuls(a, lst):
    for d, x, y in lst:
        assert d not in (x, y)
        cmul1(a, d, x, y)
    for d, x, y in lst:
        cmul2(a, d, x, y)


def gen_k2():
    a = Asm()
    a(f"s_cmp_ge_u32 s2, {K2_GRID}")
    a("s_cbranch_scc1 K2_END")
    a(f"s_cmp_lt_u32 s2, {K2_W1}")
    a("s_cbranch_scc1 K2_W1")
    a(f"s_load_dwordx16 s[4:19], s[0:1], {KA['are']}    ; are,aim,bre,bim,cre,cim,ldt,dsk")
    a(f"s_load_dwordx2 s[20:21], s[0:1], {KA['ws']}")
    a(f"s_sub_u32 s3, s2, {K2_W1}        ; channel d")
    a("v_lshrrev_b32 v1, 6, v0")
    a("v_and_b32 v2, 63, v0              ; lane")
    a("v_readfirstlane_b32 s22, v1       ; wave")
    a("s_mul_i32 s23, s3, 384")
    a("v_lshlrev_b32 v3, 1, v0")
    a("v_add_u32 v3, s23, v3")
    a("s_lshl_b32 s24, s3, 1")
    a("s_and_b32 s24, s24, 0xfffffffc")
    for r in range(24, 30):
        a(f"v_mov_b32 v{r}, 0")
    a("v_lshlrev_b32 v30, 4, v0          ; 16*tid")
    a("v_lshlrev_b32 v31, 6, v0          ; 64*tid")
    a("s_lshl_b32 s25, s3, 12            ; d*4096")
    a("s_waitcnt lgkmcnt(0)")
    a("s_load_dword s26, s[16:17], s24")
    a("s_load_dword s27, s[18:19], s24")
    a("s_cmp_eq_u32 s22, 3")
    a("s_cbranch_scc1 K2_NOPAR")
    for k in range(6):
        a(f"global_load_short_d16_hi v{24+k}, v3, s[{4+2*k}:{5+2*k}]")
    a.label("K2_NOPAR")
    srd(a, 28, 20, XT, SZ_XT)
    srd(a, 32, 20, ST1, L * 8)
    srd(a, 36, 20, HT, SZ_XT)
    a("buffer_load_dwordx4 v[4:7], v30, s[28:31], s25 offen")
    for k in range(4):
        a(f"buffer_load_dwordx4 {vr(8+4*k,4)}, v31, s[32:35], 0 offen offset:{16*k}")
    a("s_waitcnt lgkmcnt(0)")
    a("s_lshl_b32 s40, s26, 16")
    a("s_and_b32 s41, s26, 0xffff0000")
    a("s_lshl_b32 s42, s27, 16")
    a("s_and_b32 s43, s27, 0xffff0000")
    a("s_bitcmp1_b32 s3, 0")
    a("s_cselect_b32 s26, s41, s40")
    a("s_cselect_b32 s27, s43, s42")
    a("s_lshr_b32 s44, s27, 16")
    a("s_mov_b32 s45, 0x3f80")
    a("s_mov_b32 s46, 0x3f800000")
    a("s_mov_b32 s47, 0x3f803f80         ; ones")
    a("s_cmp_eq_u32 s22, 3")
    a("s_cbranch_scc1 K2_W3")
    A_, B_, C_ = 24, 26, 28
    LOG2E = f2u(1.4426950408889634)
    a(f"s_mov_b32 s48, {LOG2E:#x}")
    a(f"s_mov_b32 s49, {f2u(0.15915494309189535):#x}")
    a("v_mov_b32 v32, s26")
    a(f"v_mul_f32 v32, {LOG2E:#x}, v32")
    a("v_exp_f32 v32, v32")
    a(f"s_mul_i32 s50, s22, {STG}")
    a("v_mul_u32_u24 v34, 144, v2")
    a("v_add_u32 v34, s50, v34")
    a("v_cvt_pk_bf16_f32 v32, v32, v32")
    a("v_lshlrev_b32 v32, 16, v32        ; dt")
    a("v_bfe_u32 v35, v2, 5, 1")
    a("v_bfe_u32 v36, v2, 3, 1")
    a("v_lshlrev_b32 v35, 1, v35")
    a("v_lshl_add_u32 v35, v36, 3, v35")
    a("v_mul_u32_u24 v35, 144, v35")
    a("v_bfe_u32 v36, v2, 2, 1")
    a("v_lshl_add_u32 v35, v36, 6, v35")
    a("v_bfe_u32 v36, v2, 4, 1")
    a("v_lshl_add_u32 v35, v36, 5, v35")
    a("v_and_b32 v36, 3, v2")
    a("v_lshl_add_u32 v35, v36, 3, v35")
    a("v_add_u32 v35, s50, v35")
    a("s_waitcnt vmcnt(5)")
    a(f"v_pk_mul_f32 {vr(A_,2)}, {vr(A_,2)}, v[32:33] op_sel:[0,0] op_sel_hi:[1,0]")
    a(f"v_pk_mul_f32 {vr(B_,2)}, {vr(B_,2)}, v[32:33] op_sel:[0,0] op_sel_hi:[1,0]")
    a(f"v_pk_mul_f32 {vr(A_,2)}, {vr(A_,2)}, s[48:49]")
    P, Q, CV = 40, 56, 72
    p1, qq, w8, R0 = 88, 90, 92, 94
    cmuls(a, [(R0, C_, B_)])
    ev = [(P + 2, 8.0, 96), (p1, 1.0, 99), (qq, 256.0, 102)]
    for dst, sc, t in ev:
        if sc == 1.0:
            a(f"v_fract_f32 v{t+1}, v{A_+1}")
        else:
            a(f"v_mul_f32 v{t}, {f2u(sc):#x}, v{A_}")
            a(f"v_mul_f32 v{t+1}, {f2u(sc):#x}, v{A_+1}")
            a(f"v_fract_f32 v{t+1}, v{t+1}")
    for dst, sc, t in ev:
        a(f"v_exp_f32 v{t}, v{A_ if sc == 1.0 else t}")
        a(f"v_cos_f32 v{dst}, v{t+1}")
        a(f"v_sin_f32 v{dst+1}, v{t+1}")
    a(f"v_mov_b32 v{P}, 1.0")
    a(f"v_mov_b32 v{P+1}, 0")
    for dst, sc, t in ev:
        a(f"v_mul_f32 v{dst}, v{dst}, v{t}")
        a(f"v_mul_f32 v{dst+1}, v{dst+1}, v{t}")
    W = lambda k: P + 2 * k
    p2, p4, q2 = 96, 98, 100
    RA = 104
    Rr = lambda k: RA + 2 * k
    cmuls(a, [(W(2), W(1), W(1)), (p2, p1, p1), (q2, qq, qq), (Rr(1), R0, p1)])
    cmuls(a, [(W(3), W(2), W(1)), (W(4), W(2), W(2)), (p4, p2, p2), (Rr(2), R0, p2), (Rr(3), Rr(1), p2)])
    cmuls(a, [(W(5), W(4), W(1)), (W(6), W(4), W(2)), (W(7), W(4), W(3)), (w8, W(4), W(4))])

    def emit_blk(bank, blk, cv, neg):
        for k in range(4):
            a(f"v_cvt_pk_bf16_f32 v{cv+k}, v{bank+4*k}, v{bank+4*k+2}")
        for k in range(4):
            s = "-" if neg else ""
            a(f"v_cvt_pk_bf16_f32 v{cv+4+k}, {s}v{bank+4*k+1}, {s}v{bank+4*k+3}")
        a(f"ds_write_b128 v34, {vr(cv,4)} offset:{16*blk}")
        a(f"ds_write_b128 v34, {vr(cv+4,4)} offset:{64+16*blk}")

    src, dst = P, Q
    for blk in range(4):
        if blk < 3:
            cmuls(a, [(dst + 2 * k, src + 2 * k, w8) for k in range(8)])
        emit_blk(src, blk, CV + 8 * (blk & 1), False)
        src, dst = dst, src
    FB, FA = 40, 104
    for s in range(8):
        for rd in range(2):
            off = 144 * (16 * (s >> 1) + 4 * (s & 1) + rd)
            a(f"ds_read_b64_tr_b16 {vr(FB+4*s+2*rd,2)}, v35 offset:{off}")
    a(f"v_mov_b32 v{Rr(0)}, v{R0}")
    a(f"v_mov_b32 v{Rr(0)+1}, v{R0+1}")
    cmuls(a, [(Rr(4 + k), Rr(k) if k else R0, p4) for k in range(4)] + [(Rr(8), R0, qq), (Rr(9), Rr(2), qq), (Rr(12), R0, q2)])
    cmuls(a, [(Rr(10), Rr(4), qq), (Rr(11), Rr(6), qq), (Rr(13), Rr(4), q2), (Rr(14), Rr(8), q2), (Rr(16), Rr(12), q2)])
    emit_blk(Rr(0), 0, CV, True)
    cmuls(a, [(Rr(15), Rr(10), q2), (Rr(17), Rr(14), q2), (Rr(18), Rr(16), q2)])
    cmuls(a, [(Rr(20), Rr(17), q2), (Rr(21), Rr(18), q2)])
    emit_blk(Rr(8), 1, CV + 8, True)
    cv = CV
    a(f"v_cvt_pk_bf16_f32 v{cv}, v{Rr(16)}, v{Rr(17)}")
    a(f"v_cvt_pk_bf16_f32 v{cv+1}, v{Rr(18)}, v{Rr(18)}")
    a(f"v_cvt_pk_bf16_f32 v{cv+2}, v{Rr(20)}, v{Rr(21)}")
    a(f"v_cvt_pk_bf16_f32 v{cv+4}, -v{Rr(16)+1}, -v{Rr(17)+1}")
    a(f"v_cvt_pk_bf16_f32 v{cv+5}, -v{Rr(18)+1}, -v{Rr(18)+1}")
    a(f"v_cvt_pk_bf16_f32 v{cv+6}, -v{Rr(20)+1}, -v{Rr(21)+1}")
    a(f"ds_write_b128 v34, {vr(cv,4)} offset:32")
    a(f"ds_write_b128 v34, {vr(cv+4,4)} offset:96")
    for s in range(8):
        for rd in range(2):
            off = 144 * (16 * (s >> 1) + 4 * (s & 1) + rd)
            a(f"ds_read_b64_tr_b16 {vr(FA+4*s+2*rd,2)}, v35 offset:{off}")
    a("v_and_b32 v36, 31, v2             ; b")
    a("v_bfe_u32 v37, v2, 5, 1           ; h")
    a("v_lshlrev_b32 v88, 5, v36")
    a("v_lshl_add_u32 v88, v37, 4, v88")
    a("v_add_u32 v88, s50, v88           ; q0 addr")
    a("v_lshlrev_b32 v89, 4, v36")
    a("v_add_u32 v89, 1024, v89          ; h=0: 4*(256+4b)")
    a("v_lshlrev_b32 v90, 3, v36")
    a("v_add_u32 v90, 1536, v90          ; h=1: 4*(384+2b)")
    a("v_cmp_eq_u32 vcc, 1, v37")
    a("v_mov_b32 v91, 8")
    a("v_mov_b32 v92, 256")
    a("v_cndmask_b32 v89, v89, v90, vcc")
    a("v_cndmask_b32 v91, v91, v92, vcc")
    a("v_add_u32 v89, s50, v89           ; addrA")
    a("v_add_u32 v90, v89, v91           ; addrB")
    a("v_mul_u32_u24 v91, 384, v37")
    a("v_lshl_add_u32 v91, v36, 2, v91")
    a("v_add_u32 v91, s50, v91")
    DK = 72
    for s in range(8):
        a(f"s_waitcnt lgkmcnt({14-2*s})")
        a(f"v_mfma_f32_32x32x16_bf16 {vr(DK,16)}, {vr(FA+4*s,4)}, {vr(FB+4*s,4)}, {'0' if s == 0 else vr(DK,16)}")
    a("s_branch K2_NORM")
    a.label("K2_W3")
    for r in range(40, 44):
        a(f"v_mov_b32 v{r}, 0")
    a("v_lshlrev_b32 v34, 4, v2")
    a("v_cmp_gt_u32 vcc, 33, v2")
    a("s_and_saveexec_b64 s[52:53], vcc")
    a(f"ds_write_b128 v34, v[40:43] offset:{UB2}")
    a("v_cmp_gt_u32 vcc, 32, v2")
    a("s_and_b64 exec, exec, vcc")
    a(f"ds_write_b128 v34, v[40:43] offset:{UB0}")
    a("v_cmp_gt_u32 vcc, 4, v2")
    a("s_and_b64 exec, exec, vcc")
    a(f"ds_write_b128 v34, v[40:43] offset:{KO+4096}")
    a(f"ds_write_b128 v34, v[40:43] offset:{KE+4096}")
    a("s_mov_b64 exec, s[52:53]")
    a.label("K2_NORM")
    a("s_waitcnt vmcnt(0)")
    T = 40
    for k in range(4):
        a(f"v_dot2_f32_bf16 v{T+2*k}, v{4+k}, s45, v{8+4*k}")
        a(f"v_dot2_f32_bf16 v{T+2*k+1}, v{4+k}, s46, v{8+4*k+2}")
    for k in range(4):
        a(f"v_cvt_pk_bf16_f32 v{T+8+k}, v{T+2*k}, v{T+2*k+1}")
    for k in range(4):
        a(f"v_lshlrev_b32 v{T+2*k}, 16, v{T+8+k}")
        a(f"v_and_b32 v{T+2*k+1}, 0xffff0000, v{T+8+k}")
    for k in range(4):
        a(f"v_mul_f32 v{T+2*k}, v{T+2*k}, v{8+4*k+1}")
        a(f"v_mul_f32 v{T+2*k+1}, v{T+2*k+1}, v{8+4*k+3}")
    for k in range(4):
        a(f"v_cvt_pk_bf16_f32 v{8+k}, v{T+2*k}, v{T+2*k+1}")
    a("s_cmp_eq_u32 s22, 3")
    a("s_cbranch_scc1 K2_NOTAB")
    a(f"ds_write_b128 v88, {vr(DK,4)}")
    a(f"ds_write_b64 v89, {vr(DK+4,2)}")
    a(f"ds_write_b64 v90, {vr(DK+6,2)}")
    for r in range(3):
        a(f"ds_write_b32 v91, v{DK+8+r} offset:{2048+128*r}")
    a.label("K2_NOTAB")
    a("s_waitcnt lgkmcnt(0)")
    a("s_barrier")
    a(f"ds_write_b128 v30, v[8:11] offset:{UB0+512}")
    a(f"v_add_u32 v12, {UB2+512}, v30")
    a("ds_write2_b32 v12, v8, v9 offset0:1 offset1:2")
    a("ds_write2_b32 v12, v10, v11 offset0:3 offset1:4")
    a("s_cmp_eq_u32 s22, 0")
    a("s_cbranch_scc0 K2_EXPN")
    a("v_lshlrev_b32 v12, 4, v2")
    a("v_subrev_u32 v13, 4, v12")
    a("v_max_i32 v13, 0, v13")
    for t in range(3):
        a(f"ds_read_b128 {vr(40+4*t,4)}, v12 offset:{STG*t}")
        a(f"ds_read_b32 v{52+t}, v13 offset:{STG*t}")
    a("v_lshlrev_b32 v14, 3, v2")
    a(f"v_sub_u32 v14, {2*2044}, v14")
    a("v_cmp_eq_u32 vcc, 0, v2")
    a("s_waitcnt lgkmcnt(0)")
    for k in range(4):
        a(f"v_add_f32 v{40+k}, v{40+k}, v{44+k}")
    a("v_add_f32 v52, v52, v53")
    for k in range(4):
        a(f"v_add_f32 v{40+k}, v{40+k}, v{48+k}")
    a("v_add_f32 v52, v52, v54")
    a("v_cndmask_b32 v52, v52, 0, vcc")
    a("v_cvt_pk_bf16_f32 v56, v43, v42")
    a("v_cvt_pk_bf16_f32 v57, v41, v40")
    a("v_cvt_pk_bf16_f32 v58, v42, v41")
    a("v_cvt_pk_bf16_f32 v59, v40, v52")
    a(f"ds_write_b64 v14, v[56:57] offset:{KO}")
    a(f"ds_write_b64 v14, v[58:59] offset:{KE}")
    a("s_branch K2_CONV")
    a.label("K2_EXPN")
    a("s_lshl_b32 s51, s22, 9")
    a("s_add_u32 s51, s51, 508")
    a("v_lshlrev_b32 v12, 3, v2")
    a("v_add_u32 v12, s51, v12")
    for t in range(3):
        a(f"ds_read_b64 {vr(40+4*t,2)}, v12 offset:{STG*t+4}")
        a(f"ds_read_b32 v{42+4*t}, v12 offset:{STG*t+12}")
        a(f"ds_read_b32 v{43+4*t}, v12 offset:{STG*t}")
    a("v_cmp_eq_u32 vcc, 0, v2")
    a("s_waitcnt lgkmcnt(0)")
    for k in range(4):
        a(f"v_add_f32 v{40+k}, v{40+k}, v{44+k}")
    for k in range(4):
        a(f"v_add_f32 v{40+k}, v{40+k}, v{48+k}")
    va, vb, vc, vm = 40, 41, 42, 43
    a("s_cmp_eq_u32 s22, 2")
    a("s_cbranch_scc1 K2_EXP2")
    a("s_cmp_eq_u32 s22, 3")
    a("s_cbranch_scc1 K2_EXP3")

    def pk(dst, lo, hi):
        a(f"v_cvt_pk_bf16_f32 v{dst}, v{lo}, v{hi}")

    a(f"v_cndmask_b32 v{vm}, v{va}, v{vm}, vcc")
    a("v_lshlrev_b32 v14, 3, v2")
    a(f"v_sub_u32 v14, {2*(2044-256)}, v14")
    pk(56, vc, vb); pk(57, va, va); pk(58, vb, va); pk(59, va, vm)
    a(f"ds_write_b64 v14, v[56:57] offset:{KO}")
    a(f"ds_write_b64 v14, v[58:59] offset:{KE}")
    a("s_branch K2_CONV")
    a.label("K2_EXP2")
    a("v_lshlrev_b32 v14, 4, v2")
    a(f"v_sub_u32 v14, {2*(2040-512)}, v14")
    pk(56, vc, vc); pk(57, vb, vb); pk(58, vb, va); pk(59, va, va)
    pk(60, vc, vb); pk(61, vb, vb); pk(62, va, va); pk(63, va, va)
    a(f"ds_write_b128 v14, v[56:59] offset:{KO}")
    a(f"ds_write_b128 v14, v[60:63] offset:{KE}")
    a("s_branch K2_CONV")
    a.label("K2_EXP3")
    a("v_lshlrev_b32 v14, 5, v2")
    a(f"v_sub_u32 v14, {2*(2032-1024)}, v14")
    pat_o = [(vc, vc), (vc, vc), (vb, vb), (vb, vb), (vb, vb), (vb, va), (va, va), (va, va)]
    pat_e = [(vc, vc), (vc, vb), (vb, vb), (vb, vb), (vb, vb), (va, va), (va, va), (va, va)]
    for k, (lo, hi) in enumerate(pat_o + pat_e):
        pk(56 + k, lo, hi)
    a(f"ds_write_b128 v14, v[56:59] offset:{KO}")
    a(f"ds_write_b128 v14, v[60:63] offset:{KO+16}")
    a(f"ds_write_b128 v14, v[64:67] offset:{KE}")
    a(f"ds_write_b128 v14, v[68:71] offset:{KE+16}")
    a.label("K2_CONV")
    a("v_and_b32 v12, 1, v2")
    a("v_bfe_u32 v13, v2, 1, 3           ; i>>1 / n>>1")
    a("v_lshrrev_b32 v14, 4, v2          ; g")
    a("s_lshl_b32 s51, s22, 7            ; 64*2w")
    a(f"s_sub_u32 s52, {KE + 2*252 - 64}, s51")
    a(f"v_mul_u32_u24 v15, {KE-KO}, v12")
    a("v_sub_u32 v15, s52, v15")
    a("v_lshlrev_b32 v1, 3, v13")
    a("v_sub_u32 v15, v15, v1")
    a("v_lshl_add_u32 v15, v14, 4, v15   ; A addr")
    a(f"s_sub_u32 s52, {UB2 + 512 - 64}, s51")
    a(f"v_mul_u32_u24 v3, {UB2-UB0}, v12")
    a("v_sub_u32 v3, s52, v3")
    a("v_lshl_add_u32 v3, v13, 6, v3")
    a("v_lshl_add_u32 v3, v14, 4, v3     ; B addr")
    a("v_bfe_u32 v1, v2, 2, 1")
    a("v_lshl_add_u32 v1, v1, 1, v12")
    a("v_xor_b32 v1, v1, v14")
    a("v_lshlrev_b32 v1, 4, v1")
    a("v_lshl_add_u32 v1, v13, 6, v1")
    a("v_lshl_add_u32 v1, v12, 12, v1")
    a("s_lshl_b32 s52, s22, 13")
    a("v_add_u32 v1, s52, v1")
    a("s_waitcnt lgkmcnt(0)")
    a("s_barrier")
    ACC = 16
    fa = {}
    fb = {}
    nxt = 48
    for r in range(2):
        for k in range(8):
            if r == 1 and k >= 6:
                fa[(r, k)] = fa[(0, k - 2)]
                fb[(r, k)] = fb[(0, k - 2)]
            else:
                fa[(r, k)] = nxt
                fb[(r, k)] = nxt + 4
                nxt += 8
    groups = [(r, k) for r in range(2) for k in range(8)]

    def issue(gk):
        r, k = gk
        ro = 64 * (1 - r)
        a(f"ds_read_b64 {vr(fa[gk],2)}, v15 offset:{512*(7-k)+ro}")
        a(f"ds_read_b64 {vr(fa[gk]+2,2)}, v15 offset:{512*(7-k)+ro+8}")
        a(f"ds_read_b128 {vr(fb[gk],4)}, v3 offset:{512*k+ro}")

    PF = 4
    for gi in range(PF):
        issue(groups[gi])
    touched = set()
    for gi, (r, k) in enumerate(groups):
        later = min(len(groups), gi + PF) - gi - 1
        a(f"s_waitcnt lgkmcnt({3*later})")
        pairs = []
        for o in range(k + 1):
            if k + o <= 7:
                pairs.append((k, o))
                if o != k:
                    pairs.append((o, k))
        for pi, (q, c) in enumerate(pairs):
            t = q + c
            cin = vr(ACC + 4 * t, 4) if t in touched else "0"
            touched.add(t)
            a(f"v_mfma_f32_16x16x32_bf16 {vr(ACC+4*t,4)}, {vr(fa[(r,q)],4)}, {vr(fb[(r,c)],4)}, {cin}")
            if pi == 0 and gi + PF < len(groups):
                issue(groups[gi + PF])
    E = 48
    for k in range(4):
        a(f"v_dot2_f32_bf16 v{E+2*k}, v{8+k}, s44, 0       ; u*Dskip")
        a(f"v_dot2_f32_bf16 v{E+2*k+1}, v{8+k}, s27, 0")
    for k in range(4):
        a(f"v_lshlrev_b32 v{E+8+2*k}, 16, v{4+k}")
        a(f"v_and_b32 v{E+8+2*k+1}, 0xffff0000, v{4+k}")
    for c in range(8):
        a(f"ds_write_b128 v1, {vr(ACC+4*c,4)} offset:{512*c}")
    a("v_bfe_u32 v12, v0, 3, 1")
    a("v_lshlrev_b32 v12, 1, v12")
    a("v_xor_b32 v12, v12, v0")
    a("v_lshlrev_b32 v12, 4, v12         ; plane 0")
    a("v_xor_b32 v13, 16, v12")
    a("v_lshlrev_b32 v14, 4, v0")
    a("s_waitcnt lgkmcnt(0)")
    a("s_barrier")
    Y = 64
    for w in range(4):
        a(f"ds_read_b128 {vr(Y+8*w,4)}, v12 offset:{8192*w}")
        a(f"ds_read_b128 {vr(Y+8*w+4,4)}, v13 offset:{8192*w+4096}")
    for w in range(1, 4):
        a(f"s_waitcnt lgkmcnt({6-2*w})")
        for k in range(0, 8, 2):
            a(f"v_pk_add_f32 {vr(Y+k,2)}, {vr(Y+k,2)}, {vr(Y+8*w+k,2)}")
    ymap = [0, 1, 4, 5, 2, 3, 6, 7]
    Z = 72
    for j in range(8):
        a(f"v_cvt_pk_bf16_f32 v{Z+j}, v{Y+ymap[j]}, v{E+j}")
    for j in range(8):
        a(f"v_dot2_f32_bf16 v{Z+j}, v{Z+j}, s47, 0")
    for k in range(4):
        a(f"v_cvt_pk_bf16_f32 v{Y+k}, v{Z+2*k}, v{Z+2*k+1}")
    for k in range(4):
        a(f"v_dot2_f32_bf16 v{Z+2*k}, v{Y+k}, s45, v{E+8+2*k}")
        a(f"v_dot2_f32_bf16 v{Z+2*k+1}, v{Y+k}, s46, v{E+8+2*k+1}")
    for k in range(4):
        a(f"v_cvt_pk_bf16_f32 v{Y+k}, v{Z+2*k}, v{Z+2*k+1}")
    a(f"buffer_store_dwordx4 {vr(Y,4)}, v14, s[36:39], s25 offen")
    a("s_endpgm")
    a.label("K2_W1")
    a("v_lshrrev_b32 v1, 6, v0")
    a("s_lshl_b32 s3, s2, 2")
    a("v_readfirstlane_b32 s20, v1")
    a("s_add_u32 s3, s3, s20")
    a("s_cmp_ge_u32 s3, 240")
    a(f"s_load_dwordx4 s[40:43], s[0:1], {KA['wg']}")
    a(f"s_load_dwordx2 s[6:7], s[0:1], {KA['ws']}")
    a("s_cselect_b32 s22, 1, 0           ; mat")
    a("s_cselect_b32 s21, 240, 0")
    a("s_sub_u32 s3, s3, s21")
    a("s_mul_i32 s23, s3, 2731")
    a("s_lshr_b32 s23, s23, 16")
    a("s_mul_i32 s24, s23, 24")
    a("s_sub_u32 s24, s3, s24            ; cg")
    a(f"s_mul_i32 s25, s23, {64*3072}")
    a("s_lshl_b32 s26, s24, 7")
    a("s_add_u32 s25, s25, s26")
    a("v_and_b32 v1, 7, v0               ; c")
    a("v_bfe_u32 v2, v0, 3, 2            ; g")
    a("v_bfe_u32 v3, v0, 5, 1            ; hi")
    a("v_bfe_u32 v4, v0, 3, 3            ; 4hi+g")
    a(f"v_mul_u32_u24 v4, {8*3072}, v4")
    a("v_lshl_add_u32 v4, v1, 4, v4")
    a("v_lshlrev_b32 v5, 5, v1")
    a(f"s_mul_i32 s27, s22, {1536*4}")
    a("s_lshl_b32 s26, s24, 8")
    a("s_add_u32 s27, s27, s26")
    a("s_waitcnt lgkmcnt(0)")
    a("s_cmp_eq_u32 s22, 1")
    a("s_cselect_b64 s[4:5], s[42:43], s[40:41]")
    srd(a, 8, 4, 0, SZ_W)
    srd(a, 16, 6, CM, 3072 * 4)
    a("buffer_load_dwordx4 v[8:11], v5, s[16:19], s27 offen")
    a("buffer_load_dwordx4 v[12:15], v5, s[16:19], s27 offen offset:16")
    for j in range(8):
        a(f"buffer_load_dwordx4 {vr(16+4*j,4)}, v4, s[8:11], s25 offen offset:{3072*(j&1)}")
        if j & 1 and j < 7:
            a(f"s_add_u32 s25, s25, {2*3072}")
    srd(a, 12, 6, W1P, 2 * SZ_W)
    a("s_lshl_b32 s26, s24, 3")
    a("v_add_u32 v5, s26, v1             ; rt")
    a("v_mul_u32_u24 v6, 683, v5")
    a("v_lshrrev_b32 v6, 11, v6")
    a("v_mul_u32_u24 v7, 3, v6")
    a("v_sub_u32 v7, v5, v7              ; rl")
    a("v_mul_u32_u24 v6, 61440, v6")
    a("v_lshl_add_u32 v6, v7, 10, v6")
    a("v_mul_u32_u24 v7, 3072, v3")
    a("v_add_u32 v6, v6, v7")
    a("v_lshl_add_u32 v6, v2, 4, v6")
    a("s_mul_i32 s26, s23, 6144")
    a("s_lshl_b32 s27, s22, 7")
    a("s_add_u32 s26, s26, s27")
    a("s_mov_b32 s28, 0x3f80")
    a("s_mov_b32 s29, 0x3f800000")
    a("s_waitcnt vmcnt(0)")
    for dl in range(8):
        t = 48 + 8 * (dl & 1)
        o = 64 + 4 * dl
        for j in range(8):
            a(f"v_dot2_f32_bf16 v{t+j}, v{16+4*j+(dl>>1)}, s{28+(dl&1)}, v{8+dl}")
        for jp in range(4):
            a(f"v_cvt_pk_bf16_f32 v{o+jp}, v{t+2*jp}, v{t+2*jp+1}")
        a(f"buffer_store_dwordx4 {vr(o,4)}, v6, s[12:15], s26 offen offset:{256*(dl>>1)+64*(dl&1)}")
    a.label("K2_END")
    a("s_endpgm")
    return a


K3_GRID = 256
K3_LDS = 163840


def gen_k3():
    a = Asm()
    a(f"s_cmp_ge_u32 s2, {K3_GRID}")
    a("s_cbranch_scc1 K3_END")
    a(f"s_load_dwordx2 s[4:5], s[0:1], {KA['ws']}")
    a("v_lshrrev_b32 v160, 6, v0")
    a("v_and_b32 v161, 63, v0            ; lane")
    a("v_readfirstlane_b32 s3, v160      ; wave")
    a("s_and_b32 s20, s2, 1")
    a("s_lshl_b32 s20, s20, 3")
    a("s_bfe_u32 s21, s2, 0x30003")
    a("s_add_u32 s20, s20, s21           ; tb")
    a("s_bfe_u32 s21, s2, 0x20001")
    a("s_lshl_b32 s21, s21, 2")
    a("s_lshr_b32 s22, s2, 6")
    a("s_add_u32 s21, s21, s22           ; j")
    a("v_lshrrev_b32 v162, 4, v161")
    a("s_and_b32 s22, s3, 1")
    a("s_lshl_b32 s22, s22, 2")
    a("v_or_b32 v163, s22, v162")
    a("v_lshlrev_b32 v163, 1, v163")
    a("v_and_b32 v164, 15, v161")
    a("v_xor_b32 v163, v163, v164")
    a("v_lshlrev_b32 v163, 4, v163")
    a("s_lshl_b32 s22, s3, 3")
    a("v_add_u32 v168, s22, v162")
    a("v_lshl_add_u32 v168, v168, 12, v163")
    a("v_lshl_add_u32 v169, v164, 2, v162")
    a("v_lshlrev_b32 v169, 4, v169")
    a("s_lshl_b32 s23, s20, 8")
    a("s_lshl_b32 s24, s3, 11            ; m0")
    a("s_lshl_b32 s25, s21, 2")
    a("s_add_u32 s25, s25, s3")
    a("s_mul_i32 s25, s25, 61440")
    a("s_waitcnt lgkmcnt(0)")
    srd(a, 8, 4, HT, SZ_XT)
    srd(a, 12, 4, W1P, 2 * SZ_W)

    def loads(s):
        o = []
        for k in range(2):
            o.append(["s_mov_b32 m0, s24",
                      f"s_add_u32 s24, s24, {1024 if k == 0 else 7168}",
                      "buffer_load_dwordx4 v168, s[8:11], s23 offen lds",
                      f"s_add_u32 s23, s23, {16384 if k == 0 else 131072-16384}"])
        for r in range(3):
            x = [f"buffer_load_dwordx4 {ar(12*s+4*r,4)}, v169, s[12:15], s25 offen offset:{1024*r}"]
            if r == 2:
                x.append("s_add_u32 s25, s25, 3072")
            o.append(x)
        return o

    PD = 12
    for s in range(PD):
        for grp in loads(s):
            for t in grp:
                a(t)
    srd(a, 16, 4, HM, L * F * 2)
    srd(a, 28, 4, ST2, L * 64)
    a("v_bfe_u32 v164, v161, 2, 2        ; rr")
    a("v_lshl_add_u32 v165, v162, 3, v164")
    a("v_lshlrev_b32 v165, 8, v165")
    a("v_and_b32 v166, 3, v161")
    a("v_lshl_add_u32 v165, v166, 3, v165")
    a("v_and_b32 v166, 1, v162")
    a("v_lshl_add_u32 v166, v166, 2, v164")
    a("v_lshl_add_u32 v170, v166, 5, v165    ; ct=0")
    a("s_and_b32 s26, s21, 1")
    a("s_lshl_b32 s26, s26, 2")
    a("s_add_u32 s26, s26, s3            ; subset")
    a(f"s_mul_i32 s27, s26, {80*256}")
    a("s_lshr_b32 s32, s21, 1            ; cts")
    a("v_lshl_add_u32 v165, v162, 2, v164")
    a("v_lshlrev_b32 v165, 8, v165")
    a("v_lshrrev_b32 v166, 1, v162")
    a("v_lshl_add_u32 v166, v166, 2, v164")
    a("v_xor_b32 v166, s32, v166")
    a("v_lshl_add_u32 v165, v166, 5, v165")
    a("v_and_b32 v166, 3, v161")
    a("v_lshl_add_u32 v165, v166, 3, v165")
    a("v_add_u32 v171, s27, v165")
    a("v_mov_b32 v172, v161              ; lane")
    RA = 160
    for ct in range(8):
        a(f"v_xor_b32 v{RA+ct}, {32*ct}, v170")
    BF = 96

    def reads(s):
        o = []
        for ct in range(8):
            for h in range(2):
                o.append(f"ds_read_b64_tr_b16 {vr(BF+32*(s&1)+4*ct+2*h,2)}, v{RA+ct} offset:{8192*(s&7)+1024*h}")
        return o

    def bump():
        return [f"v_add_u32 v{RA+ct}, 0x10000, v{RA+ct}" for ct in range(8)]

    issued = PD
    a(f"s_waitcnt vmcnt({5*(issued-1)+3})")
    a("s_barrier")
    for t in reads(0):
        a(t)
    NS = 20
    for s in range(NS):
        if s + 1 < NS:
            a(f"s_waitcnt vmcnt({5*(issued-s-2)+3}) lgkmcnt(0)")
        else:
            a("s_waitcnt vmcnt(0) lgkmcnt(0)")
        a("s_barrier")
        fill = []
        if s + 1 < NS:
            if (s + 1) % 8 == 0:
                fill.append(bump())
            fill += [[t] for t in reads(s + 1)]
        if s == NS - 2:
            fill += [[f"ds_read_b64_tr_b16 {vr(174+2*b,2)}, v171 offset:{4096*b}"] for b in range(5)]
        if issued < NS:
            fill += loads(issued)
            issued += 1
        k = 0
        for ct in range(8):
            for r in range(3):
                acc = vr(12 * ct + 4 * r, 4)
                a(f"v_mfma_f32_16x16x32_bf16 {acc}, {ar(12*s+4*r,4)}, {vr(BF+32*(s&1)+4*ct,4)}, {'0' if s == 0 else acc}")
                if k < len(fill):
                    for t in fill[k]:
                        a(t)
                    k += 1
        assert k == len(fill)
    a("s_mov_b32 s33, 0x3f803f80")
    for k in range(10):
        a(f"v_dot2_f32_bf16 v184, v{174+k}, s33, {'0' if k == 0 else 'v184'}")
        a(f"v_dot2_f32_bf16 v185, v{174+k}, v{174+k}, {'0' if k == 0 else 'v185'}")
    a("v_lshlrev_b32 v160, 2, v172")
    for rl in range(3):
        a(f"s_mul_i32 s34, s3, 3")
        a(f"s_add_u32 s34, s34, {rl}")
        a("s_lshr_b32 s35, s34, 2")
        a("s_lshl_b32 s35, s35, 13")
        a("s_and_b32 s34, s34, 3")
        a("s_lshl_b32 s34, s34, 8")
        a("s_add_u32 s34, s34, s35")
        a(f"v_add_u32 v{161+rl}, s34, v160")
    a("v_permlane32_swap_b32 v184, v185")
    a("v_add_f32 v184, v184, v185")
    a("v_mov_b32 v185, v184")
    a("v_permlane16_swap_b32 v184, v185")
    a("v_add_f32 v184, v184, v185")
    a("v_and_b32 v164, 15, v172")
    a("v_lshlrev_b32 v164, 6, v164")
    a("v_lshrrev_b32 v165, 5, v172")
    a("v_lshl_add_u32 v164, v165, 2, v164")
    a("s_lshl_b32 s34, s20, 13")
    a("s_lshl_b32 s35, s32, 10")
    a("s_add_u32 s34, s34, s35")
    a("s_lshl_b32 s35, s26, 3")
    a("s_add_u32 s34, s34, s35")
    a("buffer_store_dword v184, v164, s[28:31], s34 offen")
    for ct in range(8):
        for r in range(3):
            b = 12 * ct + 4 * r
            a(f"v_max_f32 v{b}, 0, v{b}")
            a(f"v_max_f32 v{b+1}, 0, v{b+1}")
        for r in range(3):
            b = 12 * ct + 4 * r
            a(f"v_pk_mul_f32 {vr(b,2)}, {vr(b,2)}, {vr(b+2,2)}")
        for r in range(3):
            b = 12 * ct + 4 * r
            a(f"v_cvt_pk_bf16_f32 v{b}, v{b}, v{b+1}")
        for r in range(3):
            b = 12 * ct + 4 * r
            a(f"ds_write_b32 v{161+r}, v{b} offset:{1024*ct}")
    a("s_lshl_b32 s34, s3, 11")
    a("v_add_u32 v160, s34, v160")
    a("v_lshlrev_b32 v164, 4, v172")
    a("s_lshl_b32 s34, s20, 1")
    a("s_lshr_b32 s35, s3, 1")
    a("s_add_u32 s34, s34, s35")
    a("s_mul_i32 s34, s34, 196608")
    a("s_mul_i32 s35, s21, 12288")
    a("s_add_u32 s34, s34, s35")
    a("s_and_b32 s35, s3, 1")
    a("s_lshl_b32 s35, s35, 11")
    a("s_add_u32 s34, s34, s35")
    a("s_waitcnt lgkmcnt(0)")
    a("s_barrier")
    for ksl in range(3):
        for e in range(2):
            b = 96 + 8 * ksl + 4 * e
            o = 32 * ksl + 4 * e
            a(f"ds_read2st64_b32 {vr(b,2)}, v160 offset0:{o} offset1:{o+1}")
            a(f"ds_read2st64_b32 {vr(b+2,2)}, v160 offset0:{o+2} offset1:{o+3}")
    for ksl in range(3):
        for e in range(2):
            b = 96 + 8 * ksl + 4 * e
            a(f"s_waitcnt lgkmcnt({10-4*ksl-2*e})")
            a(f"buffer_store_dwordx4 {vr(b,4)}, v164, s[16:19], s34 offen offset:{1024*e}")
        if ksl < 2:
            a("s_add_u32 s34, s34, 4096")
    a.label("K3_END")
    a("s_endpgm")
    return a


K4_GRID = 256
K4_RES = 61440
K4_LDS = 61440 + 4 * 3072


def gen_k4():
    a = Asm()
    a(f"s_cmp_ge_u32 s2, {K4_GRID}")
    a("s_cbranch_scc1 K4_END")
    a(f"s_load_dwordx2 s[4:5], s[0:1], {KA['ws']}")
    a(f"s_load_dwordx2 s[6:7], s[0:1], {KA['out']}")
    V = 80
    a(f"v_lshrrev_b32 v{V}, 6, v0")
    a(f"v_and_b32 v{V+1}, 63, v0          ; lane")
    a(f"v_readfirstlane_b32 s3, v{V}      ; wave")
    a("s_and_b32 s20, s2, 3")
    a("s_lshl_b32 s20, s20, 3")
    a("s_bfe_u32 s21, s2, 0x30003")
    a("s_add_u32 s20, s20, s21           ; tb")
    a("s_bfe_u32 s21, s2, 0x10002")
    a("s_lshl_b32 s21, s21, 2")
    a("s_lshr_b32 s22, s2, 6")
    a("s_add_u32 s21, s21, s22           ; db")
    a(f"v_and_b32 v{V+2}, 15, v{V+1}       ; i / t")
    a(f"v_lshrrev_b32 v{V+3}, 4, v{V+1}    ; g")
    VA, VA2, VB = V + 4, V + 5, V + 6
    a(f"v_lshl_add_u32 v{VA}, v{V+2}, 2, v{V+3}")
    a(f"v_lshlrev_b32 v{VA}, 4, v{VA}")
    a(f"v_add_u32 v{VA2}, 4096, v{VA}")
    a(f"v_lshlrev_b32 v{V+10}, 4, v{V+1}   ; 16*lane")
    for c in range(4):
        a(f"s_add_u32 s22, s3, {c}")
        a("s_and_b32 s22, s22, 3")
        a("s_lshl_b32 s22, s22, 10")
        a(f"v_add_u32 v{VB+c}, s22, v{V+10}")
    a("s_mul_i32 s23, s21, 245760")
    a("s_mul_i32 s22, s3, 61440")
    a("s_add_u32 s23, s23, s22           ; A soffset")
    a("s_mul_i32 s24, s20, 196608")
    a("s_mul_i32 s22, s3, 49152")
    a("s_add_u32 s24, s24, s22           ; B soffset")
    a(f"v_lshrrev_b32 v{V+11}, 1, v{V+1}")
    a(f"v_lshlrev_b32 v{V+11}, 12, v{V+11}")
    a(f"v_and_b32 v{V+12}, 1, v{V+1}")
    a(f"v_lshl_add_u32 v{V+11}, v{V+12}, 4, v{V+11}")
    a(f"s_mul_i32 s25, s21, {80*4096}")
    a("s_lshl_b32 s22, s20, 7")
    a("s_add_u32 s25, s25, s22")
    a("s_lshl_b32 s22, s3, 5")
    a("s_add_u32 s25, s25, s22")
    a("s_mul_i32 s26, s3, 3072")
    a(f"s_add_u32 s26, s26, {K4_RES}")
    a(f"v_lshlrev_b32 v{V+12}, 6, v{V+2}")
    a(f"v_lshl_add_u32 v{V+12}, v{V+3}, 4, v{V+12}")
    a("s_lshl_b32 s27, s20, 12")
    a("s_lshl_b32 s22, s3, 10")
    a("s_add_u32 s27, s27, s22")
    a("s_waitcnt lgkmcnt(0)")
    srd(a, 8, 4, W2P, SZ_W)
    srd(a, 12, 4, HM, L * F * 2)
    RING = 7

    def loads(s):
        b = 36 * (s % RING)
        o = []
        for r in range(5):
            if r < 4:
                o.append([f"buffer_load_dwordx4 {ar(b+4*r,4)}, v{VA}, s[8:11], s23 offen offset:{1024*r}"])
            else:
                o.append([f"buffer_load_dwordx4 {ar(b+4*r,4)}, v{VA2}, s[8:11], s23 offen", "s_add_u32 s23, s23, 5120"])
        for c in range(4):
            x = [f"buffer_load_dwordx4 {ar(b+20+4*c,4)}, v{VB+c}, s[12:15], s24 offen"]
            if c == 3:
                x.append("s_add_u32 s24, s24, 4096")
            o.append(x)
        return o

    PD = 6
    for s in range(PD):
        for g in loads(s):
            for t in g:
                a(t)
    srd(a, 16, 4, HT, SZ_XT)
    srd(a, 28, 4, ST2, L * 64)
    srd(a, 32, 6, 0, SZ_XT)
    for k in range(3):
        a("s_mov_b32 m0, s26")
        a("s_add_u32 s26, s26, 1024")
        a(f"buffer_load_dwordx4 v{V+11}, s[16:19], s25 offen lds")
        a(f"s_add_u32 s25, s25, {32*4096}")
    ST = V + 16
    a(f"buffer_load_dwordx4 {vr(ST,4)}, v{V+12}, s[28:31], s27 offen")
    extra = 4
    issued = PD
    NS = 12
    for s in range(NS):
        n = 9 * (issued - s - 1) + (extra if s < PD else 0)
        a(f"s_waitcnt vmcnt({n})")
        fill = []
        if issued < NS:
            fill = loads(issued)
            issued += 1
        b = 36 * (s % RING)
        k = 0
        for c in range(4):
            for r in range(5):
                acc = vr(20 * c + 4 * r, 4)
                a(f"v_mfma_f32_16x16x32_bf16 {acc}, {ar(b+4*r,4)}, {ar(b+20+4*c,4)}, {'0' if s == 0 else acc}")
                if k < len(fill):
                    for t in fill[k]:
                        a(t)
                    k += 1
        if s == PD:
            a(f"v_add_f32 v{ST}, v{ST}, v{ST+2}")
            a(f"v_add_f32 v{ST+1}, v{ST+1}, v{ST+3}")
            for sw in ("v_permlane32_swap_b32", "v_permlane16_swap_b32"):
                a(f"v_mov_b32 v{ST+2}, v{ST}")
                a(f"v_mov_b32 v{ST+3}, v{ST+1}")
                a(f"{sw} v{ST}, v{ST+2}")
                a(f"{sw} v{ST+1}, v{ST+3}")
                a(f"v_add_f32 v{ST}, v{ST}, v{ST+2}")
                a(f"v_add_f32 v{ST+1}, v{ST+1}, v{ST+3}")
            ln_finish(a, ST, ST + 1, ST + 2, ST + 3)
            a(f"v_rcp_f32 v{ST}, v{ST+1}")
            a(f"v_mul_f32 v{ST}, v{ST}, v{ST}   ; 1/den^2")
            a(f"v_bfe_u32 v{V+11}, v{V+1}, 2, 2   ; rr")
            a(f"v_and_b32 v{V+12}, 3, v{V+1}")
            a(f"v_lshlrev_b32 v{V+12}, 3, v{V+12}")
            a(f"v_lshl_add_u32 v{V+12}, v{V+11}, 5, v{V+12}")
            a("s_mul_i32 s26, s3, 3072")
            a(f"s_add_u32 s26, s26, {K4_RES}")
            a(f"v_add_u32 v{V+12}, s26, v{V+12}")
            a(f"v_lshl_add_u32 v{V+11}, v{V+3}, 8, v{V+12}")
            a(f"v_lshl_add_u32 v{V+12}, v{V+3}, 7, v{V+12}")
            HR = V + 20
            for r in range(4):
                a(f"ds_read_b64_tr_b16 {vr(HR+2*r,2)}, v{V+11} offset:{1024*(r>>1)+128*(r&1)}")
            a(f"ds_read_b64_tr_b16 {vr(HR+8,2)}, v{V+12} offset:2048")
        if s == PD + 1:
            a("s_waitcnt lgkmcnt(0)")
            HX = V + 30
            for k2 in range(10):
                a(f"v_lshlrev_b32 v{HX+2*k2}, 16, v{HR+k2}")
                a(f"v_and_b32 v{HX+2*k2+1}, 0xffff0000, v{HR+k2}")
            for c in range(1, 4):
                a(f"s_add_u32 s22, s3, {c}")
                a("s_and_b32 s22, s22, 3")
                a("s_mul_i32 s22, s22, 15360")
                a(f"s_add_u32 s22, s22, {(c-1)*5120}")
                a(f"v_add_u32 v{V+12+c}, s22, v{V+10}")
            a("s_mul_i32 s22, s3, 15360")
            a(f"v_add_u32 v{V+12}, s22, v{V+10}")
            a(f"v_mul_u32_u24 v{V+11}, 1280, v{V+2}")
            a(f"v_lshl_add_u32 v{V}, v{V+3}, 3, v{V+11}")
            a(f"v_lshl_add_u32 v{V+11}, v{V+3}, 4, v{V+11}")
            a("s_lshl_b32 s25, s20, 2")
            a("s_add_u32 s25, s25, s3")
            a(f"s_mul_i32 s25, s25, {16*1280}")
            a("s_mul_i32 s22, s21, 160")
            a("s_add_u32 s25, s25, s22")
            a("s_mov_b32 s36, 0x3f80")
            a("s_mov_b32 s37, 0x3f800000")
    for c in range(1, 4):
        for r in range(5):
            a(f"ds_write_b128 v{V+12+c}, {vr(20*c+4*r,4)} offset:{1024*r}")
    a("s_waitcnt lgkmcnt(0)")
    a("s_barrier")
    for c in range(3):
        for r in range(5):
            a(f"ds_read_b128 {vr(20+20*c+4*r,4)}, v{V+12} offset:{5120*c+1024*r}")
    for c in range(3):
        a(f"s_waitcnt lgkmcnt({10-5*c})")
        for k2 in range(10):
            a(f"v_pk_add_f32 {vr(2*k2,2)}, {vr(2*k2,2)}, {vr(20+20*c+2*k2,2)}")
    for k2 in range(10):
        a(f"v_pk_mul_f32 {vr(2*k2,2)}, {vr(2*k2,2)}, {vr(ST,2)} op_sel:[0,0] op_sel_hi:[1,0]")
    for k2 in range(10):
        a(f"v_cvt_pk_bf16_f32 v{20+k2}, v{2*k2}, v{2*k2+1}")
    for k2 in range(10):
        a(f"v_dot2_f32_bf16 v{2*k2}, v{20+k2}, s36, v{HX+2*k2}")
        a(f"v_dot2_f32_bf16 v{2*k2+1}, v{20+k2}, s37, v{HX+2*k2+1}")
    for k2 in range(10):
        a(f"v_cvt_pk_bf16_f32 v{20+k2}, v{2*k2}, v{2*k2+1}")
    a(f"buffer_store_dwordx4 v[20:23], v{V+11}, s[32:35], s25 offen")
    a(f"buffer_store_dwordx4 v[24:27], v{V+11}, s[32:35], s25 offen offset:64")
    a(f"buffer_store_dwordx2 v[28:29], v{V}, s[32:35], s25 offen offset:128")
    a.label("K4_END")
    a("s_endpgm")
    return a


def main(path):
    ks = [("s4k1_kernel", gen_k1(), K1_GRID, K1_LDS), ("s4k2_kernel", gen_k2(), K2_GRID, K2_LDS),
          ("s4k3_kernel", gen_k3(), K3_GRID, K3_LDS), ("s4k4_kernel", gen_k4(), K4_GRID, K4_LDS)]
    ref = open("sequential_preLN__ssm_conv_s4__glu_gated_reglu__prompt.s.ref").read().split("\n")
    head = [l for l in ref if l.startswith(";") and "@launch" not in l and "Override" not in l and "grid=ceil" not in l]
    out = head[:]
    for n, _, g, l in ks:
        out.append(f"; @launch kernel={n} grid=({g},1,1) block=(256,1,1) lds={l}")
    out.append('.amdgcn_target "amdgcn-amd-amdhsa--gfx950"')
    out.append(".text")
    descs = []
    for n, a, g, l in ks:
        b, d, e = kernel_text(n, a)
        out.append(b)
        descs.append(d)
    out.append('.section .rodata,"a"')
    out += descs
    open(path, "w").write("\n".join(out))


if __name__ == "__main__":
    main(sys.argv[1] if len(sys.argv) > 1 else "sequential_preLN__ssm_conv_s4__glu_gated_reglu__prompt.s")
```

```python
import re

TRANS = ("v_exp_f32", "v_log_f32", "v_rcp_f32", "v_rsq_f32", "v_sqrt_f32", "v_sin_f32", "v_cos_f32",
         "v_rcp_iflag_f32")

_reg_re = re.compile(r"^-?\|?(?:abs\()?([vas])(?:(\d+)|\[(\d+):(\d+)\])\)?\|?$")


def regs_of(tok):
    tok = tok.strip()
    if tok in ("vcc",):
        return {("s", 106), ("s", 107)}
    if tok == "vcc_lo":
        return {("s", 106)}
    if tok == "vcc_hi":
        return {("s", 107)}
    if tok == "exec":
        return {("s", 126), ("s", 127)}
    if tok == "exec_lo":
        return {("s", 126)}
    if tok == "exec_hi":
        return {("s", 127)}
    if tok == "m0":
        return {("s", 124)}
    m = _reg_re.match(tok)
    if not m:
        return set()
    k = m.group(1)
    if m.group(2) is not None:
        return {(k, int(m.group(2)))}
    return {(k, i) for i in range(int(m.group(3)), int(m.group(4)) + 1)}


def split_ops(s):
    out, depth, cur = [], 0, ""
    for ch in s:
        if ch in "[(":
            depth += 1
        if ch in "])":
            depth -= 1
        if ch == "," and depth == 0:
            out.append(cur.strip())
            cur = ""
        else:
            cur += ch
    if cur.strip():
        out.append(cur.strip())
    return out


class Ins:
    def __init__(self, text):
        self.text = text
        code = text.split(";")[0].strip()
        self.label = None
        self.op = None
        self.kind = "other"
        self.w = set()
        self.r = set()
        self.ws = 1
        self.target = None
        self.mods = ""
        self.tok = set(("t", x) for x in re.findall(r"@def:(\w+)", text))
        if not code:
            self.kind = "comment"
            self.ws = 0
            u = re.findall(r"@use:(\w+)", text)
            if u:
                self.kind = "use"
                self.r = set(("t", x) for x in u)
            return
        if code.endswith(":"):
            self.label = code[:-1]
            self.kind = "label"
            self.ws = 0
            return
        if code.startswith("."):
            self.kind = "directive"
            self.ws = 0
            return
        parts = code.split(None, 1)
        op = parts[0]
        self.op = op
        rest = parts[1] if len(parts) > 1 else ""
        ops = split_ops(rest)
        if ops:
            lp = ops[-1].split()
            ops[-1] = lp[0]
            self.mods = " ".join(lp[1:])
        self.ops = ops
        R = lambda i: regs_of(ops[i]) if i < len(ops) else set()
        allr = lambda a: set().union(*[regs_of(o) for o in ops[a:]]) if len(ops) > a else set()
        base = re.sub(r"_(e32|e64|dpp|sdwa)$", "", op)
        self.base = base
        if op == "s_nop":
            self.kind = "nop"
            self.ws = int(ops[0], 0) + 1
        elif op.startswith("s_waitcnt"):
            self.kind = "wait"
            self.vm = self.lgkm = None
            m = re.search(r"vmcnt\((\d+)\)", code)
            if m:
                self.vm = int(m.group(1))
            m = re.search(r"lgkmcnt\((\d+)\)", code)
            if m:
                self.lgkm = int(m.group(1))
        elif op in ("s_branch",) or op.startswith("s_cbranch"):
            self.kind = "branch"
            self.target = ops[0]
        elif op == "s_endpgm":
            self.kind = "end"
        elif op.startswith("s_load") or op.startswith("s_buffer_load") or op in ("s_memtime", "s_memrealtime"):
            self.kind = "smem"
            self.w = R(0)
            self.r = allr(1)
        elif op.startswith("s_atomic"):
            self.kind = "smem"
            self.w = R(0)
            self.r = allr(0)
        elif op.startswith("s_cmp") or op.startswith("s_bitcmp") or op in ("s_barrier", "s_setprio", "s_sleep"):
            self.kind = "salu"
            self.r = allr(0)
        elif op.startswith("s_"):
            self.kind = "salu"
            self.w = R(0)
            self.r = allr(1)
            if "saveexec" in op:
                self.w |= regs_of("exec")
                self.r |= regs_of("exec")
            if op in ("s_addk_i32", "s_mulk_i32"):
                self.r |= R(0)
        elif op.startswith("v_mfma"):
            self.kind = "mfma"
            self.w = R(0)
            self.a = R(1)
            self.b = R(2)
            self.c = R(3)
            self.r = self.a | self.b | self.c
            self.passes = 8 if "32x32x16" in op else 4 if "16x16x32" in op else None
            assert self.passes, op
        elif op.startswith("v_"):
            self.kind = "valu"
            if base.startswith("v_cmpx"):
                self.w = R(0) | regs_of("exec")
                self.r = allr(1)
            elif base in ("v_add_co_u32", "v_sub_co_u32", "v_addc_co_u32", "v_subb_co_u32", "v_mad_u64_u32"):
                self.w = R(0) | R(1)
                self.r = allr(2)
            elif base.startswith("v_permlane") and "swap" in base:
                self.w = R(0) | R(1)
                self.r = R(0) | R(1)
            else:
                self.w = R(0)
                self.r = allr(1)
                if base in ("v_fmac_f32", "v_dot2c_f32_bf16", "v_writelane_b32", "v_pk_fmac_f16"):
                    self.r |= R(0)
                if "dpp" in op or "row_" in self.mods or "quad_perm" in self.mods or "wave_" in self.mods:
                    self.r |= R(0)
            self.trans = base in TRANS
            self.dot = base.startswith("v_dot")
            self.dpp = ("dpp" in op) or any(k in self.mods for k in ("row_", "quad_perm", "wave_"))
            self.rdlane = base in ("v_readlane_b32", "v_readfirstlane_b32")
            self.perml = base.startswith("v_permlane")
        elif op.startswith("buffer_") or op.startswith("global_"):
            self.kind = "vmem"
            self.lds = " lds" in (" " + self.mods) or "_lds_" in op
            self.store = "store" in op or ("atomic" in op)
            self.data = set()
            if op in ("buffer_wbl2", "buffer_inv"):
                self.store = True
            elif self.lds:
                self.r = allr(0) | regs_of("m0")
            elif op.startswith("buffer_"):
                if self.store:
                    self.r = allr(0)
                    self.data = R(0)
                    if "atomic" in op and "sc0" in self.mods:
                        self.w = R(0)
                else:
                    self.w = R(0)
                    self.r = allr(1)
                    if "d16" in op:
                        self.r |= R(0)
            else:
                if "store" in op:
                    self.r = allr(0)
                    self.data = R(1)
                elif "atomic" in op:
                    if "sc0" in self.mods:
                        self.w = R(0)
                        self.r = allr(1)
                    else:
                        self.r = allr(0)
                else:
                    self.w = R(0)
                    self.r = allr(1)
            self.wide = self.store and len(self.data) >= 3
        elif op.startswith("ds_"):
            self.kind = "ds"
            if op.startswith("ds_read") or op.startswith("ds_swizzle") or op.startswith("ds_bpermute") or "_rtn" in op:
                self.w = R(0)
                self.r = allr(1)
            else:
                self.r = allr(0)
        else:
            raise ValueError("unknown instruction: " + text)


def _vg(s):
    return {x for x in s if x[0] in "va"}


def _sg(s):
    return {x for x in s if x[0] == "s"}


EXEC = regs_of("exec")
M0 = regs_of("m0")


def need(p, c):
    n = 0
    if p.kind == "valu":
        wv = _vg(p.w)
        wsg = _sg(p.w)
        if c.kind == "mfma" and wv & c.r:
            n = max(n, 3 if p.dot else 2)
        if c.kind == "valu":
            if p.trans and wv & c.r:
                n = max(n, 1)
            if wv & c.r and c.rdlane:
                n = max(n, 1)
            if wv & c.r and (c.dpp or c.perml):
                n = max(n, 2)
            if p.dot:
                if c.base == p.base:
                    srcab = set().union(*[regs_of(o) for o in c.ops[1:3]])
                    if wv & srcab:
                        n = max(n, 3)
                elif wv & (c.r | c.w):
                    n = max(n, 3)
            if wsg & c.r:
                n = max(n, 4 if c.base in ("v_readlane_b32", "v_writelane_b32") else 2)
            if wsg & EXEC:
                if c.dpp:
                    n = max(n, 5)
                if c.rdlane or c.perml or c.base == "v_writelane_b32":
                    n = max(n, 4)
        if c.kind in ("vmem", "ds"):
            if (p.trans or p.dot) and wv & c.r:
                n = max(n, 3 if p.dot else 1)
        if c.kind == "vmem" and wsg & c.r:
            n = max(n, 5)
        if c.kind == "mfma" and wsg & EXEC:
            n = max(n, 4)
        if c.kind in ("salu", "smem") and wsg & c.r:
            n = max(n, 1)
    if p.kind == "mfma":
        big = p.passes == 8
        if c.kind == "mfma":
            if p.w & c.c and not (p.w == c.c and p.passes == c.passes):
                n = max(n, 10 if big else 6)
            if p.w & (c.a | c.b):
                n = max(n, 12 if big else 8)
            if p.w & c.w and not (p.w == c.c and p.passes == c.passes):
                n = max(n, 10 if big else 6)
        elif c.kind in ("valu", "vmem", "ds"):
            if p.w & (c.r | c.w):
                n = max(n, 12 if big else 8)
            if c.kind == "valu" and p.c & c.w:
                n = max(n, 7 if big else 3)
    if p.kind == "salu" and p.w & M0 and c.kind == "vmem" and getattr(c, "lds", False):
        n = max(n, 1)
    if p.kind == "vmem" and getattr(p, "wide", False) and p.data & c.w:
        n = max(n, 2 if c.kind == "valu" else 1)
    return n


def _can_e64(i):
    if i.base in ("v_readfirstlane_b32", "v_fmac_f32", "v_dot2c_f32_bf16", "v_accvgpr_mov_b32") or i.perml or i.dpp:
        return False
    if i.op.endswith("_e64") or "sdwa" in i.op:
        return False
    return True


def asm_sizes(text):
    import subprocess, tempfile, os
    d = tempfile.mkdtemp()
    p = os.path.join(d, "t.s")
    open(p, "w").write('.amdgcn_target "amdgcn-amd-amdhsa--gfx950"\n.text\n' + text + "\n")
    r = subprocess.run(["clang", "-x", "assembler", "-target", "amdgcn-amd-amdhsa", "-mcpu=gfx950", "-c", p, "-o", p + ".o"],
                       capture_output=True, text=True)
    if r.returncode:
        raise RuntimeError(r.stderr[:3000])
    o = subprocess.run(["llvm-objdump", "-d", "--mcpu=gfx950", p + ".o"], capture_output=True, text=True).stdout
    sizes = []
    for line in o.split("\n"):
        m = re.search(r"//\s*[0-9A-F]{12}:((?:\s[0-9A-F]{8})+)", line)
        if m:
            sizes.append(4 * len(m.group(1).split()))
    return sizes


class Asm:
    def __init__(self):
        self.ins = []

    def __call__(self, text):
        for line in text.split("\n"):
            line = line.strip()
            if line:
                self.ins.append(Ins(line))

    def label(self, name):
        self.ins.append(Ins(name + ":"))

    def fix_hazards(self):
        out = []
        ins = self.ins
        labels_src = {}
        for i in ins:
            if i.kind == "branch":
                labels_src.setdefault(i.target, []).append(i)
        work = list(ins)
        idx = 0
        pos = {id(x): k for k, x in enumerate(work)}
        ninserted = 0

        def deficit(k, c, dist, seen):
            worst = 0
            while k >= 0 and dist < 20:
                p = work[k]
                if p.kind == "label":
                    for b in labels_src.get(p.label, []):
                        key = (id(b), dist)
                        if key not in seen:
                            seen.add(key)
                            worst = max(worst, deficit(pos[id(b)], c, dist, seen | {"viabranch"}))
                    k -= 1
                    continue
                if p.kind == "end" or (p.kind == "branch" and p.op == "s_branch" and "viabranch" not in seen):
                    break
                seen = seen - {"viabranch"}
                if p.ws:
                    worst = max(worst, need(p, c) - dist)
                dist += p.ws
                k -= 1
            return worst

        while idx < len(work):
            c = work[idx]
            if c.kind in ("valu", "mfma", "vmem", "ds", "salu", "smem"):
                d = deficit(idx - 1, c, 0, set())
                if d > 0:
                    while d > 0:
                        n = min(d, 16)
                        work.insert(idx, Ins("s_nop %d ; hz" % (n - 1)))
                        idx += 1
                        d -= n
                        ninserted += 1
                    pos = {id(x): k for k, x in enumerate(work)}
            idx += 1
        self.ins = work
        return ninserted

    def auto_waits(self):
        def merge(x, y):
            if x is None:
                return y
            if y is None:
                return x
            o = {}
            for c in ("vm", "lg"):
                d = {}
                for regs, age, sm in x[c] + y[c]:
                    k = (regs, sm)
                    d[k] = min(d.get(k, age), age)
                o[c] = [[k[0], v, k[1]] for k, v in d.items()]
            return o

        def copy(x):
            return {c: [list(e) for e in x[c]] for c in x}

        def apply_wait(st, vm, lg):
            if vm is not None:
                st["vm"] = [e for e in st["vm"] if e[1] < vm]
            if lg is not None:
                st["lg"] = [e for e in st["lg"] if (e[2] and lg > 0) or (not e[2] and e[1] < lg)]

        out = []
        st = {"vm": [], "lg": []}
        saved = {}
        seen_labels = {}
        n = 0
        for i in self.ins:
            if i.kind == "label":
                st = merge(st, saved.get(i.label))
                if st is None:
                    st = {"vm": [], "lg": []}
                seen_labels[i.label] = copy(st)
                out.append(i)
                continue
            if i.kind == "comment" and "@clearvm" in i.text and st is not None:
                st["vm"] = [e for e in st["vm"] if all(x[0] == "t" for x in e[0])]
            if i.kind in ("comment", "directive", "nop"):
                out.append(i)
                continue
            if st is None:
                st = {"vm": [], "lg": []}
            if i.kind == "wait":
                apply_wait(st, i.vm, i.lgkm)
                out.append(i)
                continue
            if i.kind == "branch":
                if i.target in seen_labels:
                    head = seen_labels[i.target]
                    for c in ("vm", "lg"):
                        hd = {(e[0], e[2]): e[1] for e in head[c]}
                        for regs, age, sm in st[c]:
                            if any(x[0] != "t" for x in regs) and ((regs, sm) not in hd or hd[(regs, sm)] > age):
                                raise ValueError("pending load on back edge to %s: %s" % (i.target, sorted(regs)[:4]))
                else:
                    saved[i.target] = merge(saved.get(i.target), copy(st))
                out.append(i)
                if i.op == "s_branch":
                    st = None
                continue
            if i.kind == "end":
                out.append(i)
                st = None
                continue
            touch = i.r | i.w
            wv = wl = None
            for regs, age, sm in st["vm"]:
                if regs & touch and not (i.kind == "vmem" and not (regs & i.r)):
                    wv = age if wv is None else min(wv, age)
            for regs, age, sm in st["lg"]:
                if regs & touch and not (i.kind == "ds" and not sm and not (regs & i.r)):
                    a_ = 0 if sm else age
                    wl = a_ if wl is None else min(wl, a_)
            if wv is not None or wl is not None:
                t = "s_waitcnt"
                if wv is not None:
                    wv = min(wv, 63)
                    t += " vmcnt(%d)" % wv
                if wl is not None:
                    wl = min(wl, 15)
                    t += " lgkmcnt(%d)" % wl
                out.append(Ins(t + " ; auto"))
                apply_wait(st, wv, wl)
                n += 1
            if i.kind == "vmem":
                for e in st["vm"]:
                    e[1] += 1
                if i.w or i.tok:
                    st["vm"].append([frozenset(i.w | i.tok), 0, False])
            elif i.kind == "ds":
                for e in st["lg"]:
                    e[1] += 1
                if i.w or i.tok:
                    st["lg"].append([frozenset(i.w | i.tok), 0, False])
            elif i.kind == "smem" and "; stamp" not in i.text:
                st["lg"].append([frozenset(i.w), 0, True])
            out.append(i)
        self.ins = out
        return n

    def align8(self, sizes, minrun=2):
        real = [i for i in self.ins if i.kind not in ("label", "comment", "directive", "use")]
        assert len(real) == len(sizes), (len(real), len(sizes))
        for i, z in zip(real, sizes):
            i.size = z
        out = []
        off = 0
        nfix = nnop = 0
        ins = self.ins
        for k, i in enumerate(ins):
            if i.kind in ("label", "comment", "directive", "use"):
                out.append(i)
                continue
            if i.size == 4 and off % 8 == 0:
                run = 0
                for j in ins[k + 1:]:
                    if j.kind in ("label", "comment", "directive", "use"):
                        continue
                    if j.size != 8:
                        break
                    run += 1
                if run >= 1 and i.kind == "valu" and _can_e64(i):
                    parts = i.text.split(None, 1)
                    ni = Ins(re.sub(r"_e32$", "", parts[0]) + "_e64 " + parts[1])
                    ni.size = 8
                    out.append(ni)
                    off += 8
                    nfix += 1
                    continue
                if run >= minrun and i.kind not in ("end",) and not (i.kind == "branch" and i.op == "s_branch"):
                    if i.kind == "branch":
                        ni = Ins("s_nop 0 ; al")
                        ni.size = 4
                        out.append(ni)
                        out.append(i)
                    else:
                        out.append(i)
                        ni = Ins("s_nop 0 ; al")
                        ni.size = 4
                        out.append(ni)
                    off += 8
                    nnop += 1
                    continue
                if run >= 1 and (i.kind == "end" or (i.kind == "branch" and i.op == "s_branch")):
                    out.append(i)
                    ni = Ins("s_nop 0")
                    ni.size = 4
                    out.append(ni)
                    off += 8
                    continue
            out.append(i)
            off += i.size
        self.ins = out
        return nfix, nnop, off

    def check_waits(self):
        vm = []
        lg = []
        errs = []
        for i in self.ins:
            if i.kind == "end" or (i.kind == "branch" and i.op == "s_branch"):
                vm, lg = [], []
                continue
            if i.kind == "wait":
                if i.vm is not None:
                    while len(vm) > i.vm:
                        vm.pop(0)
                if i.lgkm is not None:
                    if any(x.kind == "smem" for x in lg):
                        if i.lgkm == 0:
                            lg = []
                    else:
                        while len(lg) > i.lgkm:
                            lg.pop(0)
                continue
            if i.kind in ("label", "comment", "directive", "nop"):
                continue
            touch = i.r | i.w
            for q in vm + lg:
                if q.w & touch:
                    if q.kind == i.kind and q.kind in ("vmem", "ds") and not (q.w & i.r):
                        continue
                    errs.append("pending load '%s' touched by '%s'" % (q.text, i.text))
            if i.kind == "vmem":
                vm.append(i)
                if len(vm) > 63:
                    vm.pop(0)
            elif i.kind in ("ds", "smem"):
                lg.append(i)
        return errs

    def maxregs(self):
        mv = ma = ms = -1
        for i in self.ins:
            for k, n in (i.r | i.w):
                if k == "v":
                    mv = max(mv, n)
                elif k == "a":
                    ma = max(ma, n)
                elif k == "s" and n < 102:
                    ms = max(ms, n)
        return mv + 1, ma + 1, ms + 1

    def text(self):
        o = []
        for i in self.ins:
            if i.kind == "label":
                o.append(i.text)
            else:
                o.append("    " + i.text)
        return "\n".join(o)


def kernel_text(name, asm, verbose=True, auto=False, align=False):
    if auto:
        nw = asm.auto_waits()
        if verbose:
            print("%s: %d waits inserted" % (name, nw))
    n = asm.fix_hazards()
    if align:
        r = asm.align8(asm_sizes(asm.text()))
        if verbose:
            print("%s: align: %d promoted, %d nops, %d bytes" % ((name,) + r))
    errs = [] if auto else asm.check_waits()
    for e in errs:
        print("WAITCHECK[%s]: %s" % (name, e))
    v, a, s = asm.maxregs()
    acc = max(4, (v + 3) // 4 * 4)
    nfv = acc + a if a else v
    if verbose:
        print("%s: %d instr, %d nops inserted, vgpr %d agpr %d sgpr %d" % (name, len(asm.ins), n, v, a, s))
    body = """.globl {n}
.p2align 8
.type {n},@function
{n}:
{b}
""".format(n=name, b=asm.text())
    desc = """.p2align 6
.amdhsa_kernel {n}
  .amdhsa_next_free_vgpr {nfv}
  .amdhsa_next_free_sgpr {s}
  .amdhsa_accum_offset {acc}
  .amdhsa_group_segment_fixed_size 0
  .amdhsa_kernarg_size 128
  .amdhsa_user_sgpr_count 2
  .amdhsa_user_sgpr_kernarg_segment_ptr 1
  .amdhsa_system_sgpr_workgroup_id_x 1
.end_amdhsa_kernel
""".format(n=name, nfv=nfv, s=max(s, 16), acc=acc)
    return body, desc, errs
```

```python
import os
import sys
import struct
from asmgen import Asm, kernel_text

NAME = "sequential_preLN__ssm_conv_s4__glu_gated_reglu__prompt"
L, D, N, F = 2048, 640, 192, 1536
PROF = bool(os.environ.get("PROF", ""))
PROFBASE = 0x2000000

GEN, FW, FH, FM, S1, ST2 = 0x0, 0x1000, 0x10000, 0x40000, 0x60000, 0x80000
CSP = 0xC0000
XR, HT, W1P, W2P, HM, WS_END = 0x100000, 0x500000, 0x800000, 0xC00000, 0xE00000, 0x1400000
SZ_X = D * L * 2
SZ_W = D * F * 2
TAB, TABS = 0, 2816
STG, STGS = 25600, 15232
XQ = 88832
W1S = 101376
W2S = 117760
R0B, R1B = 0, 25600
BSB = 58368
CHB, CHS = 83200, 18944
C_U0, C_U2, C_KO, C_KE = 0, 5152, 10304, 14528
R2B = CHB
HALF = 81920
SPIN = 200000

sWG, sW = 2, 3
sX, sPAR, sLDT, sDSK, sWGP, sWUP, sWDP, sOUT, sWS = 4, 6, 18, 20, 24, 26, 28, 30, 34
RWS, RX, RW, RWD, ROUT = 36, 40, 44, 48, 52
sTAG = 56
sP, sE, sCH0, sCH1 = 57, 58, 59, 60
sTB, sJ = 61, 62
sLO, sHI, sONE = 63, 64, 65
sD0 = 22
DSEL = [(22, 23), (66, 67), (68, 69)]
sT = 70
vLANE, vL16, vFLAG, vTAGV, vW1 = 240, 241, 242, 243, 244
BIG = 0x7FFFFFF0


def f2u(x):
    return struct.unpack("<I", struct.pack("<f", x))[0]


def vr(b, n):
    return f"v[{b}:{b+n-1}]"


def ar(b, n):
    return f"a[{b}:{b+n-1}]"


def sr(b, n=4):
    return f"s[{b}:{b+n-1}]"


class Lst(list):
    def __call__(self, t):
        self.append(t)


PSEL = [x for x in os.environ.get("PROF", "").split(",") if x]
assert len(PSEL) <= 8


def stamp(a, name):
    if name in PSEL:
        k = PSEL.index(name)
        a(f"s_memtime s[{84+2*k}:{85+2*k}] ; stamp")


def srd(a, s, base, size):
    a(f"s_mov_b32 s{s}, s{base}")
    a(f"s_mov_b32 s{s+1}, s{base+1}")
    a(f"s_mov_b32 s{s+2}, {size:#x}")
    a(f"s_mov_b32 s{s+3}, 0x20000")


def interleave(a, main, fill, start=0, per=1, every=1):
    k = 0
    for i, m in enumerate(main):
        for t in (m if isinstance(m, list) else [m]):
            a(t)
        if i >= start and (i - start) % every == 0:
            for _ in range(per):
                if k < len(fill):
                    g = fill[k]
                    for t in (g if isinstance(g, list) else [g]):
                        a(t)
                    k += 1
    return fill[k:]


def emit(a, lst):
    for g in lst:
        for t in (g if isinstance(g, list) else [g]):
            a(t)


def ln_den(a, vs, vq, t0):
    inv = f2u(1.0 / D)
    a(f"v_mul_f32 v{vs}, {inv:#x}, v{vs}")
    a(f"v_mul_f32 v{vq}, {inv:#x}, v{vq}")
    a(f"v_fma_f32 v{vq}, -v{vs}, v{vs}, v{vq}")
    a(f"v_max_f32 v{vq}, 0, v{vq}")
    a(f"v_cvt_pk_bf16_f32 v{t0}, v{vq}, v{vq}")
    a(f"v_lshlrev_b32 v{vq}, 16, v{t0}")
    a(f"v_add_f32 v{vq}, {f2u(1e-5):#x}, v{vq}")
    a(f"v_cvt_pk_bf16_f32 v{t0}, v{vq}, v{vq}")
    a(f"v_lshlrev_b32 v{vq}, 16, v{t0}")
    a(f"v_sqrt_f32 v{vq}, v{vq}")
    a(f"v_cvt_pk_bf16_f32 v{t0}, v{vq}, v{vq}")
    a(f"v_lshlrev_b32 v{vq}, 16, v{t0}")
    a(f"v_rcp_f32 v{vq}, v{vq}")


def cmuls(a, lst):
    for d, x, y in lst:
        assert d not in (x, y)
        a(f"v_pk_mul_f32 {vr(d,2)}, {vr(x,2)}, {vr(y,2)} op_sel:[0,0] op_sel_hi:[0,1]")
    for d, x, y in lst:
        a(f"v_pk_fma_f32 {vr(d,2)}, {vr(x,2)}, {vr(y,2)}, {vr(d,2)} op_sel:[1,1,0] op_sel_hi:[1,0,1] neg_lo:[1,0,0]")


_pollid = [0]


def poll(a, vaddr, soff, vdst, pre_issued=False):
    n = _pollid[0]
    _pollid[0] += 1
    a(f"s_mov_b32 s{sT}, 0")
    if pre_issued:
        a(f"v_cmp_ne_u32 vcc, s{sTAG}, v{vdst}")
        a(f"s_cbranch_vccz POLLD{n}")
    a.label(f"POLL{n}")
    a(f"buffer_load_dword v{vdst}, v{vaddr}, {sr(RWS)}, s{soff} offen sc1")
    a(f"s_add_u32 s{sT}, s{sT}, 1")
    a(f"s_cmp_gt_u32 s{sT}, {SPIN}")
    a("s_waitcnt vmcnt(0)")
    a(f"s_cbranch_scc1 POLLD{n}")
    a(f"v_cmp_ne_u32 vcc, s{sTAG}, v{vdst}")
    a(f"s_cbranch_vccnz POLL{n}")
    a.label(f"POLLD{n}")


def flag_store(a, soff):
    a(f"buffer_store_dword v{vTAGV}, v{vFLAG}, {sr(RWS)}, s{soff} offen sc1")


def gen():
    a = Asm()
    a("s_cmp_ge_u32 s2, 256")
    a("s_cbranch_scc1 END")
    if PROF:
        a("s_memrealtime s[80:81] ; stamp")
        a("s_memtime s[82:83] ; stamp")
    a("s_load_dwordx16 s[4:19], s[0:1], 0")
    a("s_load_dwordx16 s[20:35], s[0:1], 64")
    a("v_lshrrev_b32 v1, 6, v0")
    a(f"v_and_b32 v{vLANE}, 63, v0")
    a(f"v_readfirstlane_b32 s{sW}, v1")
    a(f"v_lshlrev_b32 v{vL16}, 4, v{vLANE}")
    a("s_getpc_b64 s[70:71]")
    a("s_lshr_b32 s72, s2, 3")
    a("s_lshl_b32 s72, s72, 12")
    a("v_lshlrev_b32 v2, 4, v0")
    a("v_add_u32 v2, s72, v2")
    a("v_min_u32 v2, CODE_LIM, v2")
    a("global_load_dwordx4 v[4:7], v2, s[70:71]")
    a(f"s_lshr_b32 s{sP}, s2, 1")
    a(f"s_and_b32 s{sE}, s2, 1")
    a(f"s_mul_i32 s{sCH0}, s{sP}, 5")
    a(f"s_mul_i32 s{sCH1}, s{sE}, 3")
    a(f"s_add_u32 s{sCH1}, s{sCH1}, s{sCH0}")
    a(f"s_add_u32 s{sCH0}, s{sCH0}, 2")
    a(f"s_and_b32 s{sTB}, s2, 1")
    a(f"s_lshl_b32 s{sTB}, s{sTB}, 3")
    a("s_bfe_u32 s72, s2, 0x30003")
    a(f"s_add_u32 s{sTB}, s{sTB}, s72")
    a(f"s_bfe_u32 s{sJ}, s2, 0x20001")
    a(f"s_lshl_b32 s{sJ}, s{sJ}, 2")
    a("s_lshr_b32 s72, s2, 6")
    a(f"s_add_u32 s{sJ}, s{sJ}, s72")
    a(f"s_mov_b32 s{sLO}, 0x3f80")
    a(f"s_mov_b32 s{sHI}, 0x3f800000")
    a(f"s_mov_b32 s{sONE}, 0x3f803f80")
    a(f"v_cmp_eq_u32 vcc, 0, v{vLANE}")
    a(f"v_mov_b32 v{vFLAG}, {BIG:#x}")
    a(f"v_cndmask_b32 v{vFLAG}, v{vFLAG}, 0, vcc")
    a("s_mul_i32 s72, s2, 10240")
    a(f"s_sub_u32 s74, s{sW}, 1")
    a("s_lshl_b32 s74, s74, 10")
    a("s_add_u32 s73, s72, s74")
    a(f"s_add_u32 s74, s74, {XQ}")
    PB = 200
    for it in range(3):
        a(f"s_add_u32 s75, s{sW}, {4*it}      ; unit")
        a("s_mul_i32 s76, s75, 11")
        a("s_lshr_b32 s76, s76, 5            ; rc = u/3")
        a("s_mul_i32 s77, s76, 3")
        a("s_sub_u32 s77, s75, s77           ; third")
        a(f"s_add_u32 s78, s{sCH1}, s76")
        a("s_sub_u32 s78, s78, 1")
        a("s_cmp_eq_u32 s76, 0")
        a(f"s_cselect_b32 s78, s{sCH0}, s78   ; channel")
        a("s_min_u32 s78, s78, 639")
        a("s_lshl_b32 s79, s78, 1")
        a(f"v_mov_b32 v{15+it}, s79")
        a("s_mul_i32 s78, s78, 384")
        a("s_lshl_b32 s77, s77, 7")
        a("s_add_u32 s78, s78, s77")
        a(f"v_lshlrev_b32 v{12+it}, 1, v{vLANE}")
        a(f"v_add_u32 v{12+it}, s78, v{12+it}")
    for r in range(PB, PB + 24):
        a(f"v_mov_b32 v{r}, 0")
    a(f"s_mul_i32 s75, s{sP}, 5")
    a(f"s_lshl_b32 s76, s{sE}, 1")
    a("s_add_u32 s75, s75, s76             ; cb")
    a("s_lshl_b32 s76, s75, 1")
    a("s_and_b32 s76, s76, 0xfffc")
    a("s_waitcnt lgkmcnt(0)")
    stamp(a, "karg")
    srd(a, RX, sX, SZ_X)

    def param_loads(its):
        for it in its:
            for k in range(6):
                a(f"global_load_short_d16_hi v{PB+8*it+k}, v{12+it}, s[{sPAR+2*k}:{sPAR+2*k+1}]")
            a(f"global_load_short_d16_hi v{PB+8*it+6}, v{15+it}, s[{sLDT}:{sLDT+1}]")

    a(f"s_cmp_eq_u32 s{sW}, 0")
    a("s_cbranch_scc1 LD0")
    for n in range(4):
        if n == 3:
            a(f"s_cmp_eq_u32 s{sW}, 1")
            a("s_cbranch_scc0 LDC")
        a(f"s_add_u32 m0, s74, {3072*n}")
        a(f"s_add_u32 s75, s73, {3072*n}")
        a(f"buffer_load_dwordx4 v{vL16}, {sr(RX)}, s75 offen lds ; @def:xq")
    a("s_branch LDC")
    a.label("LD0")
    param_loads([2])
    if os.environ.get("TLBW", "0") == "1":
        srd(a, RWS, sWS, WS_END)
        srd(a, ROUT, sOUT, SZ_X)
        srd(a, RWD, sWDP, SZ_W)
        a(f"v_lshlrev_b32 v18, 19, v{vLANE}")
        a(f"buffer_load_dword v250, v18, {sr(RWS)}, 0 offen sc1")
        a(f"buffer_load_dword v251, v18, {sr(ROUT)}, 0 offen sc1")
        a(f"buffer_load_dword v252, v18, {sr(RWD)}, 0 offen")
    a.label("LDC")
    a(f"s_load_dword s{sTAG}, s[{sWS}:{sWS+1}], {GEN}")
    a(f"s_load_dwordx2 s[78:79], s[{sDSK}:{sDSK+1}], s76")
    param_loads([0, 1])
    a("s_mul_i32 s32, s2, 171")
    a("s_lshr_b32 s32, s32, 11             ; s = b/12")
    a("s_mul_i32 s33, s32, 12")
    a("s_sub_u32 s33, s2, s33")
    a("s_lshl_b32 s33, s33, 1")
    a(f"s_and_b32 s75, s{sW}, 1")
    a("s_add_u32 s33, s33, s75")
    a("s_lshl_b32 s21, s75, 13")
    a(f"s_add_u32 s21, s21, {W1S}")
    srd(a, RW, sWGP, SZ_W)
    srd(a, RWD, sWUP, SZ_W)
    a(f"v_lshrrev_b32 v18, 3, v{vLANE}")
    a("v_mul_u32_u24 v19, 5, v18")
    a("v_add_u32 v19, 2, v19")
    a("v_lshrrev_b32 v20, 1, v18")
    a("v_mul_u32_u24 v20, 5, v20")
    a("v_and_b32 v21, 1, v18")
    a("v_mul_u32_u24 v21, 3, v21")
    a("v_add_u32 v20, v20, v21")
    a("s_cmp_lt_u32 s32, 4")
    a("s_cselect_b64 vcc, -1, 0")
    a("v_cndmask_b32 v19, v20, v19, vcc")
    a("v_mul_u32_u24 v19, 3072, v19")
    a(f"v_and_b32 v20, 7, v{vLANE}")
    a(f"v_bfe_u32 v21, v{vLANE}, 4, 1       ; (row>>1)&1")
    a("v_xor_b32 v20, v20, v21")
    a("v_lshl_add_u32 v18, v20, 4, v19")
    a("v_xor_b32 v19, 32, v18")
    a("v_xor_b32 v20, 64, v18")
    a("v_xor_b32 v21, 96, v18")
    a(f"s_cselect_b32 s77, 40, 20")
    a("s_mul_i32 s77, s77, 3072")
    a("s_mul_i32 s75, s32, 160")
    a("s_sub_u32 s76, s32, 4")
    a("s_and_b32 s76, s76, 7")
    a("s_mul_i32 s76, s76, 80")
    a("s_cmp_ge_u32 s32, 12")
    a("s_addc_u32 s76, s76, 0")
    a("s_cmp_lt_u32 s32, 4")
    a("s_cselect_b32 s75, s75, s76")
    a("s_mul_i32 s75, s75, 3072")
    a("s_lshl_b32 s76, s33, 7")
    a("s_add_u32 s4, s75, s76")
    a("s_mov_b32 s5, s77")
    for k in range(4):
        a(f"v_mov_b32 v{250+k}, v{18+k}")
    srd(a, RWS, sWS, WS_END)
    stamp(a, "f1")
    LOG2E = f2u(1.4426950408889634)
    a(f"s_mul_i32 s71, s{sW}, {STGS}")
    a(f"s_add_u32 s74, s71, {STG}")
    a(f"v_and_b32 v36, 31, v{vLANE}         ; b")
    a(f"v_bfe_u32 v37, v{vLANE}, 5, 1       ; h")
    a("v_mul_u32_u24 v35, 272, v36")
    a("v_lshl_add_u32 v35, v37, 4, v35")
    a("v_add_u32 v35, s74, v35")
    a(f"s_mul_i32 s74, s{sW}, {TABS}")
    a("v_lshlrev_b32 v8, 5, v36")
    a("v_lshl_add_u32 v8, v37, 4, v8")
    a("v_add_u32 v8, s74, v8")
    a("v_lshlrev_b32 v9, 4, v36")
    a("v_add_u32 v9, 1024, v9")
    a("v_lshlrev_b32 v10, 3, v36")
    a("v_add_u32 v10, 1536, v10")
    a("v_cmp_eq_u32 vcc, 1, v37")
    a("v_mov_b32 v11, 8")
    a("v_mov_b32 v12, 256")
    a("v_cndmask_b32 v9, v9, v10, vcc")
    a("v_cndmask_b32 v11, v11, v12, vcc")
    a("v_add_u32 v9, s74, v9")
    a("v_add_u32 v10, v9, v11")
    a("v_mul_u32_u24 v11, 384, v37")
    a("v_lshl_add_u32 v11, v36, 2, v11")
    a("v_add_u32 v11, s74, v11")
    a(f"v_lshrrev_b32 v24, 2, v{vLANE}      ; c16")
    a(f"v_and_b32 v25, 3, v{vLANE}          ; k")
    a("v_lshrrev_b32 v26, 1, v24")
    a("v_and_b32 v27, 1, v24               ; e")
    a("v_mul_u32_u24 v28, 5, v26")
    a("v_lshl_add_u32 v28, v27, 1, v28     ; cb")
    a("v_lshlrev_b32 v28, 1, v28")
    a("v_and_b32 v28, 0xfffc, v28")
    a("v_mul_u32_u24 v29, 2560, v25")
    a(f"s_and_b32 s74, s{sW}, 1")
    a("s_mul_i32 s75, s74, 640")
    a(f"s_add_u32 s75, s75, {XQ}")
    a("v_add3_u32 v28, v28, v29, s75")
    a("v_add_u32 v31, 1280, v28            ; row 2k+1")
    a("v_and_b32 v26, 1, v26               ; parity")
    a("v_add_u32 v29, v26, v27             ; q1")
    a("v_lshlrev_b32 v30, 1, v27")
    a("v_sub_u32 v30, v26, v30")
    a("v_add_u32 v30, 2, v30               ; q0")
    a("v_lshl_add_u32 v30, v29, 16, v30")
    a("s_mov_b32 s75, 0x0202")
    a("v_mul_lo_u32 v30, v30, s75")
    a("v_add_u32 v30, 0x01000100, v30      ; sel (q0,q1)")
    a("v_add_u32 v29, 1, v29")
    a("s_mov_b32 s75, 0x02020202")
    a("v_mul_lo_u32 v29, v29, s75")
    a("v_add_u32 v29, 0x01000100, v29      ; sel (q2,q2)")
    a("v_lshlrev_b32 v24, 14, v24")
    a("v_lshl_add_u32 v24, v25, 4, v24")
    a("s_lshl_b32 s76, s74, 21")
    a("s_lshl_b32 s77, s2, 6")
    a("s_add_u32 s76, s76, s77")
    a(f"s_add_u32 s76, s76, {XR:#x}")
    a("s_mov_b32 s72, 0x05040100")
    a("s_mov_b32 s73, 0x07060302")
    a(f"v_lshrrev_b32 v18, 3, v{vLANE}")
    a("v_mul_u32_u24 v18, 1280, v18")
    a(f"v_and_b32 v19, 7, v{vLANE}")
    a("v_lshl_add_u32 v18, v19, 4, v18")
    a(f"v_add_u32 v18, {XQ}, v18")
    a(f"s_mul_i32 s{sTAG}, s{sTAG}, 0x9E3779B1")
    a(f"s_add_u32 s{sTAG}, s{sTAG}, 0x7F4A7C15")
    a(f"v_mov_b32 v{vTAGV}, s{sTAG}")
    a(f"s_and_b32 s74, s{sP}, 1")
    for r in range(3):
        lo, hi = DSEL[r]
        if r == 0:
            a(f"s_lshl_b32 s77, s{sE}, 1")
            a("s_sub_u32 s77, s74, s77")
            a("s_add_u32 s77, s77, 2")
        else:
            a(f"s_add_u32 s77, s74, s{sE}")
            if r == 2:
                a("s_add_u32 s77, s77, 1")
        a("s_lshl_b32 s77, s77, 4")
        a(f"s_lshr_b64 s[{lo}:{hi}], s[78:79], s77")
        a(f"s_lshl_b32 s{lo}, s{lo}, 16")
        a(f"s_mov_b32 s{hi}, s{lo}")
    for i in range(8):
        a(f"v_mov_b32 v{104+4*i+3}, s{sTAG}")
    a("; @use:xq")
    a("s_barrier")
    stamp(a, "xq")
    a(f"s_cmp_eq_u32 s{sW}, 0")
    a("s_cbranch_scc1 PRE0")
    a(f"s_cmp_eq_u32 s{sW}, 1")
    a("s_cbranch_scc1 PRE1")
    for i in range(8):
        a(f"ds_read2_b32 {vr(40+4*i,2)}, v28 offset0:{20*i} offset1:{20*i+1}")
        a(f"ds_read2_b32 {vr(42+4*i,2)}, v31 offset0:{20*i} offset1:{20*i+1}")
    for i in range(8):
        b = 40 + 4 * i
        o = 104 + 4 * i
        a(f"v_perm_b32 v32, v{b+1}, v{b}, v30")
        a(f"v_perm_b32 v33, v{b+3}, v{b+2}, v30")
        a(f"v_perm_b32 v34, v{b+1}, v{b}, v29")
        a(f"v_perm_b32 v38, v{b+3}, v{b+2}, v29")
        a(f"v_perm_b32 v{o}, v33, v32, s72")
        a(f"v_perm_b32 v{o+1}, v33, v32, s73")
        a(f"v_perm_b32 v{o+2}, v38, v34, s72")
        a(f"buffer_store_dwordx4 {vr(o,4)}, v24, {sr(RWS)}, s76 offen sc1")
        if i < 7:
            a(f"s_add_u32 s76, s76, {16*16384}")
    stamp(a, "recs")
    a("s_waitcnt vmcnt(8)")
    a("; @clearvm")
    a("s_branch KGEN0")
    a.label("PRE1")
    SB = 40
    for c in range(10):
        a(f"ds_read_b128 {vr(SB+4*c,4)}, v18 offset:{128*c}")
    for k in range(40):
        a(f"v_dot2_f32_bf16 v32, v{SB+k}, s{sONE}, {'0' if k == 0 else 'v32'}")
        a(f"v_dot2_f32_bf16 v33, v{SB+k}, v{SB+k}, {'0' if k == 0 else 'v33'}")
    for m in ("quad_perm:[1,0,3,2]", "quad_perm:[2,3,0,1]", "row_half_mirror"):
        a(f"v_add_f32_dpp v32, v32, v32 {m} row_mask:0xf bank_mask:0xf")
        a(f"v_add_f32_dpp v33, v33, v33 {m} row_mask:0xf bank_mask:0xf")
    ln_den(a, 32, 33, 34)
    a("v_mov_b32 v104, v33")
    a("v_mov_b32_dpp v105, v33 row_ror:8 row_mask:0xf bank_mask:0xf")
    a("v_mov_b32_dpp v34, v32 row_ror:8 row_mask:0xf bank_mask:0xf")
    a(f"v_and_b32 v38, 15, v{vLANE}")
    a("v_cmp_eq_u32 vcc, 0, v38")
    a("v_cvt_pk_bf16_f32 v106, v32, v34")
    a(f"v_mov_b32 v38, {BIG:#x}")
    a(f"v_cndmask_b32 v38, v38, v{vLANE}, vcc")
    a("s_lshl_b32 s76, s2, 6")
    a(f"s_add_u32 s76, s76, {S1:#x}")
    a(f"buffer_store_dwordx4 v[104:107], v38, {sr(RWS)}, s76 offen sc1")
    stamp(a, "recs")
    a("s_waitcnt vmcnt(1)")
    a("s_branch KGEN0")
    a.label("PRE0")
    a("s_waitcnt vmcnt(0)")
    a.label("KGEN0")
    stamp(a, "job")
    a(f"s_mov_b32 s76, {LOG2E:#x}")
    a(f"s_mov_b32 s77, {f2u(0.15915494309189535):#x}")
    a("s_mov_b32 m0, s71")
    a(f"s_mov_b32 s75, s{sW}                ; unit")
    a.label("KGEN")
    stamp(a, "k0")
    A_, B_, C_, LD_ = PB, PB + 2, PB + 4, PB + 6
    a(f"v_mul_f32 v32, {LOG2E:#x}, v{LD_}")
    a("v_exp_f32 v32, v32")
    a("v_cvt_pk_bf16_f32 v32, v32, v32")
    a("v_lshlrev_b32 v32, 16, v32          ; dt")
    a(f"v_pk_mul_f32 v[24:25], {vr(A_,2)}, v[32:33] op_sel:[0,0] op_sel_hi:[1,0]")
    a(f"v_pk_mul_f32 v[26:27], {vr(B_,2)}, v[32:33] op_sel:[0,0] op_sel_hi:[1,0]")
    a("v_pk_mul_f32 v[24:25], v[24:25], s[76:77]")
    P, Q, CV = 40, 56, 72
    p1, qq, w8 = 88, 90, 92
    RA = 104
    Rr = lambda k: RA + 2 * k
    R0 = Rr(0)
    cmuls(a, [(R0, C_, 26)])
    ev = [(P + 2, 8.0, 96), (p1, 1.0, 98), (qq, 256.0, 100)]
    for dst, sc, t in ev:
        if sc == 1.0:
            a(f"v_fract_f32 v{t+1}, v25")
        else:
            a(f"v_mul_f32 v{t}, {f2u(sc):#x}, v24")
            a(f"v_mul_f32 v{t+1}, {f2u(sc):#x}, v25")
            a(f"v_fract_f32 v{t+1}, v{t+1}")
    for dst, sc, t in ev:
        a(f"v_exp_f32 v{t}, v{24 if sc == 1.0 else t}")
        a(f"v_cos_f32 v{dst}, v{t+1}")
        a(f"v_sin_f32 v{dst+1}, v{t+1}")
    for k in range(0, 16, 2):
        a(f"v_pk_mov_b32 {vr(PB+k,2)}, {vr(PB+8+k,2)}, {vr(PB+8+k,2)} op_sel:[0,1]")
    for dst, sc, t in ev:
        a(f"v_pk_mul_f32 {vr(dst,2)}, {vr(dst,2)}, {vr(t,2)} op_sel:[0,0] op_sel_hi:[1,0]")
    stamp(a, "k1")
    W = lambda k: P + 2 * k
    p2, p4, q2 = 96, 98, 100
    cmuls(a, [(W(2), W(1), W(1)), (p2, p1, p1), (q2, qq, qq), (Rr(1), R0, p1)])
    cmuls(a, [(W(3), W(2), W(1)), (W(4), W(2), W(2)), (p4, p2, p2), (Rr(2), R0, p2), (Rr(3), Rr(1), p2)])
    cmuls(a, [(W(5), W(4), W(1)), (W(6), W(4), W(2)), (W(7), W(4), W(3)), (Q, W(4), W(4))])
    AOFF = 32 * 272

    def put(vals, cv, neg):
        for k, (r, col) in enumerate(vals):
            if r is None:
                a(f"v_mov_b32 v{cv+k}, 0x3f80")
            else:
                a(f"v_cvt_pk_bf16_f32 v{cv+k}, v{r}, {'-' if neg else ''}v{r+1}")
        for k, (r, col) in enumerate(vals):
            a(f"ds_write_addtid_b32 v{cv+k} offset:{STG+272*col+(AOFF if neg else 0)}")

    stamp(a, "k2")
    a(f"v_pk_mov_b32 {vr(w8,2)}, {vr(Q,2)}, {vr(Q,2)} op_sel:[0,1]")
    cmuls(a, [(Q + 2 * k, P + 2 * k, w8) for k in range(1, 8)])
    put([(None, 0)] + [(P + 2 * k, k) for k in range(1, 8)] + [(Q + 2 * k, 8 + k) for k in range(8)], CV, False)
    cmuls(a, [(P + 2 * k, Q + 2 * k, w8) for k in range(8)])
    cmuls(a, [(Q + 2 * k, P + 2 * k, w8) for k in range(8)])
    put([(P + 2 * k, 16 + k) for k in range(8)] + [(Q + 2 * k, 24 + k) for k in range(8)], CV, False)
    FB, FA = 40, 148
    for s in range(8):
        a(f"ds_read_b128 {vr(FB+4*s,4)}, v35 offset:{32*s}")
    stamp(a, "k3")
    cmuls(a, [(Rr(4 + k), Rr(k), p4) for k in range(4)] + [(Rr(8), R0, qq), (Rr(9), Rr(2), qq), (Rr(12), R0, q2)])
    cmuls(a, [(Rr(10), Rr(4), qq), (Rr(11), Rr(6), qq), (Rr(13), Rr(4), q2), (Rr(14), Rr(8), q2), (Rr(16), Rr(12), q2)])
    cmuls(a, [(Rr(15), Rr(10), q2), (Rr(17), Rr(14), q2), (Rr(18), Rr(16), q2)])
    cmuls(a, [(Rr(20), Rr(17), q2), (Rr(21), Rr(18), q2)])
    stamp(a, "k4")
    put([(Rr(k), k) for k in list(range(19)) + [20, 21]], CV, True)
    for s in range(8):
        a(f"ds_read_b128 {vr(FA+4*s,4)}, v35 offset:{AOFF+32*s}")
    stamp(a, "k5")
    DK = 180
    for s in range(8):
        a(f"v_mfma_f32_32x32x16_bf16 {vr(DK,16)}, {vr(FA+4*s,4)}, {vr(FB+4*s,4)}, {'0' if s == 0 else vr(DK,16)}")
    stamp(a, "k6")
    a("s_add_u32 s75, s75, 4")
    a(f"ds_write_b128 v8, {vr(DK,4)}")
    a(f"ds_write_b64 v9, {vr(DK+4,2)}")
    a(f"ds_write_b64 v10, {vr(DK+6,2)}")
    for r in range(3):
        a(f"ds_write_b32 v11, v{DK+8+r} offset:{2048+128*r}")
    for r in range(8, 12):
        a(f"v_add_u32 v{r}, {4*TABS}, v{r}")
    a("s_cmp_ge_u32 s75, 9")
    a("s_cbranch_scc1 JOBD")
    a("s_cmp_eq_u32 s75, 5")
    a("s_cbranch_scc1 JOB3")
    a("s_and_b32 s78, s75, 6")
    a("s_cmp_eq_u32 s78, 6")
    a("s_cbranch_scc0 KGEN")
    for n in range(4):
        for mat in range(2):
            a(f"s_add_u32 m0, s21, {4096*mat+1024*n}")
            a(f"buffer_load_dwordx4 v{250+(n&1)+2*mat}, {sr(RW if mat == 0 else RWD)}, s4 offen lds")
        a("s_add_u32 s4, s4, s5")
    a("s_mov_b32 m0, s71")
    a("s_branch KGEN")
    a.label("JOB3")
    srd(a, RWD, sWDP, SZ_W)
    for n in range(5):
        a(f"v_add_u32 v{18+n}, {64*n}, v{vLANE}")
        a(f"v_mul_u32_u24 v23, 3277, v{18+n}")
        a("v_lshrrev_b32 v23, 16, v23")
        a("v_mul_u32_u24 v23, 960, v23")
        a(f"v_lshl_add_u32 v{18+n}, v{18+n}, 4, v23")
    a("s_lshr_b32 s32, s2, 2               ; ks")
    a("s_and_b32 s33, s2, 3                ; q4")
    a(f"s_mul_i32 s78, s32, {32*1280}")
    a("s_mul_i32 s79, s33, 320")
    a("s_add_u32 s78, s78, s79")
    for n in range(10):
        a(f"s_mov_b32 m0, {W2S+1024*n}")
        a(f"buffer_load_dwordx4 v{18+n%5}, {sr(RWD)}, s78 offen lds")
        if n == 4:
            a(f"s_add_u32 s78, s78, {16*1280}")
    a("s_mov_b32 m0, s71")
    a("s_branch KGEN")
    a.label("JOBD")
    stamp(a, "kgen")
    stamp(a, "jobd")
    XRV, STV = 200, 216
    a("v_lshlrev_b32 v1, 4, v0             ; 16*tid")
    a("s_lshl_b32 s72, s2, 14")
    a(f"s_add_u32 s72, s72, {XR:#x}")

    def recv_loads():
        a("s_mov_b32 s73, s72")
        a(f"s_mov_b32 s74, {S1:#x}")
        for i in range(4):
            a(f"buffer_load_dwordx4 {vr(XRV+4*i,4)}, v1, {sr(RWS)}, s73 offen sc1")
            a(f"buffer_load_dwordx4 {vr(STV+4*i,4)}, v1, {sr(RWS)}, s74 offen sc1")
            if i < 3:
                a("s_add_u32 s73, s73, 4096")
                a("s_add_u32 s74, s74, 4096")

    recv_loads()
    a(f"s_cmp_eq_u32 s{sW}, 0")
    a("s_cbranch_scc1 NOJ3")
    a(f"s_cmp_eq_u32 s{sW}, 1")
    a("s_cbranch_scc1 DOJ3")
    a("s_waitcnt vmcnt(8)")
    a("s_cmp_ge_u32 s2, 240")
    a("s_cbranch_scc1 DUMJ")
    a(f"v_lshrrev_b32 v24, 4, v{vLANE}      ; g")
    a(f"v_bfe_u32 v25, v{vLANE}, 2, 2       ; rr")
    a(f"v_bfe_u32 v26, v{vLANE}, 1, 1       ; mat")
    a("v_lshl_add_u32 v27, v24, 3, v25")
    a("v_lshlrev_b32 v27, 7, v27")
    a("v_lshl_add_u32 v27, v26, 12, v27")
    a(f"v_and_b32 v28, 1, v{vLANE}")
    a("v_lshl_add_u32 v27, v28, 3, v27")
    a("v_and_b32 v28, 1, v24")
    a("v_lshrrev_b32 v29, 1, v25")
    a("v_lshl_add_u32 v28, v28, 1, v29")
    a("v_lshl_add_u32 v28, v26, 2, v28     ; swizzle")
    a("v_lshl_add_u32 v27, v28, 4, v27")
    a("v_add_u32 v104, s21, v27")
    WF = 40
    for t in range(1, 8):
        a(f"v_xor_b32 v{104+t}, {16*t}, v104")
    for t in range(8):
        a(f"ds_read_b64_tr_b16 {vr(WF+4*t,2)}, v{104+t}")
        a(f"ds_read_b64_tr_b16 {vr(WF+4*t+2,2)}, v{104+t} offset:512")
    a(f"v_bfe_u32 v25, v{vLANE}, 1, 2")
    a("v_lshlrev_b32 v25, 2, v25")
    a(f"v_and_b32 v26, 1, v{vLANE}")
    a(f"v_bfe_u32 v30, v{vLANE}, 3, 1")
    a("v_lshl_add_u32 v26, v30, 1, v26")
    a("v_add_u32 v25, v25, v26             ; slot i")
    a("v_lshl_add_u32 v25, v24, 4, v25")
    a("v_lshlrev_b32 v25, 4, v25")
    a("s_mul_i32 s78, s32, 196608")
    a("s_lshl_b32 s79, s33, 13")
    a("s_add_u32 s78, s78, s79")
    a(f"s_add_u32 s78, s78, {W1P:#x}")
    a(f"v_and_b32 v26, 15, v{vLANE}")
    a("v_cmp_eq_u32 vcc, 0, v26")
    a(f"v_mov_b32 v27, s{sONE}")
    for k in range(4):
        a(f"v_cndmask_b32 v{120+k}, 0, v27, vcc")
    for t in range(8):
        a(f"buffer_store_dwordx4 {vr(WF+4*t,4)}, v25, {sr(RWS)}, s78 offen offset:{1024*(t&3)} sc1")
        if t == 3:
            a("s_add_u32 s78, s78, 4096")
        cur, nx = 120 + 4 * (t & 1), 120 + 4 * ((t + 1) & 1)
        a(f"v_mfma_f32_16x16x32_bf16 v[128:131], {vr(WF+4*t,4)}, {vr(cur,4)}, {'0' if t == 0 else 'v[128:131]'}")
        if t < 7:
            for k in range(4):
                a(f"v_mov_b32_dpp v{nx+k}, v{cur+k} row_shr:1 row_mask:0xf bank_mask:0xf bound_ctrl:0")
    a("v_cmp_gt_u32 vcc, 8, v26")
    a("v_lshlrev_b32 v26, 6, v26")
    a("v_and_b32 v27, 1, v24")
    a("v_lshl_add_u32 v26, v27, 5, v26")
    a("v_lshrrev_b32 v27, 1, v24")
    a("v_lshl_add_u32 v26, v27, 3, v26")
    a(f"v_mov_b32 v27, {BIG:#x}")
    a("v_cndmask_b32 v26, v27, v26, vcc")
    a("s_mul_i32 s78, s32, 12288")
    a("s_lshl_b32 s79, s33, 9")
    a("s_add_u32 s78, s78, s79")
    a(f"s_add_u32 s78, s78, {CSP:#x}")
    a(f"buffer_store_dwordx2 v[128:129], v26, {sr(RWS)}, s78 offen sc1")
    a(f"buffer_store_dwordx2 v[130:131], v26, {sr(RWS)}, s78 offen offset:16 sc1 ; @def:w1st")
    a("s_branch NOJ3")
    a.label("DOJ3")
    a("s_waitcnt vmcnt(8)")
    a("s_cmp_ge_u32 s2, 192")
    a("s_cbranch_scc1 DUMJ")
    a(f"v_lshrrev_b32 v24, 4, v{vLANE}      ; g")
    a(f"v_bfe_u32 v25, v{vLANE}, 2, 1")
    a("v_lshl_add_u32 v24, v24, 1, v25")
    a(f"v_bfe_u32 v25, v{vLANE}, 3, 1")
    a("v_lshl_add_u32 v24, v25, 3, v24     ; row")
    a("v_mul_u32_u24 v24, 320, v24")
    a(f"v_add_u32 v24, {W2S}, v24")
    a(f"v_and_b32 v25, 3, v{vLANE}")
    a("v_lshl_add_u32 v26, v25, 3, v24")
    a("v_lshl_add_u32 v25, v25, 4, v24")
    for t in range(10):
        dbl, rt = t // 5, t % 5
        off = 160 * dbl + (64 * (rt >> 1) + 8 * (rt & 1) if rt < 4 else 128)
        a(f"ds_read_b64_tr_b16 {vr(WF+4*t,2)}, v{25 if rt < 4 else 26} offset:{off}")
        a(f"ds_read_b64_tr_b16 {vr(WF+4*t+2,2)}, v{25 if rt < 4 else 26} offset:{off+5120}")
    a("s_mul_i32 s78, s33, 491520")
    a("s_mul_i32 s79, s32, 5120")
    a("s_add_u32 s78, s78, s79")
    a(f"s_add_u32 s78, s78, {W2P:#x}")
    for t in range(10):
        rt = t % 5
        if rt == 4:
            a("s_add_u32 s78, s78, 4096")
        a(f"buffer_store_dwordx4 {vr(WF+4*t,4)}, v{vL16}, {sr(RWS)}, s78 offen offset:{1024*(rt&3)} sc1 ; @def:w2st")
        if t == 4:
            a(f"s_add_u32 s78, s78, {245760-4096}")
    a("s_branch NOJ3")
    a.label("DUMJ")
    a(f"s_mov_b32 s78, {BIG:#x}")
    for k in range(10):
        flag_store(a, 78)
    a.label("NOJ3")
    a("s_waitcnt lgkmcnt(0)")
    a("s_barrier")
    stamp(a, "bar1")
    for r in range(40, 44):
        a(f"v_mov_b32 v{r}, 0")
    a(f"s_mul_i32 s75, s{sW}, {CHS}")
    a(f"s_add_u32 s75, s75, {CHB}")
    a(f"v_add_u32 v12, s75, v{vL16}")
    a(f"ds_write_b128 v12, v[40:43] offset:{C_U0}")
    a(f"ds_write_b128 v12, v[40:43] offset:{C_U2}")
    a(f"v_and_b32 v13, 48, v{vL16}")
    a("v_add_u32 v13, s75, v13")
    a(f"ds_write_b128 v13, v[40:43] offset:{C_KO+4096}")
    a(f"ds_write_b128 v13, v[40:43] offset:{C_KE+4096}")
    a("v_mov_b32 v13, s75")
    a(f"ds_write_b32 v13, v40 offset:{C_U2+1024}")
    KB = CHB + C_KO
    KD = C_KE - C_KO

    def pk(dst, lo, hi):
        a(f"v_cvt_pk_bf16_f32 v{dst}, v{lo}, v{hi}")

    a(f"v_cmp_eq_u32 vcc, 0, v{vLANE}")
    a(f"s_cmp_eq_u32 s{sW}, 0")
    a("s_cbranch_scc0 EXPN")
    a(f"v_subrev_u32 v13, 4, v{vL16}")
    a("v_max_i32 v13, 0, v13")
    for rc in range(3):
        for t in range(3):
            a(f"ds_read_b128 {vr(44+16*rc+4*t,4)}, v{vL16} offset:{TABS*(3*rc+t)}")
            a(f"ds_read_b32 v{56+16*rc+t}, v13 offset:{TABS*(3*rc+t)}")
    a(f"v_lshlrev_b32 v14, 3, v{vLANE}")
    a(f"v_sub_u32 v14, {KB+2*2044}, v14")
    for rc in range(3):
        b = 44 + 16 * rc
        o = 96 + 4 * rc
        for t in (1, 2):
            a(f"v_pk_add_f32 {vr(b,2)}, {vr(b,2)}, {vr(b+4*t,2)}")
            a(f"v_pk_add_f32 {vr(b+2,2)}, {vr(b+2,2)}, {vr(b+4*t+2,2)}")
            a(f"v_add_f32 v{b+12}, v{b+12}, v{b+12+t}")
        a(f"v_cndmask_b32 v{b+12}, v{b+12}, 0, vcc")
        pk(o, b + 3, b + 2); pk(o + 1, b + 1, b); pk(o + 2, b + 2, b + 1); pk(o + 3, b, b + 12)
        a(f"ds_write_b64 v14, {vr(o,2)} offset:{CHS*rc}")
        a(f"ds_write_b64 v14, {vr(o+2,2)} offset:{CHS*rc+KD}")
    a("s_mov_b32 s71, 1")
    a("s_branch EXPD")
    a.label("EXPN")
    a("s_mov_b32 s71, 0")
    a(f"s_lshl_b32 s75, s{sW}, 9")
    a("s_add_u32 s75, s75, 508")
    a(f"v_lshlrev_b32 v12, 3, v{vLANE}")
    a("v_add_u32 v12, s75, v12")
    for rc in range(3):
        for t in range(3):
            b = 44 + 12 * rc + 4 * t
            off = TABS * (3 * rc + t)
            a(f"ds_read_b64 {vr(b,2)}, v12 offset:{off+4}")
            a(f"ds_read_b32 v{b+2}, v12 offset:{off+12}")
            a(f"ds_read_b32 v{b+3}, v12 offset:{off}")
    for rc in range(3):
        b = 44 + 12 * rc
        for t in (1, 2):
            a(f"v_pk_add_f32 {vr(b,2)}, {vr(b,2)}, {vr(b+4*t,2)}")
            a(f"v_pk_add_f32 {vr(b+2,2)}, {vr(b+2,2)}, {vr(b+4*t+2,2)}")
    a(f"s_cmp_eq_u32 s{sW}, 2")
    a("s_cbranch_scc1 EXP2")
    a(f"s_cmp_eq_u32 s{sW}, 3")
    a("s_cbranch_scc1 EXP3")
    a(f"v_lshlrev_b32 v14, 3, v{vLANE}")
    a(f"v_sub_u32 v14, {KB+2*(2044-256)}, v14")
    for rc in range(3):
        va, vb, vc, vm = (44 + 12 * rc + k for k in range(4))
        o = 96 + 4 * rc
        a(f"v_cndmask_b32 v{vm}, v{va}, v{vm}, vcc")
        pk(o, vc, vb); pk(o + 1, va, va); pk(o + 2, vb, va); pk(o + 3, va, vm)
        a(f"ds_write_b64 v14, {vr(o,2)} offset:{CHS*rc}")
        a(f"ds_write_b64 v14, {vr(o+2,2)} offset:{CHS*rc+KD}")
    a("s_branch EXPD")
    a.label("EXP2")
    a(f"v_sub_u32 v14, {KB+2*(2040-512)}, v{vL16}")
    for rc in range(3):
        va, vb, vc, vm = (44 + 12 * rc + k for k in range(4))
        o = 96 + 8 * rc
        for k, (lo, hi) in enumerate([(vc, vc), (vb, vb), (vb, va), (va, va), (vc, vb), (vb, vb), (va, va), (va, va)]):
            pk(o + k, lo, hi)
        a(f"ds_write_b128 v14, {vr(o,4)} offset:{CHS*rc}")
        a(f"ds_write_b128 v14, {vr(o+4,4)} offset:{CHS*rc+KD}")
    a("s_branch EXPD")
    a.label("EXP3")
    a(f"v_lshlrev_b32 v14, 5, v{vLANE}")
    a(f"v_sub_u32 v14, {KB+2*(2032-1024)}, v14")
    for rc in range(3):
        va, vb, vc, vm = (44 + 12 * rc + k for k in range(4))
        o = 96 + 16 * rc
        pat = [(vc, vc), (vc, vc), (vb, vb), (vb, vb), (vb, vb), (vb, va), (va, va), (va, va),
               (vc, vc), (vc, vb), (vb, vb), (vb, vb), (vb, vb), (va, va), (va, va), (va, va)]
        for k, (lo, hi) in enumerate(pat):
            pk(o + k, lo, hi)
            if k & 3 == 3:
                a(f"ds_write_b128 v14, {vr(o+k-3,4)} offset:{CHS*rc+(KD if k >= 8 else 0)+(16 if k & 4 else 0)}")
    a.label("EXPD")
    stamp(a, "exp")
    vA, vB, vB0, vRW, vRW0, vRR0, vRR1, vH, vH0 = 2, 3, 4, 5, 6, 7, 8, 1, 9
    vRW2, vRQ0, vRQ1, vRZ0, vRZ1 = 245, 246, 247, 248, 249
    a(f"v_and_b32 v12, 1, v{vLANE}")
    a(f"v_bfe_u32 v13, v{vLANE}, 1, 3")
    a(f"v_lshrrev_b32 v14, 4, v{vLANE}")
    a(f"s_lshl_b32 s75, s{sW}, 7")
    a(f"s_sub_u32 s76, {CHB + C_KE + 2*252 - 64}, s75")
    a(f"v_mul_u32_u24 v{vA}, {C_KE-C_KO}, v12")
    a(f"v_sub_u32 v{vA}, s76, v{vA}")
    a("v_lshlrev_b32 v15, 3, v13")
    a(f"v_sub_u32 v{vA}, v{vA}, v15")
    a(f"v_lshl_add_u32 v{vA}, v14, 4, v{vA}")
    a(f"s_sub_u32 s76, {CHB + C_U2 + 1024 - 64}, s75")
    a(f"v_mul_u32_u24 v{vB}, {C_U2-C_U0}, v12")
    a(f"v_sub_u32 v{vB}, s76, v{vB}")
    a(f"v_lshl_add_u32 v{vB}, v13, 6, v{vB}")
    a(f"v_lshl_add_u32 v{vB}, v14, 4, v{vB}")
    a(f"s_lshl_b32 s76, s{sE}, 9")
    a(f"v_add_u32 v{vB0}, s76, v{vB}")
    a(f"v_subrev_u32 v{vB0}, 512, v{vB0}")
    a(f"v_bfe_u32 v15, v{vLANE}, 2, 1")
    a("v_lshl_add_u32 v15, v15, 1, v12")
    a("v_xor_b32 v15, v15, v14")
    a("v_lshlrev_b32 v15, 4, v15")
    a("v_lshl_add_u32 v15, v13, 6, v15")
    a("v_lshl_add_u32 v16, v12, 12, v15")
    a(f"s_lshl_b32 s77, s{sW}, 13")
    a(f"s_add_u32 s76, s77, {R1B}")
    a(f"v_add_u32 v{vRW}, s76, v16")
    a(f"s_add_u32 s76, s77, {R2B}")
    a(f"v_add_u32 v{vRW2}, s76, v16")
    a("v_lshl_add_u32 v16, v12, 11, v15")
    a(f"s_lshl_b32 s77, s{sW}, 12")
    a(f"v_add_u32 v{vRW0}, s77, v16")
    a("v_bfe_u32 v15, v0, 3, 1")
    a("v_lshlrev_b32 v15, 1, v15")
    a("v_xor_b32 v15, v15, v0")
    a("v_lshlrev_b32 v15, 4, v15")
    a(f"v_add_u32 v{vRR0}, {R1B}, v15")
    a(f"v_xor_b32 v{vRR1}, 16, v{vRR0}")
    a(f"v_add_u32 v{vRQ0}, {R2B}, v15")
    a(f"v_xor_b32 v{vRQ1}, 16, v{vRQ0}")
    a(f"v_and_b32 v15, 511, v15")
    a(f"s_lshl_b32 s77, s{sW}, 9")
    a(f"v_add_u32 v{vRZ0}, s77, v15")
    a(f"v_xor_b32 v{vRZ1}, 16, v{vRZ0}")
    a(f"v_bfe_u32 v15, v{vLANE}, 5, 1")
    a(f"v_cmp_eq_u32 vcc, s{sE}, v15")
    a(f"v_mov_b32 v{vH0}, {BIG:#x}")
    a(f"v_cndmask_b32 v{vH0}, v{vH0}, v{vH}, vcc")
    a("v_lshlrev_b32 v10, 2, v0")
    a(f"v_add_u32 v10, {CHB}, v10")
    a("v_lshlrev_b32 v17, 3, v0")
    a(f"v_add_u32 v17, {BSB}, v17")
    a("v_lshlrev_b32 v11, 5, v0")
    a(f"v_add_u32 v11, {BSB}, v11")
    a(f"s_lshl_b32 s75, s{sJ}, 2")
    a(f"s_add_u32 s75, s75, s{sW}")
    a("s_mul_i32 s76, s75, 3")
    a("v_lshlrev_b32 v13, 1, v12")
    a("v_add_u32 v13, s76, v13")
    a("v_lshrrev_b32 v13, 3, v13")
    a(f"v_lshrrev_b32 v14, 1, v{vLANE}")
    a("v_min_u32 v14, 19, v14")
    a("v_mul_u32_u24 v14, 24, v14")
    a("v_add_lshl_u32 v13, v13, v14, 6")
    a(f"s_mov_b32 s76, {FW:#x}")
    a("s_mul_i32 s79, s75, 192")
    a(f"s_add_u32 s79, s79, {CSP:#x}")
    a("s_mul_i32 s78, s75, 3072")
    a(f"s_add_u32 s78, s78, {W1P:#x}")
    a(f"s_mov_b32 s{sT}, 0")
    a("s_waitcnt vmcnt(10)")
    a("s_cmp_eq_u32 s71, 0")
    a("s_cbranch_scc1 RCHK0")
    a("s_waitcnt vmcnt(0)")
    a.label("RCHK0")
    a("; @clearvm")
    a.label("RCHK")
    a(f"v_xor_b32 v16, s{sTAG}, v{XRV+3}")
    for r in [XRV + 7, XRV + 11, XRV + 15, STV + 3, STV + 7, STV + 11, STV + 15]:
        a(f"v_xor_b32 v18, s{sTAG}, v{r}")
        a("v_or_b32 v16, v16, v18")
    a("v_cmp_ne_u32 vcc, 0, v16")
    a("s_cbranch_vccz RDONE")
    a(f"s_add_u32 s{sT}, s{sT}, 1")
    a(f"s_cmp_gt_u32 s{sT}, {SPIN}")
    a("s_cbranch_scc1 RDONE")
    a("s_sleep 4")
    recv_loads()
    a("s_waitcnt vmcnt(0)")
    a("s_branch RCHK")
    a.label("RDONE")
    stamp(a, "recv")
    w1n = [0]

    def w1_load():
        n = w1n[0]
        w1n[0] += 1
        g = [f"buffer_load_dwordx4 {ar(4*n,4)}, v{vL16}, {sr(RWS)}, s78 offen offset:{1024*(n%3)} sc1"]
        if n % 3 == 2:
            g[0] += f" ; @def:w1_{n//3}"
            g.append("s_add_u32 s78, s78, 196608")
        return g

    nm = Lst()
    for i in range(4):
        st = STV + 4 * i
        nm(f"v_and_b32 v{st+3}, 0xffff0000, v{st+2}")
        nm(f"v_lshlrev_b32 v{st+2}, 16, v{st+2}")
    for i in range(4):
        st = STV + 4 * i
        nm(f"v_pk_mul_f32 {vr(st+2,2)}, {vr(st+2,2)}, {vr(st,2)} neg_lo:[1,0] neg_hi:[1,0]")
    for rc in range(3):
        X, U = 40 + 8 * rc, 64 + 8 * (rc & 1)
        for i in range(4):
            nm(f"v_lshlrev_b32 v{X+2*i}, 16, v{XRV+4*i+rc}")
            nm(f"v_and_b32 v{X+2*i+1}, 0xffff0000, v{XRV+4*i+rc}")
        for i in range(4):
            st = STV + 4 * i
            nm(f"v_pk_fma_f32 {vr(U+2*i,2)}, {vr(X+2*i,2)}, {vr(st,2)}, {vr(st+2,2)}")
        for i in range(4):
            nm(f"v_cvt_pk_bf16_f32 v{80+4*rc+i}, v{U+2*i}, v{U+2*i+1}")
        for i in range(4):
            nm(f"v_pk_fma_f32 {vr(X+2*i,2)}, {vr(U+2*i,2)}, s[{DSEL[rc][0]}:{DSEL[rc][1]}], {vr(X+2*i,2)}")
        for i in range(0, 4, 2):
            o = CHS * rc + 1024 * i + C_U0 + 1024
            nm(f"ds_write2st64_b32 v10, v{80+4*rc+i}, v{81+4*rc+i} offset0:{o//256} offset1:{o//256+4}")
        for i in range(4):
            nm(f"ds_write_b32 v10, v{80+4*rc+i} offset:{CHS*rc+1024*i+C_U2+1028}")
        for i in range(0, 4, 2):
            o = (8192 * rc + 2048 * i) // 512
            nm(f"ds_write2st64_b64 v17, {vr(X+2*i,2)}, {vr(X+2*i+2,2)} offset0:{o} offset1:{o+4}")
    emit(a, nm)
    a("s_waitcnt lgkmcnt(0)")
    a("s_barrier")
    stamp(a, "bar2")
    ACCS = [16, 48]
    EP = 80
    free = list(range(120, 240, 4))

    def pairs_of(rnd, k):
        ps = []
        for o in range(k + 1):
            if k + o <= 7 and (rnd > 0 or (k + o) & 1):
                ps.append((k, o))
                if o != k:
                    ps.append((o, k))
        return ps

    groups = [(rnd, r, k) for rnd in range(3) for r in range(2) for k in range(8)]
    fa, fb = {}, {}

    def issue(gk):
        rnd, r, k = gk
        fa[gk] = free.pop(0)
        fb[gk] = free.pop(0)
        ro = 64 * (1 - r) + CHS * rnd
        return [f"ds_read_b64 {vr(fa[gk],2)}, v{vA} offset:{512*(7-k)+ro}",
                f"ds_read_b64 {vr(fa[gk]+2,2)}, v{vA} offset:{512*(7-k)+ro+8}",
                f"ds_read_b128 {vr(fb[gk],4)}, v{vB0 if rnd == 0 else vB} offset:{512*k+ro} ; @def:cv{rnd}_{r}_{k}"]

    def last_level(rnd, idx):
        return max(k for k in range(8) for (q, c) in pairs_of(rnd, k) if idx in (q, c))

    def epi_fill(rnd, plain=True):
        f = [["; @use:red%d" % rnd + (" @use:w2st" if rnd == 0 else ""), "s_barrier"]]
        r0, r1, ws, ps = [(vRZ0, vRZ1, 4096, 2048), (vRR0, vRR1, 8192, 4096), (vRQ0, vRQ1, 8192, 4096)][rnd]
        f.append(f"ds_read_b128 {vr(EP,4)}, v11 offset:{8192*rnd}")
        f.append(f"ds_read_b128 {vr(EP+4,4)}, v11 offset:{8192*rnd+16}")
        for w in range(4):
            f.append(f"ds_read_b128 {vr(EP+8+8*w,4)}, v{r0} offset:{ws*w}")
            f.append(f"ds_read_b128 {vr(EP+12+8*w,4)}, v{r1} offset:{ws*w+ps} ; @def:ep{rnd}_{w}")
        ymap = [0, 4, 2, 6]
        for w in range(4):
            first = True
            for p in range(4):
                src = EP + 8 + 8 * w + ymap[p]
                if plain:
                    g = [f"v_add_f32 v{EP+2*p}, v{EP+2*p}, v{src}"]
                    if first:
                        g = [f"; @use:ep{rnd}_{w}"] + g
                    f.append(g)
                    f.append(f"v_add_f32 v{EP+2*p+1}, v{EP+2*p+1}, v{src+1}")
                else:
                    f.append(f"v_pk_add_f32 {vr(EP+2*p,2)}, {vr(EP+2*p,2)}, {vr(src,2)}")
                first = False
        for p in range(4):
            f.append(f"v_cvt_pk_bf16_f32 v{EP+8+p}, v{EP+2*p}, v{EP+2*p+1}")
        ch = f"s{sCH0}" if rnd == 0 else f"s{sCH1}"
        f.append(f"s_lshl_b32 s75, {ch}, 12")
        f.append(f"s_add_u32 s75, s75, {HT + (4096 if rnd == 2 else 0):#x}")
        f.append(f"buffer_store_dwordx4 {vr(EP+8,4)}, v{vH0 if rnd == 0 else vH}, {sr(RWS)}, s75 offen sc1 ; @def:ht{rnd}")
        return f

    a(f"s_lshl_b32 s74, s{sW}, 8")
    a("s_add_u32 s74, s74, s2")
    a("s_lshl_b32 s74, s74, 6")

    def hflag(rnd):
        return [f"s_add_u32 s75, s74, {FH + rnd*65536:#x}",
                f"; @use:ht{rnd}",
                f"buffer_store_dword v{vTAGV}, v{vFLAG}, {sr(RWS)}, s75 offen sc1"]

    PF = 6
    for gi in range(PF):
        emit(a, issue(groups[gi]))
    rq = []
    for rnd in range(3):
        acc = ACCS[rnd & 1]
        touched = set()
        stamp(a, f"r{rnd}")
        if rnd == 0:
            other = []
        else:
            if rnd == 2:
                poll(a, 13, 76, 14, pre_issued=True)
            other = epi_fill(rnd - 1)
            if rnd == 1:
                other.append(f"buffer_load_dword v14, v13, {sr(RWS)}, s76 offen sc1")
        nm_ = 0
        for gi, (rn, r, k) in enumerate(groups):
            if rn != rnd:
                continue
            ps = pairs_of(rnd, k)
            if gi + PF < len(groups):
                rq += issue(groups[gi + PF])
            if ps:
                while any(f"@def:cv{rnd}_{r}_{k}" in t for t in rq):
                    a(rq.pop(0))
                a(f"; @use:cv{rnd}_{r}_{k}")
            for pi, (q, c) in enumerate(ps):
                t = (q + c) >> 1 if rnd == 0 else q + c
                cin = vr(acc + 4 * t, 4) if t in touched else "0"
                touched.add(t)
                a(f"v_mfma_f32_16x16x32_bf16 {vr(acc+4*t,4)}, {vr(fa[(rnd,r,q)],4)}, {vr(fb[(rnd,r,c)],4)}, {cin}")
                nm_ += 1
                slots = 2 if pi + 1 < len(ps) else 1
                if rnd == 2 and nm_ % 5 == 2:
                    emit(a, [w1_load()])
                    slots -= 1
                if rq and slots:
                    a(rq.pop(0))
                    slots -= 1
                if len(rq) > 6 and slots:
                    a(rq.pop(0))
                    slots -= 1
                while slots and other and nm_ >= (3 if rnd else 8):
                    g = other.pop(0)
                    emit(a, [g])
                    slots -= 1
            for idx in range(8):
                if last_level(rnd, idx) == k:
                    free.append(fa[(rnd, r, idx)])
                    free.append(fb[(rnd, r, idx)])
        emit(a, other)
        stamp(a, f"w{rnd}")
        nt = 4 if rnd == 0 else 8
        order = [0, 1, 2, 3] if rnd == 0 else [0, 1, 2, 3, 4, 5, 6, 7]
        for c in order:
            tok = f" ; @def:red{rnd}" if c == order[-1] else ""
            a(f"ds_write_b128 v{[vRW0, vRW, vRW2][rnd]}, {vr(acc+4*c,4)} offset:{512*c}{tok}")
        if rnd == 0:
            a("s_lshl_b32 s75, s2, 1")
            a(f"s_add_u32 s75, s75, s{sW}")
            a("s_lshl_b32 s75, s75, 6")
            a(f"s_add_u32 s75, s75, {FW-128:#x}")
            a(f"s_cmp_ge_u32 s{sW}, 2")
            a(f"s_cselect_b32 s75, s75, {BIG:#x}")
            a("; @use:w1st @use:w2st")
            flag_store(a, 75)
        if rnd == 1:
            emit(a, [hflag(0)])
    assert not rq
    emit(a, epi_fill(2, plain=False))
    emit(a, [hflag(1)])
    stamp(a, "conv")
    vD0, vD1, vPL0, vPL1, vPD = 128, 129, 130, 131, 132
    vRA = 136
    vST = 140
    vRES = 141
    vSR, vMW, vMR = 144, 145, 146
    EPO = 148
    STT = 160
    HRES = [176, 182]
    CS = 188
    RS = 200
    ONE = 204
    NM = 208
    vSW = 212
    MS = 24576
    a(f"v_lshrrev_b32 v12, 3, v{vLANE}       ; L>>3")
    a(f"v_and_b32 v13, 7, v{vLANE}")
    a(f"s_lshl_b32 s72, s{sW}, 3")
    a("v_lshlrev_b32 v15, 5, v12")
    a("v_add3_u32 v15, v15, v13, s72       ; 32s'+8w+j")
    a(f"v_lshlrev_b32 v{vPL1}, 6, v15")
    a("v_and_b32 v15, 127, v15")
    a(f"v_lshlrev_b32 v{vPL0}, 7, v15       ; (2P)*64")
    a(f"s_lshr_b32 s72, s{sTB}, 2")
    a("s_lshl_b32 s72, s72, 14")
    a(f"s_add_u32 s73, s72, {FH + 65536:#x}")
    a(f"s_bfe_u32 s75, s{sTB}, 0x10001")
    a("s_lshl_b32 s75, s75, 6")
    a("s_add_u32 s72, s72, s75")
    a(f"s_add_u32 s72, s72, {FH:#x}")
    a(f"buffer_load_dword v{vPD}, v{vPL0}, {sr(RWS)}, s72 offen sc1")
    su = Lst()
    su(f"v_bfe_u32 v14, v{vLANE}, 4, 1")
    su(f"s_and_b32 s76, s{sW}, 1")
    su("s_lshl_b32 s76, s76, 1")
    su("v_or_b32 v14, s76, v14")
    su("v_lshlrev_b32 v14, 1, v14")
    su("v_xor_b32 v14, v14, v13")
    su("v_lshlrev_b32 v14, 4, v14")
    su(f"s_mul_i32 s76, s{sW}, 40")
    su("s_add_u32 s76, s76, 2")
    su("v_mul_u32_u24 v15, 5, v12")
    su("v_add_u32 v15, s76, v15")
    su(f"v_lshl_add_u32 v{vD0}, v15, 12, v14")
    su(f"v_lshrrev_b32 v15, 4, v{vLANE}")
    su("v_mul_u32_u24 v15, 5, v15")
    su("v_and_b32 v16, 1, v12")
    su("v_mul_u32_u24 v16, 3, v16")
    su(f"s_mul_i32 s76, s{sW}, 20")
    su("v_add3_u32 v15, v15, v16, s76")
    su(f"v_lshl_add_u32 v{vD1}, v15, 12, v14")
    su(f"s_lshl_b32 s76, s{sTB}, 8")
    su(f"s_add_u32 s76, s76, {HT:#x}")
    su(f"s_lshl_b32 s77, s{sW}, 10            ; m0 base")
    su(f"v_lshrrev_b32 v12, 4, v{vLANE}       ; g")
    su(f"v_bfe_u32 v13, v{vLANE}, 2, 2        ; rr")
    su(f"v_and_b32 v14, 3, v{vLANE}           ; cc")
    su("v_lshl_add_u32 v15, v12, 3, v13")
    su("v_lshlrev_b32 v15, 7, v15")
    su("v_lshl_add_u32 v15, v14, 3, v15")
    su("v_lshrrev_b32 v16, 1, v13")
    su("v_and_b32 v17, 1, v12")
    su("v_lshl_add_u32 v16, v17, 1, v16")
    su(f"v_xor_b32 v16, s{sW}, v16")
    su(f"v_lshl_add_u32 v{vRA}, v16, 5, v15")
    for ct in range(1, 4):
        su(f"v_xor_b32 v{vRA+ct}, {32*ct}, v{vRA}")
    for k in range(4):
        su(f"v_mov_b32 v{ONE+k}, s{sONE}")
    cl = []
    CT = 24
    a(f"v_and_b32 v20, 15, v{vLANE}")
    a("v_cmp_gt_u32 vcc, 4, v20")
    a("v_mul_u32_u24 v20, 12288, v20")
    a(f"v_and_b32 v21, 48, v{vLANE}")
    a("v_add_u32 v20, v20, v21")
    a(f"v_add_u32 v21, {16*12288}, v20")
    a(f"v_mov_b32 v22, {BIG:#x}")
    a("v_cndmask_b32 v21, v22, v21, vcc")
    for r in range(3):
        cl.append(f"buffer_load_dwordx4 {vr(CS+4*r,4)}, v20, {sr(RWS)}, s79 offen offset:{64*r} sc1")
        cl.append(f"buffer_load_dwordx4 {vr(CT+4*r,4)}, v21, {sr(RWS)}, s79 offen offset:{64*r} sc1")
    rest = interleave(a, su, cl + [w1_load() for _ in range(3)], start=1, every=4)
    assert not rest
    emit(a, [hflag(2)])

    def dma(h, s):
        drow = 160 * s if s < 4 else 80 * ((s - 4) & 7) + (1 if s >= 12 else 0)
        return [f"s_add_u32 m0, s77, {HALF*h+4096*s}",
                f"s_add_u32 s75, s76, {drow*4096+128*h}",
                f"buffer_load_dwordx4 v{vD0 if s < 4 else vD1}, {sr(RWS)}, s75 offen sc1 lds ; @def:d{h}_{s}"]

    poll(a, vPL0, 72, vPD, pre_issued=True)
    stamp(a, "pollH0")
    for s in range(4):
        emit(a, [dma(0, s)])
    a(f"buffer_load_dword v{vPD}, v{vPL1}, {sr(RWS)}, s73 offen sc1")
    su = Lst()
    su(f"s_and_b32 s74, s{sJ}, 1")
    su("s_lshl_b32 s74, s74, 2")
    su(f"s_add_u32 s74, s74, s{sW}            ; subset")
    su(f"s_mul_i32 s75, s74, {80*128}")
    su(f"s_lshr_b32 s74, s{sJ}, 3")
    su(f"s_mul_i32 s74, s74, {HALF}")
    su("s_add_u32 s75, s75, s74")
    su(f"s_bfe_u32 s74, s{sJ}, 0x20001")
    su("v_lshl_add_u32 v15, v12, 2, v13")
    su("v_lshlrev_b32 v15, 7, v15")
    su("v_lshl_add_u32 v15, v14, 3, v15")
    su("v_lshrrev_b32 v16, 1, v13")
    su("v_and_b32 v17, 2, v12")
    su("v_or_b32 v16, v16, v17")
    su("v_xor_b32 v16, s74, v16")
    su("v_lshl_add_u32 v15, v16, 5, v15")
    su(f"v_add_u32 v{vST}, s75, v15")
    su(f"s_lshr_b32 s74, s{sJ}, 3")
    su("s_lshl_b32 s74, s74, 1")
    su(f"s_lshr_b32 s75, s{sW}, 1")
    su("s_add_u32 s74, s74, s75")
    su(f"s_and_b32 s75, s{sJ}, 7")
    su("s_lshl_b32 s75, s75, 4              ; 16*db")
    su(f"s_and_b32 s79, s{sW}, 1")
    su("s_lshl_b32 s79, s79, 5")
    for sg in range(3):
        if sg < 2:
            su("v_lshl_add_u32 v15, v12, 3, v13")
            su(f"v_add3_u32 v15, v15, s79, {4*sg}")
        else:
            su("v_lshl_add_u32 v15, v12, 2, v13")
            su("v_add_u32 v15, 64, v15")
        su("v_mul_u32_u24 v16, 205, v15")
        su("v_lshrrev_b32 v16, 10, v16          ; dl/5")
        su("v_mul_u32_u24 v17, 5, v16")
        su("v_sub_u32 v17, v15, v17             ; r5")
        su("v_add_u32 v16, s75, v16             ; P")
        su("v_cmp_lt_u32 vcc, 2, v17")
        su("v_lshlrev_b32 v18, 1, v16")
        su("v_subrev_u32 v19, 3, v17")
        su("v_cndmask_b32 v19, v17, v19, vcc")
        su("v_addc_co_u32 v18, vcc, 0, v18, vcc ; 2P + (r5>=3)")
        su("v_lshl_add_u32 v18, v19, 8, v18")
        su("v_cmp_eq_u32 vcc, 2, v17")
        su("v_add_u32 v18, 128, v18")
        su("s_nop 0")
        su("v_cndmask_b32 v18, v18, v16, vcc    ; kappa")
        su("v_bfe_u32 v16, v18, 1, 1")
        su("v_bfe_u32 v17, v18, 3, 1")
        su("v_lshl_add_u32 v16, v17, 1, v16")
        su("v_xor_b32 v16, s74, v16")
        su("v_lshlrev_b32 v18, 7, v18")
        su("v_lshl_add_u32 v18, v16, 5, v18")
        su(f"v_lshl_add_u32 v{vRES+sg}, v14, 3, v18")
    su(f"v_lshlrev_b32 v{vSR}, 2, v{vLANE}")
    su(f"v_add_u32 v{vSR}, s77, v{vSR}        ; 1024w + 4lane")
    for rl in range(3):
        su(f"s_mul_i32 s74, s{sW}, 3")
        su(f"s_add_u32 s74, s74, {rl}")
        su("s_lshr_b32 s75, s74, 2")
        su("s_lshl_b32 s75, s75, 12")
        su("s_and_b32 s74, s74, 3")
        su("s_lshl_b32 s74, s74, 8")
        su("s_add_u32 s74, s74, s75")
        su(f"v_add_u32 v{vSW+rl}, s74, v{vSR}")
        for ct in range(1, 4):
            su(f"v_xor_b32 v{vSW+3*ct+rl}, {1024*ct}, v{vSW+rl}")
    su(f"v_and_b32 v15, 15, v{vLANE}")
    su("v_lshlrev_b32 v15, 2, v15")
    su(f"s_lshl_b32 s74, s{sW}, 6")
    su(f"s_add_u32 s74, s74, {MS}")
    su(f"v_add_u32 v{vMW}, s74, v15")
    for k in range(0, 12, 2):
        su(f"v_pk_add_f32 {vr(CS+k,2)}, {vr(CS+k,2)}, {vr(CT+k,2)}")
    for sh in (8, 4, 2, 1):
        for k in range(12):
            su(f"v_add_f32_dpp v{CS+k}, v{CS+k}, v{CS+k} row_ror:{sh} row_mask:0xf bank_mask:0xf")
    rest = interleave(a, su, [w1_load() for _ in range(12)], start=0, every=14)
    assert not rest
    poll(a, vPL1, 73, vPD, pre_issued=True)
    for s in range(4, 12):
        emit(a, [dma(0, s)])
    a("s_add_u32 s73, s73, 65536")
    BF = 96

    def reads(h, s):
        o = []
        gs = 20 * h + s
        for ct in range(4):
            for hh in range(2):
                tok = f" ; @def:bf{gs}" if ct == 3 and hh == 1 else ""
                o.append(f"ds_read_b64_tr_b16 {vr(BF+16*(gs&1)+4*ct+2*hh,2)}, v{vRA+ct} offset:{4096*(gs%16)+512*hh}{tok}")
        if gs % 16 == 15:
            o += [f"v_add_u32 v{vRA+ct}, 0x10000, v{vRA+ct}" for ct in range(4)]
        return o

    def mf(h, s):
        gs = 20 * h + s
        o = []
        for ct in range(4):
            for r in range(3):
                acc = vr(48 * h + 12 * ct + 4 * r, 4)
                o.append(f"v_mfma_f32_16x16x32_bf16 {acc}, {ar(12*s+4*r,4)}, {vr(BF+16*(gs&1)+4*ct,4)}, {'0' if s == 0 else acc}")
            if ct == 0:
                o.append(f"v_mfma_f32_16x16x32_bf16 {vr(RS,4)}, {vr(ONE,4)}, {vr(BF+16*(gs&1),4)}, {'0' if s == 0 else vr(RS,4)}")
        return o

    def sync(toks):
        a("; " + " ".join("@use:" + t for t in toks))
        a("s_barrier")

    def stats_block(h):
        lab = f"NOST{h}"
        a(f"s_cmp_{'lt' if h == 0 else 'ge'}_u32 s{sJ}, 8")
        a(f"s_cbranch_scc0 {lab}")
        for b in range(5):
            a(f"ds_read_b64_tr_b16 {vr(STT+2*b,2)}, v{vST} offset:{2048*b}")
        a(f"v_and_b32 v{STT+12}, 15, v{vLANE}")
        a(f"v_lshlrev_b32 v{STT+12}, 6, v{STT+12}")
        a(f"v_lshrrev_b32 v{STT+13}, 5, v{vLANE}")
        a(f"v_lshl_add_u32 v{STT+12}, v{STT+13}, 2, v{STT+12}")
        a(f"s_lshl_b32 s75, s{sTB}, 3")
        a(f"s_lshr_b32 s74, s{sJ}, 1")
        a("s_add_u32 s75, s75, s74")
        a("s_lshl_b32 s75, s75, 10")
        a(f"s_and_b32 s74, s{sJ}, 1")
        a("s_lshl_b32 s74, s74, 2")
        a(f"s_add_u32 s74, s74, s{sW}")
        a("s_lshl_b32 s74, s74, 3")
        a("s_add_u32 s75, s75, s74")
        a(f"s_add_u32 s75, s75, {ST2:#x}")
        for k in range(10):
            a(f"v_dot2_f32_bf16 v{STT+10}, v{STT+k}, s{sONE}, {'0' if k == 0 else 'v%d' % (STT+10)}")
            a(f"v_dot2_f32_bf16 v{STT+11}, v{STT+k}, v{STT+k}, {'0' if k == 0 else 'v%d' % (STT+11)}")
        a(f"v_permlane32_swap_b32 v{STT+10}, v{STT+11}")
        a(f"v_add_f32 v{STT+10}, v{STT+10}, v{STT+11}")
        a(f"v_mov_b32 v{STT+11}, v{STT+10}")
        a(f"v_permlane16_swap_b32 v{STT+10}, v{STT+11}")
        a(f"v_add_f32 v{STT+10}, v{STT+10}, v{STT+11}")
        a(f"buffer_store_dword v{STT+10}, v{STT+12}, {sr(RWS)}, s75 offen sc1")
        a.label(lab)

    def res_reads(h):
        o = []
        for sg in range(3):
            o.append(f"ds_read_b64_tr_b16 {vr(HRES[h]+2*sg,2)}, v{vRES+sg}" + (f" ; @def:res{h}" if sg == 2 else ""))
        if h == 0:
            o += [f"v_add_u32 v{vRES+sg}, {HALF}, v{vRES+sg}" for sg in range(3)]
        return o

    def mean_write(h):
        return [f"v_mul_f32 v{NM}, {f2u(-1.0/D):#x}, v{RS}",
                f"ds_write_b32 v{vMW}, v{NM} offset:{256*h} ; @def:mw{h}"]

    def mean_reads(h):
        o = []
        for ct in range(1, 4):
            o.append(f"v_xor_b32 v{vMR}, {64*ct}, v{vMW}")
            o.append(f"ds_read_b32 v{NM+ct}, v{vMR} offset:{256*h}")
        return o

    def epi1(h, plain):
        so = 12288 * h
        o = []
        for ct in range(4):
            bs = [48 * h + 12 * ct + 4 * r for r in range(3)]
            if plain:
                for r, b in enumerate(bs):
                    for k in range(4):
                        o.append(f"v_fma_f32 v{b+k}, v{NM+ct}, v{CS+4*r+k}, v{b+k}")
            else:
                sel = "op_sel:[1,0,0] op_sel_hi:[1,1,1]" if ct & 1 else "op_sel:[0,0,0] op_sel_hi:[0,1,1]"
                for r, b in enumerate(bs):
                    for k in (0, 2):
                        o.append(f"v_pk_fma_f32 {vr(b+k,2)}, {vr(NM+(ct&2),2)}, {vr(CS+4*r+k,2)}, {vr(b+k,2)} {sel}")
            for b in bs:
                o.append(f"v_max_f32 v{b}, 0, v{b}")
                o.append(f"v_max_f32 v{b+1}, 0, v{b+1}")
            for b in bs:
                if plain:
                    o.append(f"v_mul_f32 v{b}, v{b}, v{b+2}")
                    o.append(f"v_mul_f32 v{b+1}, v{b+1}, v{b+3}")
                else:
                    o.append(f"v_pk_mul_f32 {vr(b,2)}, {vr(b,2)}, {vr(b+2,2)}")
            for b in bs:
                o.append(f"v_cvt_pk_bf16_f32 v{b}, v{b}, v{b+1}")
            for r, b in enumerate(bs):
                tok = f" ; @def:stg{h}" if ct == 3 and r == 2 else ""
                o.append(f"ds_write_b32 v{vSW+3*ct+r}, v{b} offset:{so}{tok}")
        return o

    def epi2(h):
        so = 48 * h
        o = [[f"; @use:stg{h}", "s_barrier"]]
        for ksl in range(3):
            b = EPO + 4 * ksl
            off = so + 16 * ksl
            o.append(f"ds_read2st64_b32 {vr(b,2)}, v{vSR} offset0:{off} offset1:{off+1}")
            o.append(f"ds_read2st64_b32 {vr(b+2,2)}, v{vSR} offset0:{off+2} offset1:{off+3}")
        o += [f"s_lshl_b32 s71, s{sTB}, 3",
              f"s_add_u32 s71, s71, s{sW}",
              "s_mul_i32 s71, s71, 49152",
              f"s_mul_i32 s74, s{sJ}, 3072",
              "s_add_u32 s71, s71, s74",
              f"s_add_u32 s74, s71, {HM + 4*49152*h:#x}"]
        for ksl in range(3):
            tok = f" ; @def:hm{h}" if ksl == 2 else ""
            o.append(f"buffer_store_dwordx4 {vr(EPO+4*ksl,4)}, v{vL16}, {sr(RWS)}, s74 offen offset:{1024*ksl} sc1{tok}")
        return o

    def mflag(h):
        return [f"s_lshl_b32 s71, s{sTB}, 4",
                f"s_add_u32 s71, s71, s{sJ}",
                "s_lshl_b32 s71, s71, 2",
                f"s_add_u32 s71, s71, s{sW}",
                "s_lshl_b32 s71, s71, 6",
                f"s_add_u32 s71, s71, {FM + 65536*h:#x}",
                [f"; @use:hm{h}",
                 f"buffer_store_dword v{vTAGV}, v{vFLAG}, {sr(RWS)}, s71 offen sc1"]]

    vW2P, vW2M = 245, 246
    w2n = [0]

    def w2_load():
        n = w2n[0]
        w2n[0] += 1
        rt = n % 5
        v = vW2P if rt < 2 else vW2M if rt < 4 else vL16
        off = {0: 0, 1: 1024, 2: 0, 3: 1024, 4: 2048}[rt]
        g = [f"buffer_load_dwordx4 {ar(4*n,4)}, v{v}, {sr(RWS)}, s{79 if rt < 4 else 78} offen offset:{off} sc1"]
        if rt == 4:
            g += ["s_add_u32 s78, s78, 5120", "s_add_u32 s79, s79, 5120"]
        return g

    def w2_setup():
        return [f"s_and_b32 s74, s{sJ}, 7", "s_mul_i32 s74, s74, 245760", f"s_mul_i32 s71, s{sW}, 61440", "s_add_u32 s79, s74, s71",
                f"s_add_u32 s79, s79, {W2P:#x}", "s_add_u32 s78, s79, 2048",
                f"s_and_b32 s74, s{sW}, 1", "s_lshl_b32 s74, s74, 11", f"v_add_u32 v{vW2P}, s74, v{vL16}", f"v_xor_b32 v{vW2M}, 0x800, v{vW2P}"]

    def flat(lst):
        o = []
        for g in lst:
            if isinstance(g, list) and not any("@use" in t for t in g):
                o += g
            else:
                o.append(g)
        return o

    def step(main, rd, extra, vm=()):
        rd = list(rd)
        extra = flat(extra)
        vm = list(vm)
        pos = {}
        for k, g in enumerate(vm):
            pos[1 + (k * len(main)) // len(vm)] = g
        carry = []
        for i, m in enumerate(main):
            a(m)
            slots = 2 if i + 1 < len(main) else 1
            if i in pos:
                carry += pos[i]
            if rd:
                a(rd.pop(0))
                slots -= 1
            while slots and carry:
                a(carry.pop(0))
                slots -= 1
            while slots and extra:
                emit(a, [extra.pop(0)])
                slots -= 1
        emit(a, rd)
        emit(a, carry)
        return extra

    sync([f"d0_{s}" for s in range(4)])
    stamp(a, "acts")
    emit(a, reads(0, 0))
    a(f"buffer_load_dword v{vPD}, v{vPL1}, {sr(RWS)}, s73 offen sc1")
    print("W1 loads before pass A:", w1n[0])
    dq = [dma(0, k) for k in range(12, 20)] + [dma(1, k) for k in range(20)]
    for s in range(20):
        if s == 2:
            poll(a, vPL1, 73, vPD, pre_issued=True)
        if s in (3, 7, 11, 15):
            sync([f"d0_{k}" for k in range(s + 1, s + 5)])
        if s == 19:
            sync([f"d1_{k}" for k in range(0, 6)])
        stamp(a, f"a{s}")
        a(f"; @use:bf{s} @use:w1_{s}")
        vm = []
        if s >= 2:
            vm += [dq.pop(0) for _ in range(min(len(dq), 2 if (s < 6 or w1n[0] >= 60) else 1))]
        while len(vm) < 3 and w1n[0] < 60:
            vm.append(w1_load())
        assert w1n[0] >= min(60, 3 * (s + 3)), (s, w1n[0])
        extra = w2_setup() if s == 18 else []
        rest = step(mf(0, s), reads(0, s + 1) if s < 19 else reads(1, 0) + res_reads(0), extra, vm)
        emit(a, rest)
    print("DMA left after pass A:", len(dq))
    stamp(a, "passA")
    stats_block(0)
    sync(["res0"])
    emit(a, mean_write(0))
    q = [["; @use:mw0", "s_barrier"]] + mean_reads(0) + epi1(0, True) + epi2(0)
    fdone = None
    for s in range(20):
        if s == 5:
            sync([f"d1_{k}" for k in range(6, 12)])
        if s == 11:
            sync([f"d1_{k}" for k in range(12, 20)])
        stamp(a, f"b{s}")
        a(f"; @use:bf{20+s}")
        vm = [dq.pop(0) for _ in range(min(len(dq), 2))]
        while len(vm) < 2 and w2n[0] < 3 * s:
            vm.append(w2_load())
        if fdone is not None and s == fdone + 5:
            q = mflag(0)
        main = mf(1, s)
        if s == 19:
            q = 4 * ["s_nop 0"] + mean_write(1)
            main = [main[3]] + main[:3] + main[4:]
        had = bool(q)
        q = step(main, reads(1, s + 1) if s < 19 else res_reads(1), q, vm)
        if had and not q and fdone is None:
            fdone = s
            print("epilogue A done in step", s)
    assert not q
    stamp(a, "passB")
    sync(["mw1"])
    emit(a, mean_reads(1))
    vPM = 130
    a(f"s_lshr_b32 s72, s{sJ}, 3            ; gamma")
    a(f"v_bfe_u32 v128, v{vLANE}, 1, 2")
    a(f"s_lshl_b32 s73, s{sW}, 2")
    a("v_add_u32 v128, s73, v128")
    a("v_lshlrev_b32 v128, 2, v128")
    a(f"v_and_b32 v129, 1, v{vLANE}")
    a("s_lshl_b32 s73, s72, 1")
    a("v_add3_u32 v128, v128, v129, s73    ; 4j+wave")
    a(f"s_lshr_b32 s74, s{sW}, 1")
    a("s_add_u32 s73, s73, s74             ; ctl")
    a("s_lshl_b32 s74, s73, 3")
    a(f"v_and_b32 v129, 7, v{vLANE}")
    a("v_add_u32 v129, s74, v129")
    a(f"v_and_b32 v131, 8, v{vLANE}")
    a("v_cmp_eq_u32 vcc, 0, v131")
    a(f"v_cndmask_b32 v{vPM}, v129, v128, vcc")
    a("v_add_u32 v129, 32, v129")
    a(f"v_cndmask_b32 v{vPM+1}, v129, v128, vcc")
    a(f"v_lshlrev_b32 v{vPM}, 6, v{vPM}")
    a(f"v_lshlrev_b32 v{vPM+1}, 6, v{vPM+1}")
    a(f"s_lshl_b32 s76, s{sTB}, 12")
    a(f"s_add_u32 s76, s76, {FM:#x}")
    wl = []
    while w2n[0] < 60:
        wl.append(w2_load())
    print("W2 loads left after pass B:", len(wl))
    wl = interleave(a, epi1(1, False), wl, start=0, every=12)
    stats_block(1)
    emit(a, epi2(1))
    a(f"buffer_load_dword v{vPD}, v{vPM}, {sr(RWS)}, s76 offen sc1")
    su = Lst()
    vHM = 136
    su(f"s_lshr_b32 s74, s{sW}, 1")
    su("s_mul_i32 s75, s74, 49152")
    su(f"v_add_u32 v{vHM}, s75, v{vL16}")
    su("s_xor_b32 s74, s74, 1")
    su("s_mul_i32 s75, s74, 49152")
    su(f"v_add_u32 v{vHM+1}, s75, v{vL16}")
    su(f"s_lshl_b32 s74, s{sTB}, 2")
    su("s_add_u32 s74, s74, s72")
    su("s_mul_i32 s72, s74, 98304")
    su(f"s_mul_i32 s74, s{sW}, 12288")
    su("s_add_u32 s72, s72, s74")
    su(f"s_add_u32 s72, s72, {HM:#x}")
    vS2 = 138
    su(f"v_and_b32 v128, 15, v{vLANE}")
    su(f"v_lshlrev_b32 v{vS2}, 6, v128")
    su(f"v_and_b32 v129, 48, v{vLANE}")
    su(f"v_add_u32 v{vS2}, v{vS2}, v129")
    su(f"s_lshl_b32 s74, s{sTB}, 3")
    su("s_add_u32 s74, s74, s73")
    su("s_lshl_b32 s73, s74, 10")
    su(f"s_add_u32 s73, s73, {ST2:#x}")
    vO4, vO2 = 139, 140
    su(f"s_mul_i32 s77, s74, {16*1280}")
    su(f"s_and_b32 s74, s{sJ}, 7")
    su("s_mul_i32 s74, s74, 160")
    su("s_add_u32 s77, s77, s74")
    su("v_mul_u32_u24 v128, 1280, v128")
    su(f"s_and_b32 s74, s{sW}, 1")
    su("s_lshl_b32 s75, s74, 6")
    su(f"v_add3_u32 v{vO4}, v128, v129, s75")
    su("v_lshrrev_b32 v129, 1, v129")
    su(f"s_mul_i32 s75, s74, {BIG:#x}")
    su("s_add_u32 s75, s75, 128")
    su(f"v_add3_u32 v{vO2}, v128, v129, s75")
    srd(su, ROUT, sOUT, SZ_X)
    wl = interleave(a, su, wl, start=0, every=8)
    poll(a, vPM, 76, vPD, pre_issued=True)
    emit(a, mflag(1))
    stamp(a, "pollMA")
    HF = 0
    SV = 228

    def hm_loads(h):
        o = []
        for ks in range(12):
            for c in range(2):
                g = [f"buffer_load_dwordx4 {vr(HF+8*ks+4*c,4)}, v{vHM+c}, {sr(RWS)}, s72 offen offset:{1024*(ks&3)} sc1"]
                if c == 1 and (ks & 3) == 3:
                    g.append(f"s_add_u32 s72, s72, {4096 if ks < 11 else 4*49152-8192}")
                o.append(g)
        return o

    a(f"buffer_load_dwordx4 {vr(SV,4)}, v{vS2}, {sr(RWS)}, s73 offen sc1")
    RB = 32768
    vQ = 141
    su = Lst()
    su(f"s_mul_i32 s74, s{sW}, 10240")
    su(f"s_add_u32 s74, s74, {RB}")
    su(f"s_lshr_b32 s75, s{sW}, 1")
    su("s_mul_i32 s75, s75, 5120")
    su(f"s_and_b32 s66, s{sW}, 1")
    su("s_lshl_b32 s66, s66, 11")
    su("s_add_u32 s67, s74, s75")
    su(f"v_add_u32 v{vQ+1}, s67, v{vL16}")
    su("s_xor_b32 s67, s66, 0x800")
    su(f"v_add_u32 v{vQ}, s67, v{vQ+1}")
    su(f"v_add_u32 v128, s66, v{vQ+1}")
    su("s_sub_u32 s67, 5120, s75")
    su("s_add_u32 s67, s67, s74")
    su(f"v_add_u32 v{vQ+4}, s67, v{vL16}      ; c'=1 base")
    su(f"v_add_u32 v{vQ+2}, s66, v{vQ+4}")
    su("s_xor_b32 s67, s66, 0x800")
    su(f"v_add_u32 v{vQ+3}, s67, v{vQ+4}")
    su(f"s_add_u32 s67, s75, {RB}")
    su(f"v_add_u32 v{vQ+6}, s67, v{vL16}")
    su(f"v_add_u32 v{vQ+5}, s66, v{vQ+6}")

    def scale_calc():
        o = Lst()
        o(f"v_add_f32 v{SV}, v{SV}, v{SV+2}")
        o(f"v_add_f32 v{SV+1}, v{SV+1}, v{SV+3}")
        for sw in ("v_permlane32_swap_b32", "v_permlane16_swap_b32"):
            o(f"v_mov_b32 v{SV+2}, v{SV}")
            o(f"v_mov_b32 v{SV+3}, v{SV+1}")
            o(f"{sw} v{SV}, v{SV+2}")
            o(f"{sw} v{SV+1}, v{SV+3}")
            o(f"v_add_f32 v{SV}, v{SV}, v{SV+2}")
            o(f"v_add_f32 v{SV+1}, v{SV+1}, v{SV+3}")
        ln_den(o, SV, SV + 1, SV + 2)
        o(f"v_mul_f32 v{SV+4}, v{SV+1}, v{SV+1}")
        return list(o)

    AC = 188
    RDR = [96 + 4 * k for k in range(8)] + [148 + 4 * k for k in range(4)]
    HX = 164

    def g2_pass(h, loads, pre):
        emit(a, loads[:pre])
        loads = loads[pre:]
        fill = list(su) if h == 0 else []
        fill += scale_calc()
        for k in range(6):
            fill.append(f"v_lshlrev_b32 v{HX+2*k}, 16, v{HRES[h]+k}")
            fill.append(f"v_and_b32 v{HX+2*k+1}, 0xffff0000, v{HRES[h]+k}")
        n = 0
        for ks in range(12):
            for c in range(2):
                for r in range(5):
                    acc = vr(AC + 20 * c + 4 * r, 4)
                    a(f"v_mfma_f32_16x16x32_bf16 {acc}, {ar(20*ks+4*r,4)}, {vr(HF+8*ks+4*c,4)}, {'0' if ks == 0 else acc}")
                    n += 1
                    if loads and n % 3 == 0:
                        emit(a, [loads.pop(0)])
                    elif fill:
                        a(fill.pop(0))
        assert not loads and not fill
        ro = 40960 * h
        wr = [(vQ, 8, 0), (vQ, 12, 1024), (vQ + 1, 16, 4096), (128, 0, 0), (128, 4, 1024),
              (vQ + 2, 20, 0), (vQ + 2, 24, 1024), (vQ + 3, 28, 0), (vQ + 3, 32, 1024), (vQ + 4, 36, 4096)]
        for va_, r, off in wr:
            a(f"ds_write_b128 v{va_}, {vr(AC+r,4)} offset:{ro+off}")

    def g2_fin(h):
        ro = 40960 * h
        a("s_waitcnt lgkmcnt(0)")
        a("s_barrier")
        if h == 1:
            a(f"v_add_u32 v{vQ+5}, {ro}, v{vQ+5}")
            a(f"v_add_u32 v{vQ+6}, {ro}, v{vQ+6}")
        for sw in range(4):
            a(f"ds_read_b128 {vr(RDR[3*sw],4)}, v{vQ+5} offset:{10240*sw}")
            a(f"ds_read_b128 {vr(RDR[3*sw+1],4)}, v{vQ+5} offset:{10240*sw+1024}")
            a(f"ds_read_b128 {vr(RDR[3*sw+2],4)}, v{vQ+6} offset:{10240*sw+4096}")
        for sw in range(1, 4):
            for t in range(3):
                for k in (0, 2):
                    a(f"v_pk_add_f32 {vr(RDR[t]+k,2)}, {vr(RDR[t]+k,2)}, {vr(RDR[3*sw+t]+k,2)}")
        for k in range(6):
            a(f"v_pk_fma_f32 {vr(96+2*k,2)}, {vr(96+2*k,2)}, {vr(SV+4,2)}, {vr(HX+2*k,2)} op_sel:[0,0,0] op_sel_hi:[1,0,1]")
        for k in range(6):
            a(f"v_cvt_pk_bf16_f32 v{112+k}, v{96+2*k}, v{97+2*k}")
        a(f"buffer_store_dwordx4 v[112:115], v{vO4}, {sr(ROUT)}, s77 offen")
        a(f"buffer_store_dwordx2 v[116:117], v{vO2}, {sr(ROUT)}, s77 offen")

    hl = hm_loads(0)
    mix = []
    for k in range(max(len(hl), len(wl))):
        if k < len(hl):
            mix.append(hl[k])
        if k < len(wl):
            mix.append(wl[k])
    print("g2A loads", len(mix))
    g2_pass(0, mix, 10)
    a("s_add_u32 s76, s76, 65536")
    a(f"buffer_load_dword v{vPD}, v{vPM+1}, {sr(RWS)}, s76 offen sc1")
    g2_fin(0)
    stamp(a, "g2A")
    poll(a, vPM + 1, 76, vPD, pre_issued=True)
    stamp(a, "pollMB")
    a("s_add_u32 s73, s73, 4096")
    a(f"s_add_u32 s77, s77, {64*1280}")
    a(f"buffer_load_dwordx4 {vr(SV,4)}, v{vS2}, {sr(RWS)}, s73 offen sc1")
    g2_pass(1, hm_loads(1), 10)
    g2_fin(1)
    a("s_cmp_eq_u32 s2, 0")
    a("s_cbranch_scc0 NOGEN")
    a(f"s_cmp_eq_u32 s{sW}, 0")
    a("s_cbranch_scc0 NOGEN")
    a(f"buffer_store_dword v{vTAGV}, v{vFLAG}, {sr(RWS)}, 0 offen sc1")
    a.label("NOGEN")
    if PROF:
        a("s_waitcnt vmcnt(0)")
        a("s_memtime s[100:101]")
        a("s_memrealtime s[76:77]")
        a("s_waitcnt lgkmcnt(0)")
        a("v_mov_b32 v1, 0")
        for k in range(11):
            a(f"v_writelane_b32 v1, s{80+2*k}, {k}")
        a("v_writelane_b32 v1, s76, 11")
        a(f"s_add_u32 s40, s{sWS}, {PROFBASE:#x}")
        a(f"s_addc_u32 s41, s{sWS+1}, 0")
        a("s_mov_b32 s42, 0x40000")
        a(f"v_lshlrev_b32 v2, 2, v{vLANE}")
        a("s_lshl_b32 s72, s2, 2")
        a(f"s_add_u32 s72, s72, s{sW}")
        a("s_lshl_b32 s72, s72, 7")
        a("s_mov_b64 exec, 0xffffffff")
        a("buffer_store_dword v1, v2, s[40:43], s72 offen")
    a.label("END")
    a("s_endpgm")
    return a


def main(path):
    ref = open(f"cdna_kernels/{NAME}.s.ref").read().split("\n")
    head = [l for l in ref if l.startswith(";") and "@launch" not in l]
    out = head[:]
    out.append("; @launch grid=(256,1,1) block=(256,1,1) lds=163840")
    out.append('.amdgcn_target "amdgcn-amd-amdhsa--gfx950"')
    out.append(".text")
    a = gen()
    for i in a.ins:
        if "CODE_LIM" in i.text:
            i.text = i.text.replace("CODE_LIM", "0x1230")
    b, d, e = kernel_text(NAME + "_kernel", a, auto=True, align=True)
    size = sum(getattr(i, "size", 0) for i in a.ins)
    lim = (size - 256) & ~15
    b = b.replace("v_min_u32 v2, 0x1230, v2", f"v_min_u32 v2, {lim:#x}, v2")
    out.append(b)
    out.append('.section .rodata,"a"')
    out.append(d)
    open(path, "w").write("\n".join(out))


if __name__ == "__main__":
    main(sys.argv[1] if len(sys.argv) > 1 else f"cdna_kernels/{NAME}.s")
```

```python
import os
import sys
import struct
from asmgen import Asm, kernel_text

NAME = "sequential_preLN__ssm_conv_s4__glu_gated_reglu__prompt"
L, D, N, F = 2048, 640, 192, 1536
PROF = bool(os.environ.get("PROF", ""))
PROFBASE = 0x2000000

FW2 = 0x1000
GEN, FW, FH, FM, S1, ST2 = 0x0, 0x70000, 0x10000, 0x40000, 0x60000, 0x80000
CSP = 0xC0000
XR, HT, W1P, W2P, HM, WS_END = 0x100000, 0x500000, 0x800000, 0xC00000, 0xE00000, 0x1400000
SZ_X = D * L * 2
SZ_W = D * F * 2
TAB, TABS = 0, 2816
STG, STGS = 25600, 15232
XQ = 88832
WTS = 140288
R0B, R1B = 0, 25600
BSB = 58368
CHB, CHS = 83200, 18944
C_U0, C_U2, C_KO, C_KE = 0, 5152, 10304, 14528
R2B = CHB
HALF = 81920
SPIN = 200000

sWG, sW = 2, 3
sX, sPAR, sLDT, sDSK, sWGP, sWUP, sWDP, sOUT, sWS = 4, 6, 18, 20, 24, 26, 28, 30, 34
RWS, RX, RW, RWD, ROUT = 36, 40, 44, 48, 52
sTAG = 56
sP, sE, sCH0, sCH1 = 57, 58, 59, 60
sTB, sJ = 61, 62
sLO, sHI, sONE = 63, 64, 65
sD0 = 22
DSEL = [(22, 23), (66, 67), (68, 69)]
sT = 70
vLANE, vL16, vFLAG, vTAGV, vW1 = 240, 241, 242, 243, 244
BIG = 0x7FFFFFF0


def f2u(x):
    return struct.unpack("<I", struct.pack("<f", x))[0]


def vr(b, n):
    return f"v[{b}:{b+n-1}]"


def ar(b, n):
    return f"a[{b}:{b+n-1}]"


def sr(b, n=4):
    return f"s[{b}:{b+n-1}]"


class Lst(list):
    def __call__(self, t):
        self.append(t)


PSEL = [x for x in os.environ.get("PROF", "").split(",") if x]
assert len(PSEL) <= 8


def stamp(a, name):
    if name in PSEL:
        k = PSEL.index(name)
        a(f"s_memtime s[{84+2*k}:{85+2*k}] ; stamp")


def srd(a, s, base, size):
    a(f"s_mov_b32 s{s}, s{base}")
    a(f"s_mov_b32 s{s+1}, s{base+1}")
    a(f"s_mov_b32 s{s+2}, {size:#x}")
    a(f"s_mov_b32 s{s+3}, 0x20000")


def interleave(a, main, fill, start=0, per=1, every=1):
    k = 0
    for i, m in enumerate(main):
        for t in (m if isinstance(m, list) else [m]):
            a(t)
        if i >= start and (i - start) % every == 0:
            for _ in range(per):
                if k < len(fill):
                    g = fill[k]
                    for t in (g if isinstance(g, list) else [g]):
                        a(t)
                    k += 1
    return fill[k:]


def emit(a, lst):
    for g in lst:
        for t in (g if isinstance(g, list) else [g]):
            a(t)


def ln_den(a, vs, vq, t0):
    inv = f2u(1.0 / D)
    a(f"v_mul_f32 v{vs}, {inv:#x}, v{vs}")
    a(f"v_mul_f32 v{vq}, {inv:#x}, v{vq}")
    a(f"v_fma_f32 v{vq}, -v{vs}, v{vs}, v{vq}")
    a(f"v_max_f32 v{vq}, 0, v{vq}")
    a(f"v_cvt_pk_bf16_f32 v{t0}, v{vq}, v{vq}")
    a(f"v_lshlrev_b32 v{vq}, 16, v{t0}")
    a(f"v_add_f32 v{vq}, {f2u(1e-5):#x}, v{vq}")
    a(f"v_cvt_pk_bf16_f32 v{t0}, v{vq}, v{vq}")
    a(f"v_lshlrev_b32 v{vq}, 16, v{t0}")
    a(f"v_sqrt_f32 v{vq}, v{vq}")
    a(f"v_cvt_pk_bf16_f32 v{t0}, v{vq}, v{vq}")
    a(f"v_lshlrev_b32 v{vq}, 16, v{t0}")
    a(f"v_rcp_f32 v{vq}, v{vq}")


def den_from(a, vm, vq, t0):
    a(f"v_mul_f32 v{vq}, {f2u(1.0 / D):#x}, v{vq}")
    a(f"v_fma_f32 v{vq}, -v{vm}, v{vm}, v{vq}")
    a(f"v_max_f32 v{vq}, 0, v{vq}")
    a(f"v_cvt_pk_bf16_f32 v{t0}, v{vq}, v{vq}")
    a(f"v_lshlrev_b32 v{vq}, 16, v{t0}")
    a(f"v_add_f32 v{vq}, {f2u(1e-5):#x}, v{vq}")
    a(f"v_cvt_pk_bf16_f32 v{t0}, v{vq}, v{vq}")
    a(f"v_lshlrev_b32 v{vq}, 16, v{t0}")
    a(f"v_sqrt_f32 v{vq}, v{vq}")
    a(f"v_cvt_pk_bf16_f32 v{t0}, v{vq}, v{vq}")
    a(f"v_lshlrev_b32 v{vq}, 16, v{t0}")
    a(f"v_rcp_f32 v{vq}, v{vq}")
    a(f"v_mul_f32 v{vq}, v{vq}, v{vq}")


def cmuls(a, lst):
    for d, x, y in lst:
        assert d not in (x, y)
        a(f"v_pk_mul_f32 {vr(d,2)}, {vr(x,2)}, {vr(y,2)} op_sel:[0,0] op_sel_hi:[0,1]")
    for d, x, y in lst:
        a(f"v_pk_fma_f32 {vr(d,2)}, {vr(x,2)}, {vr(y,2)}, {vr(d,2)} op_sel:[1,1,0] op_sel_hi:[1,0,1] neg_lo:[1,0,0]")


_pollid = [0]


def poll(a, vaddr, soff, vdst, pre_issued=False):
    n = _pollid[0]
    _pollid[0] += 1
    a(f"s_mov_b32 s{sT}, 0")
    if pre_issued:
        a(f"v_cmp_ne_u32 vcc, s{sTAG}, v{vdst}")
        a(f"s_cbranch_vccz POLLD{n}")
    a.label(f"POLL{n}")
    a(f"buffer_load_dword v{vdst}, v{vaddr}, {sr(RWS)}, s{soff} offen sc1")
    a(f"s_add_u32 s{sT}, s{sT}, 1")
    a(f"s_cmp_gt_u32 s{sT}, {SPIN}")
    a("s_waitcnt vmcnt(0)")
    a(f"s_cbranch_scc1 POLLD{n}")
    a(f"v_cmp_ne_u32 vcc, s{sTAG}, v{vdst}")
    a(f"s_cbranch_vccnz POLL{n}")
    a.label(f"POLLD{n}")


def flag_store(a, soff):
    a(f"buffer_store_dword v{vTAGV}, v{vFLAG}, {sr(RWS)}, s{soff} offen sc1")


W1RND = int(os.environ.get("W1RND", "1"))


sW1D, sW1STEP, sW1ST, sCSST, sFWO, sFHO, sH0, sH1, sH2 = 4, 5, 6, 7, 8, 9, 10, 11, 12
sW1L, sCSL, sPH0, sPH1, sPH2, sACT, sM0, sXR, sWT = 13, 14, 15, 16, 17, 18, 19, 20, 21
sHMA, sHMB, sFMA, sFMB, sW2R, sW2ST, sFW2O, sFW2P, sW2A, sW2B = 24, 25, 26, 27, 28, 29, 30, 31, 32, 33
sFWP = 71
vH, vA, vB, vB0, vRW1, vRW0, vRW2 = 1, 2, 3, 4, 5, 6, 7
vRR0, vRR1, vRQ0, vRQ1 = 12, 13, 14, 15
vRZ0, vRZ1, vH0, vPU, vPB, vOB = 244, 245, 246, 247, 248, 249
vW1V, vFWP, vPD = 250, 254, 255
vJR, vJS, vJC = 230, 234, 235
vW2V, vW2R0, vW2R1 = 236, 237, 238


def gen():
    a = Asm()
    a("s_cmp_ge_u32 s2, 256")
    a("s_cbranch_scc1 END")
    if PROF:
        a("s_memrealtime s[80:81] ; stamp")
        a("s_memtime s[82:83] ; stamp")
    a("s_load_dwordx16 s[4:19], s[0:1], 0")
    a("s_load_dwordx16 s[20:35], s[0:1], 64")
    a("v_lshrrev_b32 v1, 6, v0")
    a(f"v_and_b32 v{vLANE}, 63, v0")
    a(f"v_readfirstlane_b32 s{sW}, v1")
    a(f"v_lshlrev_b32 v{vL16}, 4, v{vLANE}")
    a("s_getpc_b64 s[70:71]")
    a("s_lshr_b32 s72, s2, 3")
    a("s_lshl_b32 s72, s72, 12")
    a(f"v_lshlrev_b32 v{vH}, 4, v0           ; 16*tid")
    a(f"v_add_u32 v2, s72, v{vH}")
    a("v_min_u32 v2, CODE_LIM, v2")
    a("global_load_dwordx4 v[196:199], v2, s[70:71]")
    a(f"s_lshr_b32 s{sP}, s2, 1")
    a(f"s_and_b32 s{sE}, s2, 1")
    a(f"s_mul_i32 s{sCH0}, s{sP}, 5")
    a(f"s_mul_i32 s{sCH1}, s{sE}, 3")
    a(f"s_add_u32 s{sCH1}, s{sCH1}, s{sCH0}")
    a(f"s_add_u32 s{sCH0}, s{sCH0}, 2")
    a(f"s_and_b32 s{sTB}, s2, 1")
    a(f"s_lshl_b32 s{sTB}, s{sTB}, 3")
    a("s_bfe_u32 s72, s2, 0x30003")
    a(f"s_add_u32 s{sTB}, s{sTB}, s72")
    a(f"s_bfe_u32 s{sJ}, s2, 0x20001")
    a(f"s_lshl_b32 s{sJ}, s{sJ}, 2")
    a("s_lshr_b32 s72, s2, 6")
    a(f"s_add_u32 s{sJ}, s{sJ}, s72")
    a(f"s_mov_b32 s{sONE}, 0x3f803f80")
    a(f"v_cmp_eq_u32 vcc, 0, v{vLANE}")
    a(f"v_mov_b32 v{vFLAG}, {BIG:#x}")
    a(f"v_cndmask_b32 v{vFLAG}, v{vFLAG}, 0, vcc")
    PB = 200
    for it in range(3):
        a(f"s_add_u32 s75, s{sW}, {4*it}      ; unit")
        a("s_mul_i32 s76, s75, 11")
        a("s_lshr_b32 s76, s76, 5            ; rc = u/3")
        a("s_mul_i32 s77, s76, 3")
        a("s_sub_u32 s77, s75, s77           ; third")
        a(f"s_add_u32 s78, s{sCH1}, s76")
        a("s_sub_u32 s78, s78, 1")
        a("s_cmp_eq_u32 s76, 0")
        a(f"s_cselect_b32 s78, s{sCH0}, s78   ; channel")
        a("s_min_u32 s78, s78, 639")
        a("s_lshl_b32 s79, s78, 1")
        a(f"v_mov_b32 v{19+it}, s79")
        a("s_mul_i32 s78, s78, 384")
        a("s_lshl_b32 s77, s77, 7")
        a("s_add_u32 s78, s78, s77")
        a(f"v_lshlrev_b32 v{16+it}, 1, v{vLANE}")
        a(f"v_add_u32 v{16+it}, s78, v{16+it}")
    for r in range(PB, PB + 24):
        a(f"v_mov_b32 v{r}, 0")
    a(f"s_mul_i32 s75, s{sP}, 5")
    a(f"s_lshl_b32 s76, s{sE}, 1")
    a("s_add_u32 s75, s75, s76             ; cb")
    a("s_lshl_b32 s76, s75, 1")
    a("s_and_b32 s76, s76, 0xfffc")
    a("s_mul_i32 s72, s2, 10240")
    a(f"s_sub_u32 s74, s{sW}, 1")
    a("s_lshl_b32 s74, s74, 10")
    a("s_add_u32 s73, s72, s74")
    a(f"s_add_u32 s74, s74, {XQ}")
    a("s_waitcnt lgkmcnt(0)")
    stamp(a, "karg")

    def param_loads(its):
        for it in its:
            for k in range(6):
                a(f"global_load_short_d16_hi v{PB+8*it+k}, v{16+it}, s[{sPAR+2*k}:{sPAR+2*k+1}]")
            a(f"global_load_short_d16_hi v{PB+8*it+6}, v{19+it}, s[{sLDT}:{sLDT+1}]")

    param_loads([0])
    a(f"s_load_dword s{sTAG}, s[{sWS}:{sWS+1}], {GEN}")
    a(f"s_load_dwordx2 s[78:79], s[{sDSK}:{sDSK+1}], s76")
    srd(a, RX, sX, SZ_X)
    srd(a, RWS, sWS, WS_END)
    srd(a, RW, sWGP, SZ_W)
    srd(a, RWD, sWUP, SZ_W)
    srd(a, ROUT, sOUT, SZ_X)
    LOG2E = f2u(1.4426950408889634)
    a(f"s_mul_i32 s63, s{sW}, {STGS}")
    a(f"s_add_u32 s75, s63, {STG}")
    a(f"v_and_b32 v36, 31, v{vLANE}         ; b")
    a(f"v_bfe_u32 v37, v{vLANE}, 5, 1       ; h")
    a("v_mul_u32_u24 v35, 272, v36")
    a("v_lshl_add_u32 v35, v37, 4, v35")
    a("v_add_u32 v35, s75, v35")
    a(f"s_mul_i32 s75, s{sW}, {TABS}")
    a("v_lshlrev_b32 v8, 5, v36")
    a("v_lshl_add_u32 v8, v37, 4, v8")
    a("v_add_u32 v8, s75, v8")
    a("v_lshlrev_b32 v9, 4, v36")
    a("v_add_u32 v9, 1024, v9")
    a("v_lshlrev_b32 v10, 3, v36")
    a("v_add_u32 v10, 1536, v10")
    a("v_cmp_eq_u32 vcc, 1, v37")
    a("v_mov_b32 v11, 8")
    a("v_mov_b32 v24, 256")
    a("v_cndmask_b32 v9, v9, v10, vcc")
    a("v_cndmask_b32 v11, v11, v24, vcc")
    a("v_add_u32 v9, s75, v9")
    a("v_add_u32 v10, v9, v11")
    a("v_mul_u32_u24 v11, 384, v37")
    a("v_lshl_add_u32 v11, v36, 2, v11")
    a("v_add_u32 v11, s75, v11")
    cST, cRA, cRB, cS01, cS2, cSA = 224, 225, 226, 227, 228, 229
    a(f"v_lshrrev_b32 v24, 2, v{vLANE}      ; c16")
    a(f"v_and_b32 v25, 3, v{vLANE}          ; k")
    a("v_lshrrev_b32 v26, 1, v24")
    a("v_and_b32 v27, 1, v24               ; e")
    a("v_mul_u32_u24 v28, 5, v26")
    a("v_lshl_add_u32 v28, v27, 1, v28     ; cb")
    a("v_lshlrev_b32 v28, 1, v28")
    a("v_and_b32 v28, 0xfffc, v28")
    a("v_mul_u32_u24 v29, 2560, v25")
    a(f"s_and_b32 s76, s{sW}, 1")
    a("s_mul_i32 s75, s76, 640")
    a(f"s_add_u32 s75, s75, {XQ}")
    a(f"v_add3_u32 v{cRA}, v28, v29, s75")
    a(f"v_add_u32 v{cRB}, 1280, v{cRA}")
    a("v_and_b32 v26, 1, v26               ; parity")
    a("v_add_u32 v29, v26, v27             ; q1")
    a("v_lshlrev_b32 v30, 1, v27")
    a("v_sub_u32 v30, v26, v30")
    a("v_add_u32 v30, 2, v30               ; q0")
    a("v_lshl_add_u32 v30, v29, 16, v30")
    a("s_mov_b32 s75, 0x0202")
    a("v_mul_lo_u32 v30, v30, s75")
    a(f"v_add_u32 v{cS01}, 0x01000100, v30")
    a("v_add_u32 v29, 1, v29")
    a("s_mov_b32 s75, 0x02020202")
    a("v_mul_lo_u32 v29, v29, s75")
    a(f"v_add_u32 v{cS2}, 0x01000100, v29")
    a("v_lshlrev_b32 v24, 14, v24")
    a(f"v_lshl_add_u32 v{cST}, v25, 4, v24")
    a(f"v_lshrrev_b32 v24, 3, v{vLANE}")
    a("v_mul_u32_u24 v24, 1280, v24")
    a(f"v_and_b32 v25, 7, v{vLANE}")
    a("v_lshl_add_u32 v24, v25, 4, v24")
    a(f"v_add_u32 v{cSA}, {XQ}, v24")
    stamp(a, "f0")
    a(f"s_cmp_eq_u32 s{sW}, 0")
    a("s_cbranch_scc1 LD0")
    for n in range(4):
        a(f"s_add_u32 m0, s74, {3072*n}")
        a(f"s_add_u32 s75, s73, {3072*n}")
        if n == 3:
            a(f"s_cmp_eq_u32 s{sW}, 1")
            a(f"s_cselect_b32 s75, s75, {BIG:#x}")
        a(f"buffer_load_dwordx4 v{vL16}, {sr(RX)}, s75 offen lds")
    a(f"s_mov_b32 s75, {BIG:#x}")
    for n in range(3):
        flag_store(a, 75)
    a("s_branch LDC")
    a.label("LD0")
    param_loads([2])
    a.label("LDC")
    param_loads([1])
    srd(a, RX, sWDP, SZ_W)
    t0, t1, t2, t3, t4, t5 = 24, 25, 26, 27, 28, 29
    a(f"v_and_b32 v{t0}, 1, v{vLANE}")
    a(f"v_bfe_u32 v{t1}, v{vLANE}, 1, 3")
    a(f"v_lshrrev_b32 v{t2}, 4, v{vLANE}     ; g")
    a(f"s_lshl_b32 s75, s{sW}, 7")
    a(f"s_sub_u32 s76, {CHB + C_KE + 2*252 - 64}, s75")
    a(f"v_mul_u32_u24 v{vA}, {C_KE-C_KO}, v{t0}")
    a(f"v_sub_u32 v{vA}, s76, v{vA}")
    a(f"v_lshlrev_b32 v{t3}, 3, v{t1}")
    a(f"v_sub_u32 v{vA}, v{vA}, v{t3}")
    a(f"v_lshl_add_u32 v{vA}, v{t2}, 4, v{vA}")
    a(f"s_sub_u32 s76, {CHB + C_U2 + 1024 - 64}, s75")
    a(f"v_mul_u32_u24 v{vB}, {C_U2-C_U0}, v{t0}")
    a(f"v_sub_u32 v{vB}, s76, v{vB}")
    a(f"v_lshl_add_u32 v{vB}, v{t1}, 6, v{vB}")
    a(f"v_lshl_add_u32 v{vB}, v{t2}, 4, v{vB}")
    a(f"s_lshl_b32 s76, s{sE}, 9")
    a(f"v_add_u32 v{vB0}, s76, v{vB}")
    a(f"v_subrev_u32 v{vB0}, 512, v{vB0}")
    a(f"v_bfe_u32 v{t3}, v{vLANE}, 2, 1")
    a(f"v_lshl_add_u32 v{t3}, v{t3}, 1, v{t0}")
    a(f"v_xor_b32 v{t3}, v{t3}, v{t2}")
    a(f"v_lshlrev_b32 v{t3}, 4, v{t3}")
    a(f"v_lshl_add_u32 v{t3}, v{t1}, 6, v{t3}")
    a(f"v_lshl_add_u32 v{t4}, v{t0}, 12, v{t3}")
    a(f"s_lshl_b32 s77, s{sW}, 13")
    a(f"s_add_u32 s76, s77, {R1B}")
    a(f"v_add_u32 v{vRW1}, s76, v{t4}")
    a(f"s_add_u32 s76, s77, {R2B}")
    a(f"v_add_u32 v{vRW2}, s76, v{t4}")
    a(f"v_lshl_add_u32 v{t4}, v{t0}, 11, v{t3}")
    a(f"s_lshl_b32 s77, s{sW}, 12")
    a(f"v_add_u32 v{vRW0}, s77, v{t4}")
    a(f"v_bfe_u32 v{t3}, v0, 3, 1")
    a(f"v_lshlrev_b32 v{t3}, 1, v{t3}")
    a(f"v_xor_b32 v{t3}, v{t3}, v0")
    a(f"v_lshlrev_b32 v{t3}, 4, v{t3}")
    a(f"v_add_u32 v{vRR0}, {R1B}, v{t3}")
    a(f"v_xor_b32 v{vRR1}, 16, v{vRR0}")
    a(f"v_add_u32 v{vRQ0}, {R2B}, v{t3}")
    a(f"v_xor_b32 v{vRQ1}, 16, v{vRQ0}")
    a(f"v_and_b32 v{t3}, 511, v{t3}")
    a(f"s_lshl_b32 s77, s{sW}, 9")
    a(f"v_add_u32 v{vRZ0}, s77, v{t3}")
    a(f"v_xor_b32 v{vRZ1}, 16, v{vRZ0}")
    a(f"v_bfe_u32 v{t3}, v{vLANE}, 5, 1")
    a(f"v_cmp_eq_u32 vcc, s{sE}, v{t3}")
    a(f"v_mov_b32 v{vH0}, {BIG:#x}")
    a(f"v_lshlrev_b32 v{vPU}, 2, v0")
    a(f"v_cndmask_b32 v{vH0}, v{vH0}, v{vH}, vcc")
    a(f"v_add_u32 v{vPU}, {CHB}, v{vPU}")
    a(f"v_lshlrev_b32 v{vPB}, 3, v0")
    a(f"v_add_u32 v{vPB}, {BSB}, v{vPB}")
    a(f"v_lshlrev_b32 v{vOB}, 5, v0")
    a(f"v_add_u32 v{vOB}, {BSB}, v{vOB}")
    a(f"s_lshl_b32 s{sXR}, s2, 14")
    a(f"s_add_u32 s{sXR}, s{sXR}, {XR:#x}")
    a(f"s_lshl_b32 s{sH0}, s{sCH0}, 12")
    a(f"s_add_u32 s{sH0}, s{sH0}, {HT:#x}")
    a(f"s_lshl_b32 s{sH1}, s{sCH1}, 12")
    a(f"s_add_u32 s{sH1}, s{sH1}, {HT:#x}")
    a(f"s_add_u32 s{sH2}, s{sH1}, 4096")
    a(f"s_lshl_b32 s{sFHO}, s{sW}, 8")
    a(f"s_add_u32 s{sFHO}, s{sFHO}, s2")
    a(f"s_lshl_b32 s{sFHO}, s{sFHO}, 6")
    a(f"s_add_u32 s{sFHO}, s{sFHO}, {FH:#x}")
    a(f"s_lshl_b32 s75, s{sJ}, 2")
    a(f"s_add_u32 s75, s75, s{sW}           ; slice")
    a("s_mul_i32 s76, s75, 3")
    a(f"v_lshlrev_b32 v{t3}, 1, v{t0}")
    a(f"v_add_u32 v{t3}, s76, v{t3}")
    a(f"v_lshrrev_b32 v{t3}, 2, v{t3}")
    a(f"v_lshrrev_b32 v{t4}, 1, v{vLANE}")
    a(f"v_min_u32 v{t4}, 19, v{t4}")
    a(f"v_mul_u32_u24 v{t4}, 48, v{t4}")
    a(f"v_add_lshl_u32 v{vFWP}, v{t3}, v{t4}, 6")
    a(f"s_mov_b32 s{sFWP}, {FW:#x}")
    a(f"s_mul_i32 s{sCSL}, s75, 192")
    a(f"s_add_u32 s{sCSL}, s{sCSL}, {CSP:#x}")
    a(f"s_mul_i32 s{sW1L}, s75, 3072")
    a(f"s_add_u32 s{sW1L}, s{sW1L}, {W1P:#x}")
    a("s_mul_i32 s72, s2, 171")
    a("s_lshr_b32 s72, s72, 11             ; s = b/12")
    a("s_mul_i32 s73, s72, 12")
    a("s_sub_u32 s73, s2, s73")
    a("s_lshl_b32 s73, s73, 1")
    a(f"s_and_b32 s74, s{sW}, 1")
    a("s_add_u32 s73, s73, s74")
    a(f"s_lshl_b32 s{sWT}, s74, 13")
    a(f"s_add_u32 s{sWT}, s{sWT}, {WTS}")
    a(f"v_lshrrev_b32 v{t1}, 3, v{vLANE}     ; q")
    a(f"v_mul_u32_u24 v{t3}, 5, v{t1}")
    a(f"v_add_u32 v30, 2, v{t3}")
    a(f"v_mul_u32_u24 v{t4}, 5, v{t2}")
    a(f"v_and_b32 v{t5}, 1, v{t1}")
    a(f"v_mul_u32_u24 v{t5}, 3, v{t5}")
    a(f"v_add_u32 v31, v{t4}, v{t5}")
    a("s_cmp_lt_u32 s72, 4")
    a("s_cselect_b64 vcc, -1, 0")
    a(f"s_cselect_b32 s{sW1STEP}, 40, 20")
    a(f"v_cndmask_b32 v{t3}, v31, v30, vcc")
    a(f"v_mul_u32_u24 v{t3}, 3072, v{t3}")
    a(f"v_and_b32 v32, 7, v{vLANE}")
    a(f"v_and_b32 v33, 1, v{t2}              ; (row>>1)&1")
    a(f"v_xor_b32 v{t4}, v32, v33")
    a(f"v_lshl_add_u32 v{vW1V}, v{t4}, 4, v{t3}")
    for k in range(1, 4):
        a(f"v_xor_b32 v{vW1V+k}, {32*k}, v{vW1V}")
    a(f"s_mul_i32 s{sW1STEP}, s{sW1STEP}, 3072")
    a("s_mul_i32 s75, s72, 160")
    a("s_sub_u32 s76, s72, 4")
    a("s_and_b32 s76, s76, 7")
    a("s_mul_i32 s76, s76, 80")
    a("s_cmp_ge_u32 s72, 12")
    a("s_addc_u32 s76, s76, 0")
    a("s_cmp_lt_u32 s72, 4")
    a("s_cselect_b32 s75, s75, s76")
    a("s_mul_i32 s75, s75, 3072")
    a("s_lshl_b32 s76, s73, 7")
    a(f"s_add_u32 s{sW1D}, s75, s76")
    a(f"s_lshl_b32 s75, s74, 1")
    a("v_or_b32 v33, s75, v33")
    a("v_lshlrev_b32 v33, 1, v33")
    a("v_xor_b32 v33, v33, v32")
    a("v_lshlrev_b32 v33, 4, v33")
    a(f"s_mul_i32 s75, s{sW}, 40")
    a("v_add_u32 v30, s75, v30")
    a("v_lshl_add_u32 v30, v30, 12, v33")
    a("v_accvgpr_write_b32 a240, v30")
    a(f"s_mul_i32 s75, s{sW}, 20")
    a("v_add_u32 v31, s75, v31")
    a("v_lshl_add_u32 v31, v31, 12, v33")
    a("v_accvgpr_write_b32 a241, v31")
    a(f"s_lshl_b32 s75, s{sW}, 3")
    a(f"v_lshlrev_b32 v30, 5, v{t1}")
    a("v_add3_u32 v30, v30, v32, s75       ; 32s'+8w+j")
    a("v_lshlrev_b32 v31, 6, v30")
    a("v_accvgpr_write_b32 a243, v31")
    a("v_and_b32 v30, 127, v30")
    a("v_lshlrev_b32 v30, 7, v30")
    a("v_accvgpr_write_b32 a242, v30")
    a(f"s_lshr_b32 s75, s{sTB}, 2")
    a("s_lshl_b32 s75, s75, 14")
    a(f"s_add_u32 s{sPH1}, s75, {FH + 65536:#x}")
    a(f"s_add_u32 s{sPH2}, s75, {FH + 131072:#x}")
    a(f"s_bfe_u32 s76, s{sTB}, 0x10001")
    a("s_lshl_b32 s76, s76, 6")
    a("s_add_u32 s75, s75, s76")
    a(f"s_add_u32 s{sPH0}, s75, {FH:#x}")
    a(f"s_lshl_b32 s{sACT}, s{sTB}, 8")
    a(f"s_add_u32 s{sACT}, s{sACT}, {HT:#x}")
    a(f"s_lshl_b32 s{sM0}, s{sW}, 10")
    a(f"v_bfe_u32 v{t1}, v{vLANE}, 2, 2      ; rr")
    a(f"v_lshl_add_u32 v{t3}, v{t2}, 3, v{t1}")
    a(f"v_lshlrev_b32 v{t3}, 7, v{t3}        ; row*128")
    a(f"v_and_b32 v{t4}, 1, v{t2}")
    a(f"v_lshrrev_b32 v{t5}, 1, v{t1}")
    a(f"v_lshl_add_u32 v{t4}, v{t4}, 1, v{t5}")
    a(f"v_xor_b32 v30, s{sW}, v{t4}")
    a(f"v_lshl_add_u32 v30, v30, 5, v{t3}")
    a(f"v_and_b32 v31, 3, v{vLANE}")
    a("v_lshl_add_u32 v30, v31, 3, v30")
    a("v_accvgpr_write_b32 a244, v30")
    a(f"v_bfe_u32 v{t5}, v{vLANE}, 1, 1      ; mat")
    a(f"v_lshl_add_u32 v{t3}, v{t5}, 12, v{t3}")
    a(f"v_lshl_add_u32 v{t3}, v{t0}, 3, v{t3}")
    a(f"v_lshl_add_u32 v{t4}, v{t5}, 2, v{t4}")
    a(f"s_and_b32 s75, s{sW}, 2")
    a("s_lshl_b32 s75, s75, 1")
    a(f"v_xor_b32 v{t4}, s75, v{t4}")
    a(f"v_lshl_add_u32 v{t3}, v{t4}, 4, v{t3}")
    a(f"v_add_u32 v{vJR}, s{sWT}, v{t3}")
    for t in range(1, 4):
        a(f"v_xor_b32 v{vJR+t}, {16*t}, v{vJR}")
    a(f"v_bfe_u32 v{t1}, v{vLANE}, 1, 2")
    a(f"v_lshlrev_b32 v{t1}, 2, v{t1}")
    a(f"v_bfe_u32 v{t3}, v{vLANE}, 3, 1")
    a(f"v_lshl_add_u32 v{t3}, v{t3}, 1, v{t0}")
    a(f"v_add_u32 v{t1}, v{t1}, v{t3}         ; slot i")
    a(f"v_lshl_add_u32 v{t1}, v{t2}, 4, v{t1}")
    a(f"v_lshlrev_b32 v{vJS}, 4, v{t1}")
    a(f"v_and_b32 v{t1}, 15, v{vLANE}")
    a(f"v_cmp_gt_u32 vcc, 4, v{t1}")
    a(f"v_lshlrev_b32 v{t3}, 6, v{t1}")
    a(f"v_and_b32 v{t4}, 1, v{t2}")
    a(f"v_lshl_add_u32 v{t3}, v{t4}, 5, v{t3}")
    a(f"v_lshrrev_b32 v{t4}, 1, v{t2}")
    a(f"v_lshl_add_u32 v{t3}, v{t4}, 3, v{t3}")
    a(f"v_mov_b32 v{t4}, {BIG:#x}")
    a(f"v_cndmask_b32 v{vJC}, v{t4}, v{t3}, vcc")
    a(f"v_mul_u32_u24 v{t1}, 12288, v{t1}")
    a(f"v_lshl_add_u32 v{t1}, v{t2}, 4, v{t1}")
    a(f"v_accvgpr_write_b32 a245, v{t1}")
    a(f"v_add_u32 v{t1}, {16*12288}, v{t1}")
    a(f"v_cndmask_b32 v{t1}, v{t4}, v{t1}, vcc")
    a(f"v_accvgpr_write_b32 a246, v{t1}")
    a("s_lshl_b32 s76, s73, 3")
    a("s_add_u32 s76, s76, s75")
    a("s_mul_i32 s75, s72, 192")
    a("s_add_u32 s76, s76, s75")
    a(f"s_lshl_b32 s{sW1ST}, s76, 10")
    a(f"s_add_u32 s{sW1ST}, s{sW1ST}, {W1P:#x}")
    a(f"s_lshl_b32 s{sCSST}, s76, 6")
    a(f"s_add_u32 s{sCSST}, s{sCSST}, {CSP:#x}")
    a(f"s_lshl_b32 s{sFWO}, s76, 4")
    a(f"s_add_u32 s{sFWO}, s{sFWO}, {FW:#x}")
    a("s_cmp_lt_u32 s2, 240")
    a(f"s_cselect_b32 s{sW1ST}, s{sW1ST}, {BIG:#x}")
    a(f"s_cselect_b32 s{sCSST}, s{sCSST}, {BIG:#x}")
    a(f"s_cselect_b32 s{sFWO}, s{sFWO}, {BIG:#x}")
    stamp(a, "f1")
    a(f"s_mul_i32 s{sTAG}, s{sTAG}, 0x9E3779B1")
    a(f"s_add_u32 s{sTAG}, s{sTAG}, 0x7F4A7C15")
    a(f"v_mov_b32 v{vTAGV}, s{sTAG}")
    a(f"s_and_b32 s74, s{sP}, 1")
    for r in range(3):
        lo, hi = DSEL[r]
        if r == 0:
            a(f"s_lshl_b32 s73, s{sE}, 1")
            a("s_sub_u32 s73, s74, s73")
            a("s_add_u32 s73, s73, 2")
        else:
            a(f"s_add_u32 s73, s74, s{sE}")
            if r == 2:
                a("s_add_u32 s73, s73, 1")
        a("s_lshl_b32 s73, s73, 4")
        a(f"s_lshr_b64 s[{lo}:{hi}], s[78:79], s73")
        a(f"s_lshl_b32 s{lo}, s{lo}, 16")
        a(f"s_mov_b32 s{hi}, s{lo}")
    a(f"s_mov_b32 s76, {LOG2E:#x}")
    a(f"s_mov_b32 s77, {f2u(0.15915494309189535):#x}")
    a("s_mov_b32 m0, s63")
    a(f"s_mov_b32 s75, s{sW}                ; unit")
    a("s_waitcnt vmcnt(14)")
    a("; @clearvm")
    stamp(a, "job")
    a.label("KGEN")
    stamp(a, "k0")
    A_, B_, C_, LD_ = PB, PB + 2, PB + 4, PB + 6
    a(f"v_mul_f32 v32, {LOG2E:#x}, v{LD_}")
    a("v_exp_f32 v32, v32")
    a("v_cvt_pk_bf16_f32 v32, v32, v32")
    a("v_lshlrev_b32 v32, 16, v32          ; dt")
    a(f"v_pk_mul_f32 v[24:25], {vr(A_,2)}, v[32:33] op_sel:[0,0] op_sel_hi:[1,0]")
    a(f"v_pk_mul_f32 v[26:27], {vr(B_,2)}, v[32:33] op_sel:[0,0] op_sel_hi:[1,0]")
    a("v_pk_mul_f32 v[24:25], v[24:25], s[76:77]")
    P, Q, CV = 40, 56, 72
    p1, qq, w8 = 88, 90, 92
    RA = 104
    Rr = lambda k: RA + 2 * k
    R0 = Rr(0)
    cmuls(a, [(R0, C_, 26)])
    ev = [(P + 2, 8.0, 96), (p1, 1.0, 98), (qq, 256.0, 100)]
    for dst, sc, t in ev:
        if sc == 1.0:
            a(f"v_fract_f32 v{t+1}, v25")
        else:
            a(f"v_mul_f32 v{t}, {f2u(sc):#x}, v24")
            a(f"v_mul_f32 v{t+1}, {f2u(sc):#x}, v25")
            a(f"v_fract_f32 v{t+1}, v{t+1}")
    for dst, sc, t in ev:
        a(f"v_exp_f32 v{t}, v{24 if sc == 1.0 else t}")
        a(f"v_cos_f32 v{dst}, v{t+1}")
        a(f"v_sin_f32 v{dst+1}, v{t+1}")
    for dst, sc, t in ev:
        a(f"v_pk_mul_f32 {vr(dst,2)}, {vr(dst,2)}, {vr(t,2)} op_sel:[0,0] op_sel_hi:[1,0]")
    stamp(a, "k1")
    W = lambda k: P + 2 * k
    p2, p4, q2 = 96, 98, 100
    cmuls(a, [(W(2), W(1), W(1)), (p2, p1, p1), (q2, qq, qq), (Rr(1), R0, p1)])
    cmuls(a, [(W(3), W(2), W(1)), (W(4), W(2), W(2)), (p4, p2, p2), (Rr(2), R0, p2), (Rr(3), Rr(1), p2)])
    cmuls(a, [(W(5), W(4), W(1)), (W(6), W(4), W(2)), (W(7), W(4), W(3)), (Q, W(4), W(4))])
    AOFF = 32 * 272

    def put(vals, cv, neg):
        for k, (r, col) in enumerate(vals):
            if r is None:
                a(f"v_mov_b32 v{cv+k}, 0x3f80")
            else:
                a(f"v_cvt_pk_bf16_f32 v{cv+k}, v{r}, {'-' if neg else ''}v{r+1}")
        for k, (r, col) in enumerate(vals):
            a(f"ds_write_addtid_b32 v{cv+k} offset:{STG+272*col+(AOFF if neg else 0)}")

    stamp(a, "k2")
    a(f"v_pk_mov_b32 {vr(w8,2)}, {vr(Q,2)}, {vr(Q,2)} op_sel:[0,1]")
    cmuls(a, [(Q + 2 * k, P + 2 * k, w8) for k in range(1, 8)])
    put([(None, 0)] + [(P + 2 * k, k) for k in range(1, 8)] + [(Q + 2 * k, 8 + k) for k in range(8)], CV, False)
    cmuls(a, [(P + 2 * k, Q + 2 * k, w8) for k in range(8)])
    cmuls(a, [(Q + 2 * k, P + 2 * k, w8) for k in range(8)])
    put([(P + 2 * k, 16 + k) for k in range(8)] + [(Q + 2 * k, 24 + k) for k in range(8)], CV, False)
    FB, FA = 40, 148
    for s in range(8):
        a(f"ds_read_b128 {vr(FB+4*s,4)}, v35 offset:{32*s}")
    stamp(a, "k3")
    cmuls(a, [(Rr(4 + k), Rr(k), p4) for k in range(4)] + [(Rr(8), R0, qq), (Rr(9), Rr(2), qq), (Rr(12), R0, q2)])
    cmuls(a, [(Rr(10), Rr(4), qq), (Rr(11), Rr(6), qq), (Rr(13), Rr(4), q2), (Rr(14), Rr(8), q2), (Rr(16), Rr(12), q2)])
    cmuls(a, [(Rr(15), Rr(10), q2), (Rr(17), Rr(14), q2), (Rr(18), Rr(16), q2)])
    cmuls(a, [(Rr(20), Rr(17), q2), (Rr(21), Rr(18), q2)])
    stamp(a, "k4")
    put([(Rr(k), k) for k in list(range(19)) + [20, 21]], CV, True)
    for s in range(8):
        a(f"ds_read_b128 {vr(FA+4*s,4)}, v35 offset:{AOFF+32*s}")
    stamp(a, "k5")
    DK = 180
    for s in range(8):
        a(f"v_mfma_f32_32x32x16_bf16 {vr(DK,16)}, {vr(FA+4*s,4)}, {vr(FB+4*s,4)}, {'0' if s == 0 else vr(DK,16)}")
    stamp(a, "k6")
    a("s_add_u32 s75, s75, 4")
    a(f"ds_write_b128 v8, {vr(DK,4)}")
    a(f"ds_write_b64 v9, {vr(DK+4,2)}")
    a(f"ds_write_b64 v10, {vr(DK+6,2)}")
    for r in range(3):
        a(f"ds_write_b32 v11, v{DK+8+r} offset:{2048+128*r}")
    for r in range(8, 12):
        a(f"v_add_u32 v{r}, {4*TABS}, v{r}")
    a("s_cmp_ge_u32 s75, 8")
    a("s_cbranch_scc1 KG2")
    a("s_waitcnt vmcnt(0)")
    a("s_barrier")
    stamp(a, "xq")
    a(f"s_cmp_eq_u32 s{sW}, 0")
    a("s_cbranch_scc1 KNEXT")
    a(f"s_cmp_eq_u32 s{sW}, 1")
    a("s_cbranch_scc1 PRE1")
    for i in range(8):
        a(f"ds_read2_b32 {vr(40+4*i,2)}, v{cRA} offset0:{20*i} offset1:{20*i+1}")
        a(f"ds_read2_b32 {vr(42+4*i,2)}, v{cRB} offset0:{20*i} offset1:{20*i+1}")
    a(f"s_and_b32 s78, s{sW}, 1")
    a("s_lshl_b32 s78, s78, 21")
    a("s_lshl_b32 s79, s2, 6")
    a("s_add_u32 s78, s78, s79")
    a(f"s_add_u32 s78, s78, {XR:#x}")
    a("s_mov_b32 s72, 0x05040100")
    a("s_mov_b32 s73, 0x07060302")
    for i in range(8):
        a(f"v_mov_b32 v{104+4*i+3}, s{sTAG}")
    for i in range(8):
        b = 40 + 4 * i
        o = 104 + 4 * i
        a(f"v_perm_b32 v32, v{b+1}, v{b}, v{cS01}")
        a(f"v_perm_b32 v33, v{b+3}, v{b+2}, v{cS01}")
        a(f"v_perm_b32 v34, v{b+1}, v{b}, v{cS2}")
        a(f"v_perm_b32 v38, v{b+3}, v{b+2}, v{cS2}")
        a(f"v_perm_b32 v{o}, v33, v32, s72")
        a(f"v_perm_b32 v{o+1}, v33, v32, s73")
        a(f"v_perm_b32 v{o+2}, v38, v34, s72")
        a(f"buffer_store_dwordx4 {vr(o,4)}, v{cST}, {sr(RWS)}, s78 offen sc1")
        if i < 7:
            a(f"s_add_u32 s78, s78, {16*16384}")
    stamp(a, "recs")
    a("s_branch KNEXT")
    a.label("PRE1")
    SB = 40
    for c in range(10):
        a(f"ds_read_b128 {vr(SB+4*c,4)}, v{cSA} offset:{128*c}")
    a(f"v_and_b32 v38, 15, v{vLANE}")
    a("v_cmp_eq_u32 vcc, 0, v38")
    a(f"v_mov_b32 v38, {BIG:#x}")
    a(f"v_mov_b32 v107, s{sTAG}")
    a(f"v_cndmask_b32 v38, v38, v{vLANE}, vcc")
    a("s_lshl_b32 s78, s2, 6")
    a(f"s_add_u32 s78, s78, {S1:#x}")
    for k in range(40):
        a(f"v_dot2_f32_bf16 v32, v{SB+k}, s{sONE}, {'0' if k == 0 else 'v32'}")
        a(f"v_dot2_f32_bf16 v33, v{SB+k}, v{SB+k}, {'0' if k == 0 else 'v33'}")
    for m in ("quad_perm:[1,0,3,2]", "quad_perm:[2,3,0,1]", "row_half_mirror"):
        a(f"v_add_f32_dpp v32, v32, v32 {m} row_mask:0xf bank_mask:0xf")
        a(f"v_add_f32_dpp v33, v33, v33 {m} row_mask:0xf bank_mask:0xf")
    ln_den(a, 32, 33, 34)
    a("v_mov_b32 v104, v33")
    a("v_mov_b32_dpp v105, v33 row_ror:8 row_mask:0xf bank_mask:0xf")
    a("v_mov_b32_dpp v34, v32 row_ror:8 row_mask:0xf bank_mask:0xf")
    a("v_cvt_pk_bf16_f32 v106, v32, v34")
    a(f"buffer_store_dwordx4 v[104:107], v38, {sr(RWS)}, s78 offen sc1")
    stamp(a, "recs")
    a.label("KNEXT")
    for k in range(0, 16, 2):
        a(f"v_pk_mov_b32 {vr(PB+k,2)}, {vr(PB+8+k,2)}, {vr(PB+8+k,2)} op_sel:[0,1]")
    a("s_branch KGEN")
    a.label("KG2")
    a("s_cmp_eq_u32 s75, 8")
    a("s_cbranch_scc1 KNEXT")
    stamp(a, "kgen")
    XRV, STV = 196, 212

    def recv_loads():
        a(f"s_mov_b32 s73, s{sXR}")
        a(f"s_mov_b32 s74, {S1:#x}")
        for i in range(4):
            a(f"buffer_load_dwordx4 {vr(XRV+4*i,4)}, v{vH}, {sr(RWS)}, s73 offen sc1")
            a(f"buffer_load_dwordx4 {vr(STV+4*i,4)}, v{vH}, {sr(RWS)}, s74 offen sc1")
            if i < 3:
                a("s_add_u32 s73, s73, 4096")
                a("s_add_u32 s74, s74, 4096")

    a("s_waitcnt lgkmcnt(0)")
    a("s_barrier")
    recv_loads()
    stamp(a, "bar1")
    a(f"s_cmp_eq_u32 s{sW}, 3")
    a("s_cbranch_scc1 NOPAD")
    for r in range(40, 44):
        a(f"v_mov_b32 v{r}, 0")
    a(f"s_mul_i32 s75, s{sW}, {CHS}")
    a(f"s_add_u32 s75, s75, {CHB}")
    a(f"v_add_u32 v16, s75, v{vL16}")
    a(f"v_and_b32 v17, 48, v{vL16}")
    a("v_add_u32 v17, s75, v17")
    a("v_mov_b32 v18, s75")
    a(f"ds_write_b128 v16, v[40:43] offset:{C_U0}")
    a(f"ds_write_b128 v16, v[40:43] offset:{C_U2}")
    a(f"ds_write_b128 v17, v[40:43] offset:{C_KO+4096}")
    a(f"ds_write_b128 v17, v[40:43] offset:{C_KE+4096}")
    a(f"ds_write_b32 v18, v40 offset:{C_U2+1024}")
    a.label("NOPAD")
    KB = CHB + C_KO
    KD = C_KE - C_KO

    def pk(dst, lo, hi):
        a(f"v_cvt_pk_bf16_f32 v{dst}, v{lo}, v{hi}")

    a(f"v_cmp_eq_u32 vcc, 0, v{vLANE}")
    a(f"s_cmp_eq_u32 s{sW}, 0")
    a("s_cbranch_scc0 EXPN")
    a(f"v_subrev_u32 v17, 4, v{vL16}")
    a("v_max_i32 v17, 0, v17")
    for rc in range(3):
        for t in range(3):
            a(f"ds_read_b128 {vr(44+16*rc+4*t,4)}, v{vL16} offset:{TABS*(3*rc+t)}")
            a(f"ds_read_b32 v{56+16*rc+t}, v17 offset:{TABS*(3*rc+t)}")
    a(f"v_lshlrev_b32 v18, 3, v{vLANE}")
    a(f"v_sub_u32 v18, {KB+2*2044}, v18")
    for rc in range(3):
        b = 44 + 16 * rc
        o = 96 + 4 * rc
        for t in (1, 2):
            a(f"v_pk_add_f32 {vr(b,2)}, {vr(b,2)}, {vr(b+4*t,2)}")
            a(f"v_pk_add_f32 {vr(b+2,2)}, {vr(b+2,2)}, {vr(b+4*t+2,2)}")
            a(f"v_add_f32 v{b+12}, v{b+12}, v{b+12+t}")
        a(f"v_cndmask_b32 v{b+12}, v{b+12}, 0, vcc")
        pk(o, b + 3, b + 2); pk(o + 1, b + 1, b); pk(o + 2, b + 2, b + 1); pk(o + 3, b, b + 12)
        a(f"ds_write_b64 v18, {vr(o,2)} offset:{CHS*rc}")
        a(f"ds_write_b64 v18, {vr(o+2,2)} offset:{CHS*rc+KD}")
    a("s_branch EXPD")
    a.label("EXPN")
    a(f"s_lshl_b32 s75, s{sW}, 9")
    a("s_add_u32 s75, s75, 508")
    a(f"v_lshlrev_b32 v16, 3, v{vLANE}")
    a("v_add_u32 v16, s75, v16")
    for rc in range(3):
        for t in range(3):
            b = 44 + 12 * rc + 4 * t
            off = TABS * (3 * rc + t)
            a(f"ds_read_b64 {vr(b,2)}, v16 offset:{off+4}")
            a(f"ds_read_b32 v{b+2}, v16 offset:{off+12}")
            a(f"ds_read_b32 v{b+3}, v16 offset:{off}")
    for rc in range(3):
        b = 44 + 12 * rc
        for t in (1, 2):
            a(f"v_pk_add_f32 {vr(b,2)}, {vr(b,2)}, {vr(b+4*t,2)}")
            a(f"v_pk_add_f32 {vr(b+2,2)}, {vr(b+2,2)}, {vr(b+4*t+2,2)}")
    a(f"s_cmp_eq_u32 s{sW}, 2")
    a("s_cbranch_scc1 EXP2")
    a(f"s_cmp_eq_u32 s{sW}, 3")
    a("s_cbranch_scc1 EXP3")
    a(f"v_lshlrev_b32 v18, 3, v{vLANE}")
    a(f"v_sub_u32 v18, {KB+2*(2044-256)}, v18")
    for rc in range(3):
        va, vb, vc, vm = (44 + 12 * rc + k for k in range(4))
        o = 96 + 4 * rc
        a(f"v_cndmask_b32 v{vm}, v{va}, v{vm}, vcc")
        pk(o, vc, vb); pk(o + 1, va, va); pk(o + 2, vb, va); pk(o + 3, va, vm)
        a(f"ds_write_b64 v18, {vr(o,2)} offset:{CHS*rc}")
        a(f"ds_write_b64 v18, {vr(o+2,2)} offset:{CHS*rc+KD}")
    a("s_branch EXPD")
    a.label("EXP2")
    a(f"v_sub_u32 v18, {KB+2*(2040-512)}, v{vL16}")
    for rc in range(3):
        va, vb, vc, vm = (44 + 12 * rc + k for k in range(4))
        o = 96 + 8 * rc
        for k, (lo, hi) in enumerate([(vc, vc), (vb, vb), (vb, va), (va, va), (vc, vb), (vb, vb), (va, va), (va, va)]):
            pk(o + k, lo, hi)
        a(f"ds_write_b128 v18, {vr(o,4)} offset:{CHS*rc}")
        a(f"ds_write_b128 v18, {vr(o+4,4)} offset:{CHS*rc+KD}")
    a("s_branch EXPD")
    a.label("EXP3")
    a(f"v_lshlrev_b32 v18, 5, v{vLANE}")
    a(f"v_sub_u32 v18, {KB+2*(2032-1024)}, v18")
    for rc in range(3):
        va, vb, vc, vm = (44 + 12 * rc + k for k in range(4))
        o = 96 + 16 * rc
        pat = [(vc, vc), (vc, vc), (vb, vb), (vb, vb), (vb, vb), (vb, va), (va, va), (va, va),
               (vc, vc), (vc, vb), (vb, vb), (vb, vb), (vb, vb), (va, va), (va, va), (va, va)]
        for k, (lo, hi) in enumerate(pat):
            pk(o + k, lo, hi)
            if k & 3 == 3:
                a(f"ds_write_b128 v18, {vr(o+k-3,4)} offset:{CHS*rc+(KD if k >= 8 else 0)+(16 if k & 4 else 0)}")
    a.label("EXPD")
    stamp(a, "exp")
    a(f"s_mov_b32 s{sT}, 0")
    a.label("RCHK")
    a(f"v_xor_b32 v16, s{sTAG}, v{XRV+3}")
    for r in [XRV + 7, XRV + 11, XRV + 15, STV + 3, STV + 7, STV + 11, STV + 15]:
        a(f"v_xor_b32 v18, s{sTAG}, v{r}")
        a("v_or_b32 v16, v16, v18")
    a("v_cmp_ne_u32 vcc, 0, v16")
    a("s_cbranch_vccz RDONE")
    a(f"s_add_u32 s{sT}, s{sT}, 1")
    a(f"s_cmp_gt_u32 s{sT}, {SPIN}")
    a("s_cbranch_scc1 RDONE")
    a("s_sleep 4")
    recv_loads()
    a("s_waitcnt vmcnt(0)")
    a("s_branch RCHK")
    a.label("RDONE")
    stamp(a, "recv")
    a(f"s_cmp_ge_u32 s{sW}, 2")
    a(f"s_cselect_b64 s[{RW}:{RW+1}], s[{RWD}:{RWD+1}], s[{RW}:{RW+1}]")
    a("s_cselect_b32 s72, 4096, 0")
    a("s_cselect_b64 vcc, -1, 0")
    a(f"s_add_u32 s72, s72, s{sWT}")
    a(f"v_cndmask_b32 v{vW1V}, v{vW1V}, v{vW1V+2}, vcc")
    a(f"v_cndmask_b32 v{vW1V+1}, v{vW1V+1}, v{vW1V+3}, vcc")
    w1d = []
    for n in range(4):
        w1d.append([f"s_add_u32 m0, s72, {1024*n}",
                    "s_nop 0",
                    f"buffer_load_dwordx4 v{vW1V+(n&1)}, {sr(RW)}, s{sW1D} offen lds ; @def:w1raw",
                    f"s_add_u32 s{sW1D}, s{sW1D}, s{sW1STEP}"])
    nm = Lst()
    for i in range(4):
        st = STV + 4 * i
        nm(f"v_and_b32 v{st+3}, 0xffff0000, v{st+2}")
        nm(f"v_lshlrev_b32 v{st+2}, 16, v{st+2}")
    for i in range(4):
        st = STV + 4 * i
        nm(f"v_pk_mul_f32 {vr(st+2,2)}, {vr(st+2,2)}, {vr(st,2)} neg_lo:[1,0] neg_hi:[1,0]")
    for rc in range(3):
        X, U = 40 + 8 * rc, 64 + 8 * (rc & 1)
        for i in range(4):
            nm(f"v_lshlrev_b32 v{X+2*i}, 16, v{XRV+4*i+rc}")
            nm(f"v_and_b32 v{X+2*i+1}, 0xffff0000, v{XRV+4*i+rc}")
        for i in range(4):
            st = STV + 4 * i
            nm(f"v_pk_fma_f32 {vr(U+2*i,2)}, {vr(X+2*i,2)}, {vr(st,2)}, {vr(st+2,2)}")
        for i in range(4):
            nm(f"v_cvt_pk_bf16_f32 v{80+4*rc+i}, v{U+2*i}, v{U+2*i+1}")
        for i in range(4):
            nm(f"v_pk_fma_f32 {vr(X+2*i,2)}, {vr(U+2*i,2)}, s[{DSEL[rc][0]}:{DSEL[rc][1]}], {vr(X+2*i,2)}")
        for i in range(0, 4, 2):
            o = CHS * rc + 1024 * i + C_U0 + 1024
            nm(f"ds_write2st64_b32 v{vPU}, v{80+4*rc+i}, v{81+4*rc+i} offset0:{o//256} offset1:{o//256+4}")
        for i in range(4):
            nm(f"ds_write_b32 v{vPU}, v{80+4*rc+i} offset:{CHS*rc+1024*i+C_U2+1028}")
        for i in range(0, 4, 2):
            o = (8192 * rc + 2048 * i) // 512
            nm(f"ds_write2st64_b64 v{vPB}, {vr(X+2*i,2)}, {vr(X+2*i+2,2)} offset0:{o} offset1:{o+4}")
    emit(a, w1d)
    emit(a, nm)
    a("s_waitcnt lgkmcnt(0)")
    a("s_barrier")
    stamp(a, "bar2")
    ACCS = [16, 48]
    EP = 80
    free = list(range(120, 228, 4))
    w1n = [0]

    def w1_load():
        n = w1n[0]
        w1n[0] += 1
        g = [f"buffer_load_dwordx4 {ar(4*n,4)}, v{vL16}, {sr(RWS)}, s{sW1L} offen offset:{1024*(n%3)} sc1"]
        if n % 3 == 2:
            g[0] += f" ; @def:w1_{n//3}"
            g.append(f"s_add_u32 s{sW1L}, s{sW1L}, 196608")
        return g

    def pairs_of(rnd, k):
        ps = []
        for o in range(k + 1):
            if k + o <= 7 and (rnd > 0 or (k + o) & 1):
                ps.append((k, o))
                if o != k:
                    ps.append((o, k))
        return ps

    groups = [(rnd, r, k) for rnd in range(3) for r in range(2) for k in range(8)]
    fa, fb = {}, {}

    def issue(gk):
        rnd, r, k = gk
        fa[gk] = free.pop(0)
        fb[gk] = free.pop(0)
        ro = 64 * (1 - r) + CHS * rnd
        return [f"ds_read_b64 {vr(fa[gk],2)}, v{vA} offset:{512*(7-k)+ro}",
                f"ds_read_b64 {vr(fa[gk]+2,2)}, v{vA} offset:{512*(7-k)+ro+8}",
                f"ds_read_b128 {vr(fb[gk],4)}, v{vB0 if rnd == 0 else vB} offset:{512*k+ro} ; @def:cv{rnd}_{r}_{k}"]

    def last_level(rnd, idx):
        return max(k for k in range(8) for (q, c) in pairs_of(rnd, k) if idx in (q, c))

    def epi_fill(rnd, plain=True, toks=""):
        f = [[f"; @use:red{rnd} {toks}", "s_barrier"]]
        r0, r1, ws, ps = [(vRZ0, vRZ1, 4096, 2048), (vRR0, vRR1, 8192, 4096), (vRQ0, vRQ1, 8192, 4096)][rnd]
        f.append(f"ds_read_b128 {vr(EP,4)}, v{vOB} offset:{8192*rnd}")
        f.append(f"ds_read_b128 {vr(EP+4,4)}, v{vOB} offset:{8192*rnd+16}")
        for w in range(4):
            f.append(f"ds_read_b128 {vr(EP+8+8*w,4)}, v{r0} offset:{ws*w}")
            f.append(f"ds_read_b128 {vr(EP+12+8*w,4)}, v{r1} offset:{ws*w+ps} ; @def:ep{rnd}_{w}")
        ymap = [0, 4, 2, 6]
        for w in range(4):
            for p in range(4):
                src = EP + 8 + 8 * w + ymap[p]
                if plain:
                    g = [f"v_add_f32 v{EP+2*p}, v{EP+2*p}, v{src}"]
                    if p == 0:
                        g = [f"; @use:ep{rnd}_{w}"] + g
                    f.append(g)
                    f.append(f"v_add_f32 v{EP+2*p+1}, v{EP+2*p+1}, v{src+1}")
                else:
                    f.append(f"v_pk_add_f32 {vr(EP+2*p,2)}, {vr(EP+2*p,2)}, {vr(src,2)}")
        for p in range(4):
            f.append(f"v_cvt_pk_bf16_f32 v{EP+8+p}, v{EP+2*p}, v{EP+2*p+1}")
        f.append(f"buffer_store_dwordx4 {vr(EP+8,4)}, v{vH0 if rnd == 0 else vH}, {sr(RWS)}, s{[sH0, sH1, sH2][rnd]} offen sc1 ; @def:ht{rnd}")
        return f

    def hflag(rnd):
        g = [f"; @use:ht{rnd}", f"buffer_store_dword v{vTAGV}, v{vFLAG}, {sr(RWS)}, s{sFHO} offen sc1"]
        if rnd < 2:
            g.append(f"s_add_u32 s{sFHO}, s{sFHO}, 65536")
        return g

    def w1_job():
        JF, JA, JS = EP + 16, EP + 12, 8
        f = []
        for t in range(4):
            f.append(f"ds_read_b64_tr_b16 {vr(JF+4*t,2)}, v{vJR+t}")
            f.append(f"ds_read_b64_tr_b16 {vr(JF+4*t+2,2)}, v{vJR+t} offset:512")
        f.append(f"v_and_b32 v{EP}, 15, v{vLANE}")
        f.append(f"v_mov_b32 v{EP+1}, s{sONE}")
        for t in range(4):
            f.append(f"v_cmp_eq_u32 vcc, {t}, v{EP}")
            f.append(f"buffer_store_dwordx4 {vr(JF+4*t,4)}, v{vJS}, {sr(RWS)}, s{sW1ST} offen offset:{1024*t} sc1")
            for k in range(4):
                f.append(f"v_cndmask_b32 v{JS+k}, 0, v{EP+1}, vcc")
            f.append("s_nop 0")
            f.append(f"v_mfma_f32_16x16x32_bf16 {vr(JA,4)}, {vr(JF+4*t,4)}, {vr(JS,4)}, {'0' if t == 0 else vr(JA,4)}")
        f += ["s_nop 0"] * 4
        f.append(f"buffer_store_dwordx2 {vr(JA,2)}, v{vJC}, {sr(RWS)}, s{sCSST} offen sc1")
        f.append(f"buffer_store_dwordx2 {vr(JA+2,2)}, v{vJC}, {sr(RWS)}, s{sCSST} offen offset:16 sc1 ; @def:w1st")
        return f

    vD0, vD1, vPL0, vPL1 = 128, 129, 130, 131
    vRA = 132
    vCS0, vCS1 = 136, 137
    vRES = 138
    vSR, vMW, vGW, vMR, vSC = 141, 142, 143, 144, 145
    EPO = 148
    TMP = 160
    SVH = [172, 174]
    HRES = [176, 182]
    CS = 188
    RS, GR, ONE, NM = 200, 204, 208, 212
    vSW = 216
    MS = 24576
    PF = 5
    for gi in range(PF):
        emit(a, issue(groups[gi]))
    rq = []
    for rnd in range(3):
        acc = ACCS[rnd & 1]
        touched = set()
        stamp(a, f"r{rnd}")
        if rnd == 0:
            other = []
        elif rnd == 1:
            other = epi_fill(0, toks="@use:w1raw" if W1RND == 1 else "") + (w1_job() if W1RND == 1 else [])
        else:
            other = epi_fill(1, toks="@use:w1raw" if W1RND == 2 else "") + (w1_job() if W1RND == 2 else [])
            if W1RND == 1:
                other.append(["; @use:w1st", f"buffer_store_dword v{vTAGV}, v{vFLAG}, {sr(RWS)}, s{sFWO} offen sc1"])
        nm_ = 0
        for gi, (rn, r, k) in enumerate(groups):
            if rn != rnd:
                continue
            ps = pairs_of(rnd, k)
            if gi + PF < len(groups):
                rq += issue(groups[gi + PF])
            if ps:
                while any(f"@def:cv{rnd}_{r}_{k}" in t for t in rq):
                    a(rq.pop(0))
                a(f"; @use:cv{rnd}_{r}_{k}")
            for pi, (q, c) in enumerate(ps):
                t = (q + c) >> 1 if rnd == 0 else q + c
                cin = vr(acc + 4 * t, 4) if t in touched else "0"
                touched.add(t)
                a(f"v_mfma_f32_16x16x32_bf16 {vr(acc+4*t,4)}, {vr(fa[(rnd,r,q)],4)}, {vr(fb[(rnd,r,c)],4)}, {cin}")
                nm_ += 1
                slots = 2 if pi + 1 < len(ps) else 1
                if rq and slots:
                    a(rq.pop(0))
                    slots -= 1
                if len(rq) > 6 and slots:
                    a(rq.pop(0))
                    slots -= 1
                while slots and other and nm_ >= 3:
                    emit(a, [other.pop(0)])
                    slots -= 1
            for idx in range(8):
                if last_level(rnd, idx) == k:
                    free.append(fa[(rnd, r, idx)])
                    free.append(fb[(rnd, r, idx)])
        print(f"round {rnd}: {len(other)} fillers left over")
        emit(a, other)
        stamp(a, f"w{rnd}")
        nt = 4 if rnd == 0 else 8
        for c in range(nt):
            tok = f" ; @def:red{rnd}" if c == nt - 1 else ""
            a(f"ds_write_b128 v{[vRW0, vRW1, vRW2][rnd]}, {vr(acc+4*c,4)} offset:{512*c}{tok}")
        if rnd == 1:
            emit(a, [hflag(0)])
    assert not rq
    for k, r in enumerate([vD0, vD1, vPL0, vPL1, vRA, vCS0, vCS1]):
        a(f"v_accvgpr_read_b32 v{r}, a{240+k}")
    a(f"buffer_load_dword v{vPD}, v{vPL0}, {sr(RWS)}, s{sPH0} offen sc1")
    emit(a, epi_fill(2, plain=False))
    emit(a, [hflag(1)])
    if W1RND == 2:
        emit(a, [["; @use:w1st", f"buffer_store_dword v{vTAGV}, v{vFLAG}, {sr(RWS)}, s{sFWO} offen sc1"]])
    stamp(a, "conv")

    def dma(h, s):
        drow = 160 * s if s < 4 else 80 * ((s - 4) & 7) + (1 if s >= 12 else 0)
        return [f"s_add_u32 m0, s{sM0}, {HALF*h+4096*s}",
                f"s_add_u32 s75, s{sACT}, {drow*4096+128*h}",
                f"buffer_load_dwordx4 v{vD0 if s < 4 else vD1}, {sr(RWS)}, s75 offen sc1 lds ; @def:d{h}_{s}"]

    a(f"buffer_load_dword v{TMP}, v{vFWP}, {sr(RWS)}, s{sFWP} offen sc1")
    poll(a, vPL0, sPH0, vPD, pre_issued=True)
    stamp(a, "pollH0")
    for s in range(4):
        emit(a, [dma(0, s)])
    for ct in range(1, 4):
        a(f"v_xor_b32 v{vRA+ct}, {32*ct}, v{vRA}")
    for k in range(4):
        a(f"v_mov_b32 v{ONE+k}, s{sONE}")
    a(f"v_mul_u32_u24 v{TMP+1}, 6554, v{vLANE}")
    a(f"v_lshrrev_b32 v{TMP+1}, 16, v{TMP+1}   ; L/10")
    a(f"v_mul_u32_u24 v{TMP+1}, 1120, v{TMP+1}")
    a(f"v_add_u32 v{vW2V}, v{TMP+1}, v{vL16}")
    a("s_lshr_b32 s72, s2, 2")
    a("s_and_b32 s73, s2, 3")
    a("s_lshl_b32 s73, s73, 1")
    a(f"s_add_u32 s73, s73, s{sW}")
    a(f"s_mul_i32 s{sW2R}, s72, {32*1280}")
    a("s_mul_i32 s74, s73, 160")
    a(f"s_add_u32 s{sW2R}, s{sW2R}, s74")
    a(f"s_mul_i32 s{sW2ST}, s73, 245760")
    a("s_mul_i32 s74, s72, 5120")
    a(f"s_add_u32 s{sW2ST}, s{sW2ST}, s74")
    a(f"s_add_u32 s{sW2ST}, s{sW2ST}, {W2P:#x}")
    a("s_lshl_b32 s74, s2, 1")
    a(f"s_add_u32 s74, s74, s{sW}")
    a("s_lshl_b32 s74, s74, 6")
    a(f"s_add_u32 s{sFW2O}, s74, {FW2:#x}")
    a(f"s_mul_i32 s{sWT}, s{sW}, 6144")
    a(f"s_add_u32 s{sWT}, s{sWT}, {WTS}")
    a("s_cmp_lt_u32 s2, 192")
    a("s_cselect_b32 s64, 1, 0")
    a(f"s_cmp_lt_u32 s{sW}, 2")
    a("s_cselect_b32 s64, s64, 0")
    a("s_cmp_eq_u32 s64, 1")
    a(f"s_cselect_b32 s{sFW2O}, s{sFW2O}, {BIG:#x}")
    poll(a, vFWP, sFWP, TMP, pre_issued=True)
    stamp(a, "pollW")
    for _ in range(6):
        emit(a, [w1_load()])
    emit(a, [hflag(2)])
    a(f"buffer_load_dword v{vPD}, v{vPL1}, {sr(RWS)}, s{sPH1} offen sc1")
    for _ in range(6):
        emit(a, [w1_load()])
    BF = 96

    def reads(h, s):
        o = []
        gs = 20 * h + s
        for ct in range(4):
            for hh in range(2):
                tok = f" ; @def:bf{gs}" if ct == 3 and hh == 1 else ""
                o.append(f"ds_read_b64_tr_b16 {vr(BF+16*(gs&1)+4*ct+2*hh,2)}, v{vRA+ct} offset:{4096*(gs%16)+512*hh}{tok}")
        if gs % 16 == 15:
            o += [f"v_add_u32 v{vRA+ct}, 0x10000, v{vRA+ct}" for ct in range(4)]
        return o

    def mf(h, s):
        gs = 20 * h + s
        b0 = vr(BF + 16 * (gs & 1), 4)
        o = [f"v_mfma_f32_16x16x32_bf16 {vr(RS,4)}, {vr(ONE,4)}, {b0}, {'0' if s == 0 else vr(RS,4)}",
             f"v_mfma_f32_16x16x32_bf16 {vr(GR,4)}, {b0}, {b0}, {'0' if s == 0 else vr(GR,4)}"]
        for ct in range(4):
            for r in range(3):
                acc = vr(48 * h + 12 * ct + 4 * r, 4)
                o.append(f"v_mfma_f32_16x16x32_bf16 {acc}, {ar(12*s+4*r,4)}, {vr(BF+16*(gs&1)+4*ct,4)}, {'0' if s == 0 else acc}")
        return o

    def sync(toks):
        a("; " + " ".join("@use:" + t for t in toks))
        a("s_barrier")

    def res_reads(h):
        o = []
        for sg in range(3):
            o.append(f"ds_read_b64_tr_b16 {vr(HRES[h]+2*sg,2)}, v{vRES+sg}" + (f" ; @def:res{h}" if sg == 2 else ""))
        if h == 0:
            o += [f"v_add_u32 v{vRES+sg}, {HALF}, v{vRES+sg}" for sg in range(3)]
        return o

    def stat_calc():
        return [f"v_mul_f32 v{NM}, {f2u(-1.0/D):#x}, v{RS}",
                f"v_cndmask_b32 v{TMP}, v{GR}, v{GR+1}, s[66:67]",
                f"v_cndmask_b32 v{TMP+1}, v{GR+2}, v{GR+3}, s[66:67]",
                f"v_cndmask_b32 v{TMP}, v{TMP}, v{TMP+1}, s[68:69]"]

    def stat_write(h):
        return [f"ds_write_b32 v{vMW}, v{NM} offset:{512*h}",
                f"ds_write_b32 v{vGW}, v{TMP} offset:{512*h} ; @def:mw{h}"]

    def stat_reads(h):
        o = []
        for ct in range(1, 4):
            o.append(f"v_xor_b32 v{vMR}, {128*ct}, v{vMW}")
            o.append(f"ds_read_b32 v{NM+ct}, v{vMR} offset:{512*h}")
        o.append(f"ds_read2_b32 {vr(SVH[h],2)}, v{vSC} offset0:{128*h} offset1:{128*h+16}")
        return o

    def epi1(h, plain):
        so = 12288 * h
        o = []
        for ct in range(4):
            bs = [48 * h + 12 * ct + 4 * r for r in range(3)]
            if plain:
                for r, b in enumerate(bs):
                    for k in range(4):
                        o.append(f"v_fma_f32 v{b+k}, v{NM+ct}, v{CS+4*r+k}, v{b+k}")
            else:
                sel = "op_sel:[1,0,0] op_sel_hi:[1,1,1]" if ct & 1 else "op_sel:[0,0,0] op_sel_hi:[0,1,1]"
                for r, b in enumerate(bs):
                    for k in (0, 2):
                        o.append(f"v_pk_fma_f32 {vr(b+k,2)}, {vr(NM+(ct&2),2)}, {vr(CS+4*r+k,2)}, {vr(b+k,2)} {sel}")
            for b in bs:
                o.append(f"v_max_f32 v{b}, 0, v{b}")
                o.append(f"v_max_f32 v{b+1}, 0, v{b+1}")
            for b in bs:
                if plain:
                    o.append(f"v_mul_f32 v{b}, v{b}, v{b+2}")
                    o.append(f"v_mul_f32 v{b+1}, v{b+1}, v{b+3}")
                else:
                    o.append(f"v_pk_mul_f32 {vr(b,2)}, {vr(b,2)}, {vr(b+2,2)}")
            for b in bs:
                o.append(f"v_cvt_pk_bf16_f32 v{b}, v{b}, v{b+1}")
            for r, b in enumerate(bs):
                tok = f" ; @def:stg{h}" if ct == 3 and r == 2 else ""
                o.append(f"ds_write_b32 v{vSW+3*ct+r}, v{b} offset:{so}{tok}")
        return o

    def epi2(h):
        so = 48 * h
        o = [[f"; @use:stg{h}", "s_barrier"]]
        for ksl in range(3):
            b = EPO + 4 * ksl
            off = so + 16 * ksl
            o.append(f"ds_read2st64_b32 {vr(b,2)}, v{vSR} offset0:{off} offset1:{off+1}")
            o.append(f"ds_read2st64_b32 {vr(b+2,2)}, v{vSR} offset0:{off+2} offset1:{off+3}")
        if h == 0:
            o += ["s_nop 0"] * 4
        for ksl in range(3):
            tok = f" ; @def:hm{h}" if ksl == 2 else ""
            o.append(f"buffer_store_dwordx4 {vr(EPO+4*ksl,4)}, v{vL16}, {sr(RWS)}, s{[sHMA, sHMB][h]} offen offset:{1024*ksl} sc1{tok}")
        return o

    def mflag(h):
        return [f"; @use:hm{h}", f"buffer_store_dword v{vTAGV}, v{vFLAG}, {sr(RWS)}, s{[sFMA, sFMB][h]} offen sc1"]

    vW2P, vW2M = 244, 245
    vPM, vHM, vO4, vO2 = 246, 247, 249, 250
    vQ = 228
    sHML, sFMP, sOUTO = 4, 5, 6
    RB = 32768
    w2n = [0]

    def w2_load():
        n = w2n[0]
        w2n[0] += 1
        rt = n % 5
        v = vW2P if rt < 2 else vW2M if rt < 4 else vL16
        off = {0: 0, 1: 1024, 2: 0, 3: 1024, 4: 2048}[rt]
        g = [f"buffer_load_dwordx4 {ar(4*n,4)}, v{v}, {sr(RWS)}, s{sW2A if rt < 4 else sW2B} offen offset:{off} sc1"]
        if rt == 4:
            g += [f"s_add_u32 s{sW2A}, s{sW2A}, 5120", f"s_add_u32 s{sW2B}, s{sW2B}, 5120"]
        return g

    G = lambda *x: ["; @use:none"] + list(x)
    su = Lst()
    u0, u1, u2, u3, u4, u5, u6, u7 = (TMP + 2 + k for k in range(8))
    CT = 84
    for r in range(3):
        su(f"buffer_load_dwordx4 {vr(CS+4*r,4)}, v{vCS0}, {sr(RWS)}, s{sCSL} offen offset:{64*r} sc1")
        su(f"buffer_load_dwordx4 {vr(CT+4*r,4)}, v{vCS1}, {sr(RWS)}, s{sCSL} offen offset:{64*r} sc1")
    su(f"v_lshrrev_b32 v{u0}, 4, v{vLANE}     ; g")
    su(f"v_bfe_u32 v{u1}, v{vLANE}, 2, 2      ; rr")
    su(f"v_and_b32 v{u2}, 3, v{vLANE}         ; cc")
    su(f"v_and_b32 v{u3}, 1, v{u1}")
    su(f"v_lshl_add_u32 v{u3}, v{u0}, 1, v{u3}")
    su(f"v_lshrrev_b32 v{u4}, 1, v{u1}")
    su(f"v_lshl_add_u32 v{u3}, v{u4}, 3, v{u3}")
    su(f"v_mul_u32_u24 v{u3}, 160, v{u3}")
    su(f"v_add_u32 v{u3}, s{sWT}, v{u3}")
    su(f"v_lshl_add_u32 v{vW2R0}, v{u2}, 4, v{u3}")
    su(f"v_lshl_add_u32 v{vW2R1}, v{u2}, 3, v{u3}")
    su(f"s_lshr_b32 s72, s{sJ}, 3")
    su("s_lshl_b32 s72, s72, 1")
    su(f"s_lshr_b32 s73, s{sW}, 1")
    su("s_add_u32 s72, s72, s73")
    su(f"s_and_b32 s73, s{sJ}, 7")
    su("s_lshl_b32 s73, s73, 4              ; 16*db")
    su(f"s_and_b32 s74, s{sW}, 1")
    su("s_lshl_b32 s74, s74, 5")
    for sg in range(3):
        if sg < 2:
            su(f"v_lshl_add_u32 v{u3}, v{u0}, 3, v{u1}")
            su(f"v_add3_u32 v{u3}, v{u3}, s74, {4*sg}")
        else:
            su(f"v_lshl_add_u32 v{u3}, v{u0}, 2, v{u1}")
            su(f"v_add_u32 v{u3}, 64, v{u3}")
        su(f"v_mul_u32_u24 v{u4}, 205, v{u3}")
        su(f"v_lshrrev_b32 v{u4}, 10, v{u4}       ; dl/5")
        su(f"v_mul_u32_u24 v{u5}, 5, v{u4}")
        su(f"v_sub_u32 v{u5}, v{u3}, v{u5}         ; r5")
        su(f"v_add_u32 v{u4}, s73, v{u4}          ; P")
        su(f"v_cmp_lt_u32 s[76:77], 2, v{u5}")
        su(f"v_cmp_eq_u32 s[78:79], 2, v{u5}")
        su(f"v_subrev_u32 v{u7}, 3, v{u5}")
        su(f"v_cndmask_b32 v{u7}, v{u5}, v{u7}, s[76:77]")
        su(f"v_cndmask_b32 v{u6}, 0, 1, s[76:77]")
        su(f"v_lshl_add_u32 v{u6}, v{u4}, 1, v{u6}")
        su(f"v_lshl_add_u32 v{u6}, v{u7}, 8, v{u6}")
        su(f"v_add_u32 v{u6}, 128, v{u6}")
        su(f"v_cndmask_b32 v{u6}, v{u6}, v{u4}, s[78:79]   ; kappa")
        su(f"v_bfe_u32 v{u4}, v{u6}, 1, 1")
        su(f"v_bfe_u32 v{u5}, v{u6}, 3, 1")
        su(f"v_lshl_add_u32 v{u4}, v{u5}, 1, v{u4}")
        su(f"v_xor_b32 v{u4}, s72, v{u4}")
        su(f"v_lshlrev_b32 v{u6}, 7, v{u6}")
        su(f"v_lshl_add_u32 v{u6}, v{u4}, 5, v{u6}")
        su(f"v_lshl_add_u32 v{vRES+sg}, v{u2}, 3, v{u6}")
    su(f"v_and_b32 v{u3}, 15, v{vLANE}        ; n")
    su(f"v_lshlrev_b32 v{u4}, 2, v{u3}")
    su(f"s_lshl_b32 s73, s{sW}, 7")
    su(f"s_add_u32 s73, s73, {MS}")
    su(f"v_add_u32 v{vMW}, s73, v{u4}")
    su("s_lshl_b32 s73, s72, 7")
    su(f"s_add_u32 s73, s73, {MS}")
    su(f"v_add_u32 v{vSC}, s73, v{u4}")
    su(f"v_cmp_eq_u32 s[76:77], v{u0}, v{u1}")
    su(f"v_add_u32 v{u5}, 64, v{vMW}")
    su(f"v_mov_b32 v{u6}, {MS+1024}")
    su(f"v_cndmask_b32 v{vGW}, v{u6}, v{u5}, s[76:77]")
    su("s_mov_b32 s66, 0xaaaaaaaa")
    su("s_mov_b32 s67, 0xaaaaaaaa")
    su("s_mov_b32 s68, 0xcccccccc")
    su("s_mov_b32 s69, 0xcccccccc")
    su(f"s_lshl_b32 s73, s{sTB}, 3")
    su("s_add_u32 s73, s73, s72")
    su(f"s_mul_i32 s{sOUTO}, s73, {16*1280}")
    su(f"s_and_b32 s73, s{sJ}, 7")
    su("s_mul_i32 s73, s73, 160")
    su(f"s_add_u32 s{sOUTO}, s{sOUTO}, s73")
    su(f"v_mul_u32_u24 v{u3}, 1280, v{u3}")
    su("s_lshl_b32 s73, s74, 1              ; 64*(w&1)")
    su(f"v_lshl_add_u32 v{u4}, v{u0}, 4, v{u3}")
    su(f"v_add_u32 v{vO4}, s73, v{u4}")
    su(f"s_and_b32 s73, s{sW}, 1")
    su(f"s_mul_i32 s73, s73, {BIG:#x}")
    su("s_add_u32 s73, s73, 128")
    su(f"v_lshl_add_u32 v{u4}, v{u0}, 3, v{u3}")
    su(f"v_add_u32 v{vO2}, s73, v{u4}")
    su(f"v_lshlrev_b32 v{vSR}, 2, v{vLANE}")
    su(f"v_add_u32 v{vSR}, s{sM0}, v{vSR}")
    for rl in range(3):
        su(f"s_mul_i32 s73, s{sW}, 3")
        su(f"s_add_u32 s73, s73, {rl}")
        su("s_lshr_b32 s74, s73, 2")
        su("s_lshl_b32 s74, s74, 12")
        su("s_and_b32 s73, s73, 3")
        su("s_lshl_b32 s73, s73, 8")
        su("s_add_u32 s73, s73, s74")
        su(f"v_add_u32 v{vSW+rl}, s73, v{vSR}")
        for ct in range(1, 4):
            su(f"v_xor_b32 v{vSW+3*ct+rl}, {1024*ct}, v{vSW+rl}")
    for k in range(12):
        su(f"v_add_f32 v{CS+k}, v{CS+k}, v{CT+k}")
    for sh in (8, 4, 2, 1):
        for k in range(12):
            su(f"v_add_f32_dpp v{CS+k}, v{CS+k}, v{CS+k} row_ror:{sh} row_mask:0xf bank_mask:0xf")
    su(f"s_lshl_b32 s73, s{sTB}, 3")
    su(f"s_add_u32 s73, s73, s{sW}")
    su("s_mul_i32 s73, s73, 49152")
    su(f"s_mul_i32 s74, s{sJ}, 3072")
    su("s_add_u32 s73, s73, s74")
    su(f"s_add_u32 s{sHMA}, s73, {HM:#x}")
    su(f"s_add_u32 s{sHMB}, s73, {HM + 4*49152:#x}")
    su(f"s_lshl_b32 s73, s{sTB}, 4")
    su(f"s_add_u32 s73, s73, s{sJ}")
    su("s_lshl_b32 s73, s73, 2")
    su(f"s_add_u32 s73, s73, s{sW}")
    su("s_lshl_b32 s73, s73, 6")
    su(f"s_add_u32 s{sFMA}, s73, {FM:#x}")
    su(f"s_add_u32 s{sFMB}, s73, {FM + 65536:#x}")
    su(f"s_and_b32 s73, s{sJ}, 7")
    su("s_mul_i32 s74, s73, 245760")
    su("s_lshl_b32 s73, s73, 6")
    su(f"s_add_u32 s{sFW2P}, s73, {FW2:#x}")
    su(f"s_mul_i32 s73, s{sW}, 61440")
    su("s_add_u32 s74, s74, s73")
    su(f"s_add_u32 s{sW2A}, s74, {W2P:#x}")
    su(f"s_add_u32 s{sW2B}, s74, {W2P + 2048:#x}")
    su(f"s_and_b32 s73, s{sW}, 1")
    su("s_lshl_b32 s73, s73, 11")
    su(f"v_add_u32 v{vW2P}, s73, v{vL16}")
    su(f"v_xor_b32 v{vW2M}, 0x800, v{vW2P}")
    su(f"v_min_u32 v{vPL0}, 11, v{vLANE}")
    su(f"s_mul_i32 s73, s{sW}, 12")
    su(f"v_add_u32 v{vPL0}, s73, v{vPL0}")
    su(f"v_lshlrev_b32 v{vPL0}, 9, v{vPL0}")
    suA = list(su)
    su = Lst()
    su(f"s_lshr_b32 s72, s{sJ}, 3            ; gamma")
    su(f"v_bfe_u32 v{u0}, v{vLANE}, 1, 2")
    su(f"s_lshl_b32 s73, s{sW}, 2")
    su(f"v_add_u32 v{u0}, s73, v{u0}")
    su(f"v_lshlrev_b32 v{u0}, 2, v{u0}")
    su(f"v_and_b32 v{u1}, 1, v{vLANE}")
    su("s_lshl_b32 s73, s72, 1")
    su(f"v_add3_u32 v{u0}, v{u0}, v{u1}, s73    ; 4j+wave")
    su(f"v_lshlrev_b32 v{vPM}, 6, v{u0}")
    su(f"s_lshl_b32 s{sFMP}, s{sTB}, 12")
    su(f"s_add_u32 s{sFMP}, s{sFMP}, {FM:#x}")
    su(f"s_lshr_b32 s73, s{sW}, 1")
    su("s_mul_i32 s74, s73, 49152")
    su(f"v_add_u32 v{vHM}, s74, v{vL16}")
    su("s_xor_b32 s73, s73, 1")
    su("s_mul_i32 s74, s73, 49152")
    su(f"v_add_u32 v{vHM+1}, s74, v{vL16}")
    su(f"s_lshl_b32 s73, s{sTB}, 2")
    su("s_add_u32 s73, s73, s72")
    su("s_mul_i32 s73, s73, 98304")
    su(f"s_mul_i32 s74, s{sW}, 12288")
    su("s_add_u32 s73, s73, s74")
    su(f"s_add_u32 s{sHML}, s73, {HM:#x}")
    for rel in range(1, 4):
        su(f"s_xor_b32 s73, s{sW}, {rel}")
        su("s_mul_i32 s73, s73, 6144")
        su(f"s_add_u32 s73, s73, {RB + (rel-1)*2048}")
        su(f"v_add_u32 v{vQ+rel-1}, s73, v{vL16}")
    su(f"s_lshr_b32 s73, s{sW}, 1")
    su("s_lshl_b32 s73, s73, 12")
    su(f"s_add_u32 s73, s73, {RB + 24576}")
    su(f"v_add_u32 v{vQ+6}, s73, v{vL16}")
    su(f"v_add_u32 v{vQ+3}, s{sM0}, v{vQ+6}")
    su(f"v_xor_b32 v{vQ+4}, 0x1000, v{vQ+3}")
    su(f"s_mul_i32 s73, s{sW}, 6144")
    su(f"s_add_u32 s73, s73, {RB}")
    su(f"v_add_u32 v{vQ+5}, s73, v{vL16}")
    HX = [160, 132]
    suB = list(su)

    def flat(lst):
        o = []
        for g in lst:
            if isinstance(g, list) and not any("@use" in t for t in g):
                o += g
            else:
                o.append(g)
        return o

    def step(main, rd, extra, vm=(), width=2):
        rd = list(rd)
        extra = flat(extra)
        vm = list(vm)
        pos = {}
        for k, g in enumerate(vm):
            pos.setdefault(1 + (k * (len(main) - 1)) // len(vm), []).extend(g)
        carry = []
        for i, m in enumerate(main):
            a(m)
            slots = width if i + 1 < len(main) else width - 1
            if i in pos:
                carry += pos[i]
            if rd:
                a(rd.pop(0))
                slots -= 1
            while slots and carry:
                a(carry.pop(0))
                slots -= 1
            while slots and extra:
                emit(a, [extra.pop(0)])
                slots -= 1
        emit(a, rd)
        emit(a, carry)
        return extra

    def w2_dma():
        a("s_cmp_eq_u32 s64, 1")
        a("s_cbranch_scc0 NOW2D")
        for n in range(6):
            a(f"s_add_u32 m0, s{sWT}, {960*n}")
            a(f"s_add_u32 s75, s{sW2R}, {6*1280*n}")
            a(f"buffer_load_dwordx4 v{vW2V}, {sr(RX)}, s75 offen lds ; @def:w2raw")
        a.label("NOW2D")

    def w2_job():
        JF = 48
        a("s_cmp_eq_u32 s64, 1")
        a("s_cbranch_scc0 NOW2J")
        a("; @use:w2raw")
        for rt in range(5):
            off = 64 * (rt >> 1) + 8 * (rt & 1) if rt < 4 else 128
            a(f"ds_read_b64_tr_b16 {vr(JF+4*rt,2)}, v{vW2R0 if rt < 4 else vW2R1} offset:{off}")
            a(f"ds_read_b64_tr_b16 {vr(JF+4*rt+2,2)}, v{vW2R0 if rt < 4 else vW2R1} offset:{off+2560}")
        for rt in range(5):
            if rt == 4:
                a(f"s_add_u32 s{sW2ST}, s{sW2ST}, 4096")
            a(f"buffer_store_dwordx4 {vr(JF+4*rt,4)}, v{vL16}, {sr(RWS)}, s{sW2ST} offen offset:{1024*(rt&3)} sc1 ; @def:w2st")
        a.label("NOW2J")

    poll(a, vPL1, sPH1, vPD, pre_issued=True)
    stamp(a, "pollH1")
    for s in range(4, 8):
        emit(a, [dma(0, s)])
    sync([f"d0_{s}" for s in range(4)])
    stamp(a, "acts")
    emit(a, reads(0, 0))
    w2_dma()
    W = lambda n: [w1_load() for _ in range(n)]
    Dm = lambda h, lo, hi: [dma(h, k) for k in range(lo, hi)]
    pl2 = [f"buffer_load_dword v{vPD}, v{vPL1}, {sr(RWS)}, s{sPH2} offen sc1"]
    plan = {0: lambda: W(4), 1: lambda: W(2) + Dm(0, 8, 10), 2: lambda: W(2) + Dm(0, 10, 12), 3: lambda: W(4) + [pl2],
            4: lambda: W(4), 5: lambda: W(4), 6: lambda: W(2) + Dm(0, 12, 14), 7: lambda: W(2) + Dm(0, 14, 16),
            8: lambda: W(4), 9: lambda: W(3) + Dm(0, 16, 17), 10: lambda: W(3) + Dm(0, 17, 18), 11: lambda: W(2) + Dm(0, 18, 20),
            12: lambda: W(4), 13: lambda: W(4), 14: lambda: W(4), 15: lambda: Dm(1, 0, 3) , 16: lambda: Dm(1, 3, 6),
            17: lambda: Dm(1, 6, 9), 18: lambda: Dm(1, 9, 12), 19: lambda: Dm(1, 12, 14)}
    q = suA
    for s in range(20):
        if s == 6:
            poll(a, vPL1, sPH2, vPD, pre_issued=True)
        if s == 8:
            w2_job()
        if s in (3, 7, 11, 15):
            sync([f"d0_{k}" for k in range(s + 1, s + 5)])
        if s == 19:
            sync([f"d1_{k}" for k in range(0, 3)])
        stamp(a, f"a{s}")
        a(f"; @use:bf{s} @use:w1_{s}")
        vm = plan[s]()
        if s == 14:
            vm.append(["; @use:w2st", f"buffer_store_dword v{vTAGV}, v{vFLAG}, {sr(RWS)}, s{sFW2O} offen sc1"])
        assert w1n[0] >= min(60, 3 * (s + 3)), (s, w1n[0])
        if s == 19:
            assert not q
            q = ["s_nop 0"] + stat_calc()
        q = step(mf(0, s), reads(0, s + 1) if s < 19 else res_reads(0) + reads(1, 0), q, vm, width=3 if s < 15 else 2)
        if not q and s < 19 and suA:
            print("pass A set-up done in step", s)
            suA = None
    emit(a, q)
    assert w1n[0] == 60
    stamp(a, "passA")
    sync(["res0"])
    emit(a, stat_write(0))
    q = [f"buffer_load_dword v{vPD}, v{vPL0}, {sr(RWS)}, s{sFW2P} offen sc1",
         ["; @use:mw0 " + " ".join(f"@use:d1_{k}" for k in range(3, 9)), "s_barrier"]] + stat_reads(0) + epi1(0, True) + epi2(0) + suB
    dq = Dm(1, 14, 20)
    for s in range(20):
        if s == 3:
            poll(a, vPL0, sFW2P, vPD, pre_issued=True)
        if s == 7:
            sync([f"d1_{k}" for k in range(9, 20)])
        stamp(a, f"b{s}")
        a(f"; @use:bf{20+s}")
        vm = [dq.pop(0) for _ in range(min(len(dq), 2))]
        while s >= 3 and len(vm) < (3 if s & 1 else 2) and w2n[0] < 3 * s:
            vm.append(w2_load())
        if s == 14:
            vm.append(mflag(0))
        if s == 19:
            assert not q
            q = 6 * ["s_nop 0"] + stat_calc() + stat_write(1) + [f"buffer_load_dword v{vPD}, v{vPM}, {sr(RWS)}, s{sFMP} offen sc1"]
        had = len(q)
        q = step(mf(1, s), reads(1, s + 1) if s < 19 else res_reads(1), q, vm)
        if had > len(suB) >= len(q):
            print("epilogue A done in step", s)
    assert not q
    stamp(a, "passB")
    sync(["mw1"])
    emit(a, stat_reads(1))
    HF = 0

    def hm_loads(h, order):
        o = []
        for ks, c in order:
            o.append([f"s_add_u32 s75, s{sHML}, {4*49152*h + 4096*(ks>>2)}",
                      f"buffer_load_dwordx4 {vr(HF+8*ks+4*c,4)}, v{vHM+c}, {sr(RWS)}, s75 offen offset:{1024*(ks&3)} sc1"])
        return o

    ksmaj = [(ks, c) for ks in range(12) for c in range(2)]
    cmaj = [(ks, c) for c in (1, 0) for ks in range(12)]
    wl = []
    while w2n[0] < 60:
        wl.append(w2_load())
    print("W2 loads left after pass B:", len(wl))
    wl = interleave(a, epi1(1, False), wl, start=4, every=14)
    emit(a, epi2(1))
    stamp(a, "epiB")
    poll(a, vPM, sFMP, vPD, pre_issued=True)
    stamp(a, "pollMA")
    AC = 188
    RDR = 96
    rdr = [96 + 4 * k for k in range(8)] + [148, 152]

    def g2_pass(h, order, loads, pre, extra):
        emit(a, loads[:pre])
        loads = loads[pre:]
        fill = Lst()
        den_from(fill, SVH[h], SVH[h] + 1, 146)
        for k in range(6):
            fill(f"v_lshlrev_b32 v{HX[h]+2*k}, 16, v{HRES[h]+k}")
            fill(f"v_and_b32 v{HX[h]+2*k+1}, 0xffff0000, v{HRES[h]+k}")
        ro = 32768 * h
        wr1 = [(vQ + 1, 20, 0), (vQ + 1, 24, 1024), (vQ + 2, 28, 0), (vQ + 2, 32, 1024), (vQ + 4, 36, 0)]
        wr0 = [(vQ, 8, 0), (vQ, 12, 1024), (vQ + 3, 16, 0)]
        wf = lambda l: [f"ds_write_b128 v{va_}, {vr(AC+r,4)} offset:{ro+off}" for va_, r, off in l]
        n = 0
        for i, (ks, c) in enumerate(order):
            for r in range(5):
                acc = vr(AC + 20 * c + 4 * r, 4)
                for g in loads:
                    for t in g:
                        assert not t.startswith(f"buffer_load_dwordx4 {ar(20*ks+4*r,4)},") and not t.startswith(f"buffer_load_dwordx4 {vr(HF+8*ks+4*c,4)},"), t
                a(f"v_mfma_f32_16x16x32_bf16 {acc}, {ar(20*ks+4*r,4)}, {vr(HF+8*ks+4*c,4)}, {'0' if ks == 0 else acc}")
                n += 1
                if n in extra:
                    emit(a, [extra[n]])
                elif loads and n % 3 == 0:
                    emit(a, [loads.pop(0)])
                elif fill:
                    a(fill.pop(0))
                elif order is cmaj and n > 70 and n % 5 == 0 and wr1:
                    emit(a, wf([wr1.pop(0)]))
        assert not loads and not fill
        emit(a, wf(wr1 + wr0))

    def g2_fin(h):
        ro = 32768 * h
        a("s_waitcnt lgkmcnt(0)")
        a("s_barrier")
        for k in range(6):
            a(f"ds_read_b128 {vr(rdr[k],4)}, v{vQ+5} offset:{ro+1024*k}")
        for k in range(4):
            a(f"ds_read_b128 {vr(rdr[6+k],4)}, v{vQ+6} offset:{ro+1024*k}")
        for k in range(6):
            for e in (0, 2):
                a(f"v_pk_add_f32 {vr(AC+4*(k&1)+e,2)}, {vr(AC+4*(k&1)+e,2)}, {vr(rdr[k]+e,2)}")
        for e in (0, 2):
            a(f"v_pk_add_f32 {vr(rdr[6]+e,2)}, {vr(rdr[6]+e,2)}, {vr(rdr[7]+e,2)}")
            a(f"v_pk_add_f32 {vr(rdr[8]+e,2)}, {vr(rdr[8]+e,2)}, {vr(rdr[9]+e,2)}")
        for e in (0, 2):
            a(f"v_pk_add_f32 {vr(AC+8+e,2)}, {vr(rdr[6]+e,2)}, {vr(rdr[8]+e,2)}")
        for k in range(6):
            a(f"v_pk_fma_f32 {vr(AC+2*k,2)}, {vr(AC+2*k,2)}, {vr(SVH[h],2)}, {vr(HX[h]+2*k,2)} op_sel:[0,1,0] op_sel_hi:[1,1,1]")
        for k in range(6):
            a(f"v_cvt_pk_bf16_f32 v{96+k}, v{AC+2*k}, v{AC+2*k+1}")
        a(f"buffer_store_dwordx4 v[96:99], v{vO4}, {sr(ROUT)}, s{sOUTO} offen")
        a(f"buffer_store_dwordx2 v[100:101], v{vO2}, {sr(ROUT)}, s{sOUTO} offen")
        if h == 0:
            a(f"s_add_u32 s{sOUTO}, s{sOUTO}, {64*1280}")

    hl = hm_loads(0, ksmaj)
    mix = []
    for k in range(max(len(hl), len(wl))):
        if k < len(hl):
            mix.append(hl[k])
        if k < len(wl):
            mix.append(wl[k])
    print("g2A loads", len(mix))
    g2_pass(0, ksmaj, mix, 8, {7: mflag(1), 100: [f"s_add_u32 s{sFMP}, s{sFMP}, 65536",
                                                  f"buffer_load_dword v{vPD}, v{vPM}, {sr(RWS)}, s{sFMP} offen sc1"]})
    stamp(a, "g2A")
    poll(a, vPM, sFMP, vPD, pre_issued=True)
    stamp(a, "pollMB")
    hl = hm_loads(1, cmaj)
    emit(a, hl[:12])
    g2_fin(0)
    stamp(a, "finA")
    g2_pass(1, cmaj, hl[12:], 0, {})
    stamp(a, "g2B")
    g2_fin(1)
    a("s_cmp_eq_u32 s2, 0")
    a("s_cbranch_scc0 NOGEN")
    a(f"s_cmp_eq_u32 s{sW}, 0")
    a("s_cbranch_scc0 NOGEN")
    a(f"buffer_store_dword v{vTAGV}, v{vFLAG}, {sr(RWS)}, 0 offen sc1")
    a.label("NOGEN")
    if PROF:
        a("s_waitcnt vmcnt(0)")
        a("s_memtime s[100:101]")
        a("s_memrealtime s[76:77]")
        a("s_waitcnt lgkmcnt(0)")
        a("v_mov_b32 v1, 0")
        for k in range(11):
            a(f"v_writelane_b32 v1, s{80+2*k}, {k}")
        a("v_writelane_b32 v1, s76, 11")
        a(f"s_add_u32 s40, s{sWS}, {PROFBASE:#x}")
        a(f"s_addc_u32 s41, s{sWS+1}, 0")
        a("s_mov_b32 s42, 0x40000")
        a(f"v_lshlrev_b32 v2, 2, v{vLANE}")
        a("s_lshl_b32 s72, s2, 2")
        a(f"s_add_u32 s72, s72, s{sW}")
        a("s_lshl_b32 s72, s72, 7")
        a("s_mov_b64 exec, 0xffffffff")
        a("buffer_store_dword v1, v2, s[40:43], s72 offen")
    a.label("END")
    a("s_endpgm")
    return a


def main(path):
    ref = open(f"cdna_kernels/{NAME}.s.ref").read().split("\n")
    head = [l for l in ref if l.startswith(";") and "@launch" not in l]
    out = head[:]
    out.append("; @launch grid=(256,1,1) block=(256,1,1) lds=163840")
    out.append('.amdgcn_target "amdgcn-amd-amdhsa--gfx950"')
    out.append(".text")
    a = gen()
    for i in a.ins:
        if "CODE_LIM" in i.text:
            i.text = i.text.replace("CODE_LIM", "0x1230")
    b, d, e = kernel_text(NAME + "_kernel", a, auto=True, align=True)
    size = sum(getattr(i, "size", 0) for i in a.ins)
    lim = (size - 256) & ~15
    b = b.replace("v_min_u32 v2, 0x1230, v2", f"v_min_u32 v2, {lim:#x}, v2")
    out.append(b)
    out.append('.section .rodata,"a"')
    out.append(d)
    open(path, "w").write("\n".join(out))


if __name__ == "__main__":
    main(sys.argv[1] if len(sys.argv) > 1 else f"cdna_kernels/{NAME}.s")
```

```python
import os
import sys
import struct
from asmgen import Asm, kernel_text

NAME = "sequential_preLN__ssm_conv_s4__glu_gated_reglu__prompt"
L, D, N, F = 2048, 640, 192, 1536
PROF = bool(os.environ.get("PROF", ""))
PROFBASE = 0x2000000

FW2 = 0x1000
GEN, FW, FH, FM, S1, ST2 = 0x0, 0x70000, 0x10000, 0x40000, 0x60000, 0x80000
CSP = 0xC0000
XR, HT, W1P, W2P, HM, WS_END = 0x100000, 0x500000, 0x800000, 0xC00000, 0xE00000, 0x1400000
SZ_X = D * L * 2
SZ_W = D * F * 2
TAB, TABS = 0, 2816
STG, STGS = 25600, 15232
XQ = 88832
WTS = 114688
R0B, R1B = 0, 24320
BSB = 25600
CHB, CHS = 57344, 18944
RT = [139264, 114688, 90112]
C_U0, C_U2, C_KO, C_KE = 0, 5152, 10304, 14528
R2B = CHB
HALF = 81920
SPIN = 200000

sWG, sW = 2, 3
sX, sPAR, sLDT, sDSK, sWGP, sWUP, sWDP, sOUT, sWS = 4, 6, 18, 20, 24, 26, 28, 30, 34
RWS, RX, RW, RWD, ROUT = 36, 40, 44, 48, 52
sTAG = 56
sP, sE, sCH0, sCH1 = 57, 58, 59, 60
sTB, sJ = 61, 62
sLO, sHI, sONE = 63, 64, 65
sD0 = 22
DSEL = [(22, 23), (66, 67), (68, 69)]
sT = 70
vLANE, vL16, vFLAG, vTAGV, vW1 = 240, 241, 242, 243, 244
BIG = 0x7FFFFFF0


def f2u(x):
    return struct.unpack("<I", struct.pack("<f", x))[0]


def vr(b, n):
    return f"v[{b}:{b+n-1}]"


def ar(b, n):
    return f"a[{b}:{b+n-1}]"


def sr(b, n=4):
    return f"s[{b}:{b+n-1}]"


class Lst(list):
    def __call__(self, t):
        self.append(t)


PSEL = [x for x in os.environ.get("PROF", "").split(",") if x]
assert len(PSEL) <= 8


def stamp(a, name):
    if name in PSEL:
        k = PSEL.index(name)
        a(f"s_memtime s[{84+2*k}:{85+2*k}] ; stamp")


def srd(a, s, base, size):
    a(f"s_mov_b32 s{s}, s{base}")
    a(f"s_mov_b32 s{s+1}, s{base+1}")
    a(f"s_mov_b32 s{s+2}, {size:#x}")
    a(f"s_mov_b32 s{s+3}, 0x20000")


def interleave(a, main, fill, start=0, per=1, every=1):
    k = 0
    for i, m in enumerate(main):
        for t in (m if isinstance(m, list) else [m]):
            a(t)
        if i >= start and (i - start) % every == 0:
            for _ in range(per):
                if k < len(fill):
                    g = fill[k]
                    for t in (g if isinstance(g, list) else [g]):
                        a(t)
                    k += 1
    return fill[k:]


def emit(a, lst):
    for g in lst:
        for t in (g if isinstance(g, list) else [g]):
            a(t)


def ln_den(a, vs, vq, t0):
    inv = f2u(1.0 / D)
    a(f"v_mul_f32 v{vs}, {inv:#x}, v{vs}")
    a(f"v_mul_f32 v{vq}, {inv:#x}, v{vq}")
    a(f"v_fma_f32 v{vq}, -v{vs}, v{vs}, v{vq}")
    a(f"v_max_f32 v{vq}, 0, v{vq}")
    a(f"v_cvt_pk_bf16_f32 v{t0}, v{vq}, v{vq}")
    a(f"v_lshlrev_b32 v{vq}, 16, v{t0}")
    a(f"v_add_f32 v{vq}, {f2u(1e-5):#x}, v{vq}")
    a(f"v_cvt_pk_bf16_f32 v{t0}, v{vq}, v{vq}")
    a(f"v_lshlrev_b32 v{vq}, 16, v{t0}")
    a(f"v_sqrt_f32 v{vq}, v{vq}")
    a(f"v_cvt_pk_bf16_f32 v{t0}, v{vq}, v{vq}")
    a(f"v_lshlrev_b32 v{vq}, 16, v{t0}")
    a(f"v_rcp_f32 v{vq}, v{vq}")


def den_from(a, vm, vq, t0):
    a(f"v_mul_f32 v{vq}, {f2u(1.0 / D):#x}, v{vq}")
    a(f"v_fma_f32 v{vq}, -v{vm}, v{vm}, v{vq}")
    a(f"v_max_f32 v{vq}, 0, v{vq}")
    a(f"v_cvt_pk_bf16_f32 v{t0}, v{vq}, v{vq}")
    a(f"v_lshlrev_b32 v{vq}, 16, v{t0}")
    a(f"v_add_f32 v{vq}, {f2u(1e-5):#x}, v{vq}")
    a(f"v_cvt_pk_bf16_f32 v{t0}, v{vq}, v{vq}")
    a(f"v_lshlrev_b32 v{vq}, 16, v{t0}")
    a(f"v_sqrt_f32 v{vq}, v{vq}")
    a(f"v_cvt_pk_bf16_f32 v{t0}, v{vq}, v{vq}")
    a(f"v_lshlrev_b32 v{vq}, 16, v{t0}")
    a(f"v_rcp_f32 v{vq}, v{vq}")
    a(f"v_mul_f32 v{vq}, v{vq}, v{vq}")


def cmuls(a, lst):
    for d, x, y in lst:
        assert d not in (x, y)
        a(f"v_pk_mul_f32 {vr(d,2)}, {vr(x,2)}, {vr(y,2)} op_sel:[0,0] op_sel_hi:[0,1]")
    for d, x, y in lst:
        a(f"v_pk_fma_f32 {vr(d,2)}, {vr(x,2)}, {vr(y,2)}, {vr(d,2)} op_sel:[1,1,0] op_sel_hi:[1,0,1] neg_lo:[1,0,0]")


_pollid = [0]


def poll(a, vaddr, soff, vdst, pre_issued=False):
    n = _pollid[0]
    _pollid[0] += 1
    a(f"s_mov_b32 s{sT}, 0")
    if pre_issued:
        a(f"v_cmp_ne_u32 vcc, s{sTAG}, v{vdst}")
        a(f"s_cbranch_vccz POLLD{n}")
    a.label(f"POLL{n}")
    a(f"buffer_load_dword v{vdst}, v{vaddr}, {sr(RWS)}, s{soff} offen sc1")
    a(f"s_add_u32 s{sT}, s{sT}, 1")
    a(f"s_cmp_gt_u32 s{sT}, {SPIN}")
    a("s_waitcnt vmcnt(0)")
    a(f"s_cbranch_scc1 POLLD{n}")
    a(f"v_cmp_ne_u32 vcc, s{sTAG}, v{vdst}")
    a(f"s_cbranch_vccnz POLL{n}")
    a.label(f"POLLD{n}")


def flag_store(a, soff):
    a(f"buffer_store_dword v{vTAGV}, v{vFLAG}, {sr(RWS)}, s{soff} offen sc1")


W1EV = int(os.environ.get("W1EV", "5"))
NW1C = int(os.environ.get("NW1C", "48"))
W1AT = int(os.environ.get("W1AT", "0"))
NW1A = int(os.environ.get("NW1A", "6"))
NW1B = int(os.environ.get("NW1B", "9"))


sW1D, sW1STEP, sW1ST, sCSST, sFWO, sFHO, sH0, sH1, sH2 = 4, 5, 6, 7, 8, 9, 10, 11, 12
sW1L, sCSL, sPH0, sPH1, sPH2, sACT, sM0, sXR, sWT = 13, 14, 15, 16, 17, 18, 19, 20, 21
sHMA, sHMB, sFMA, sFMB, sW2R, sW2ST, sFW2O, sFW2P, sW2A, sW2B = 24, 25, 26, 27, 28, 29, 30, 31, 32, 33
sFWP = 71
vH, vA, vB, vB0, vRW1, vRW0, vRW2 = 1, 2, 3, 4, 5, 6, 7
vRR0, vRR1, vRQ0, vRQ1 = 12, 13, 14, 15
vRZ0, vRZ1, vH0, vPU, vPB, vOB = 244, 245, 246, 247, 248, 249
vPD = 255
vWA, vWB, vT0 = 230, 233, 251
sWJ, sM3 = 13, 14
vW2V, vW2R0, vW2R1 = 236, 237, 238


def gen():
    a = Asm()
    a("s_cmp_ge_u32 s2, 256")
    a("s_cbranch_scc1 END")
    if PROF:
        a("s_memrealtime s[80:81] ; stamp")
        a("s_memtime s[82:83] ; stamp")
    a("s_load_dwordx16 s[4:19], s[0:1], 0")
    a("s_load_dwordx16 s[20:35], s[0:1], 64")
    a("v_lshrrev_b32 v1, 6, v0")
    a(f"v_and_b32 v{vLANE}, 63, v0")
    a(f"v_readfirstlane_b32 s{sW}, v1")
    a(f"v_lshlrev_b32 v{vL16}, 4, v{vLANE}")
    a("s_getpc_b64 s[70:71]")
    a("s_lshr_b32 s72, s2, 3")
    a("s_lshl_b32 s72, s72, 12")
    a(f"v_lshlrev_b32 v{vH}, 4, v0           ; 16*tid")
    a(f"v_add_u32 v2, s72, v{vH}")
    a("v_min_u32 v2, CODE_LIM, v2")
    a("global_load_dwordx4 v[196:199], v2, s[70:71]")
    a(f"s_lshr_b32 s{sP}, s2, 1")
    a(f"s_and_b32 s{sE}, s2, 1")
    a(f"s_mul_i32 s{sCH0}, s{sP}, 5")
    a(f"s_mul_i32 s{sCH1}, s{sE}, 3")
    a(f"s_add_u32 s{sCH1}, s{sCH1}, s{sCH0}")
    a(f"s_add_u32 s{sCH0}, s{sCH0}, 2")
    a(f"s_and_b32 s{sTB}, s2, 1")
    a(f"s_lshl_b32 s{sTB}, s{sTB}, 3")
    a("s_bfe_u32 s72, s2, 0x30003")
    a(f"s_add_u32 s{sTB}, s{sTB}, s72")
    a(f"s_bfe_u32 s{sJ}, s2, 0x20001")
    a(f"s_lshl_b32 s{sJ}, s{sJ}, 2")
    a("s_lshr_b32 s72, s2, 6")
    a(f"s_add_u32 s{sJ}, s{sJ}, s72")
    a(f"s_mov_b32 s{sONE}, 0x3f803f80")
    a(f"v_cmp_eq_u32 vcc, 0, v{vLANE}")
    a(f"v_mov_b32 v{vFLAG}, {BIG:#x}")
    a(f"v_cndmask_b32 v{vFLAG}, v{vFLAG}, 0, vcc")
    PB = 200
    TH = [0, 0, 1, 2, 0, 1, 2, 0, 1, 2]

    def wd(g):
        o = []
        for s in (2 * g, 2 * g + 1):
            drow = 160 * s if s < 4 else 80 * ((s - 4) & 7) + (1 if s >= 12 else 0)
            for n in range(3):
                x = [f"s_add_u32 s71, s{sWJ}, {drow*3072}"] if n == 0 else []
                x += [f"s_add_u32 m0, s{sM3}, {RT[TH[g]]+12288*(s&1)+1024*n}"]
                if n:
                    x += ["s_nop 0"] if False else []
                x += [f"buffer_load_dwordx4 v{(vWA if s < 4 else vWB)+n}, {sr(RW)}, s71 offen lds ; @def:wd{g}"]
                o.append(x)
        return o

    def wr(g):
        o = []
        for s in (2 * g, 2 * g + 1):
            for r in range(3):
                for hh in range(2):
                    tok = f" ; @def:wr{s}" if r == 2 and hh == 1 else ""
                    o.append(f"ds_read_b64_tr_b16 {ar(12*s+4*r+2*hh,2)}, v{vT0+r} offset:{RT[TH[g]]-RT[2]+12288*(s&1)+768*hh}{tok}")
        return o

    for it in range(3):
        a(f"s_add_u32 s75, s{sW}, {4*it}      ; unit")
        a("s_mul_i32 s76, s75, 11")
        a("s_lshr_b32 s76, s76, 5            ; rc = u/3")
        a("s_mul_i32 s77, s76, 3")
        a("s_sub_u32 s77, s75, s77           ; third")
        a(f"s_add_u32 s78, s{sCH1}, s76")
        a("s_sub_u32 s78, s78, 1")
        a("s_cmp_eq_u32 s76, 0")
        a(f"s_cselect_b32 s78, s{sCH0}, s78   ; channel")
        a("s_min_u32 s78, s78, 639")
        a("s_lshl_b32 s79, s78, 1")
        a(f"v_mov_b32 v{19+it}, s79")
        a("s_mul_i32 s78, s78, 384")
        a("s_lshl_b32 s77, s77, 7")
        a("s_add_u32 s78, s78, s77")
        a(f"v_lshlrev_b32 v{16+it}, 1, v{vLANE}")
        a(f"v_add_u32 v{16+it}, s78, v{16+it}")
    for r in range(PB, PB + 24):
        a(f"v_mov_b32 v{r}, 0")
    a(f"s_mul_i32 s75, s{sP}, 5")
    a(f"s_lshl_b32 s76, s{sE}, 1")
    a("s_add_u32 s75, s75, s76             ; cb")
    a("s_lshl_b32 s76, s75, 1")
    a("s_and_b32 s76, s76, 0xfffc")
    a("s_mul_i32 s72, s2, 10240")
    a(f"s_sub_u32 s74, s{sW}, 1")
    a("s_lshl_b32 s74, s74, 10")
    a("s_add_u32 s73, s72, s74")
    a(f"s_add_u32 s74, s74, {XQ}")
    a("s_waitcnt lgkmcnt(0)")
    stamp(a, "karg")

    def param_loads(its):
        for it in its:
            for k in range(6):
                a(f"global_load_short_d16_hi v{PB+8*it+k}, v{16+it}, s[{sPAR+2*k}:{sPAR+2*k+1}]")
            a(f"global_load_short_d16_hi v{PB+8*it+6}, v{19+it}, s[{sLDT}:{sLDT+1}]")

    param_loads([0])
    a(f"s_load_dword s{sTAG}, s[{sWS}:{sWS+1}], {GEN}")
    a(f"s_load_dwordx2 s[78:79], s[{sDSK}:{sDSK+1}], s76")
    srd(a, RX, sX, SZ_X)
    srd(a, RWS, sWS, WS_END)
    srd(a, RW, sWGP, SZ_W)
    srd(a, RWD, sWUP, SZ_W)
    srd(a, ROUT, sOUT, SZ_X)
    LOG2E = f2u(1.4426950408889634)
    a(f"s_mul_i32 s63, s{sW}, {STGS}")
    a(f"s_add_u32 s75, s63, {STG}")
    a(f"v_and_b32 v36, 31, v{vLANE}         ; b")
    a(f"v_bfe_u32 v37, v{vLANE}, 5, 1       ; h")
    a("v_mul_u32_u24 v35, 272, v36")
    a("v_lshl_add_u32 v35, v37, 4, v35")
    a("v_add_u32 v35, s75, v35")
    a(f"s_mul_i32 s75, s{sW}, {TABS}")
    a("v_lshlrev_b32 v8, 5, v36")
    a("v_lshl_add_u32 v8, v37, 4, v8")
    a("v_add_u32 v8, s75, v8")
    a("v_lshlrev_b32 v9, 4, v36")
    a("v_add_u32 v9, 1024, v9")
    a("v_lshlrev_b32 v10, 3, v36")
    a("v_add_u32 v10, 1536, v10")
    a("v_cmp_eq_u32 vcc, 1, v37")
    a("v_mov_b32 v11, 8")
    a("v_mov_b32 v24, 256")
    a("v_cndmask_b32 v9, v9, v10, vcc")
    a("v_cndmask_b32 v11, v11, v24, vcc")
    a("v_add_u32 v9, s75, v9")
    a("v_add_u32 v10, v9, v11")
    a("v_mul_u32_u24 v11, 384, v37")
    a("v_lshl_add_u32 v11, v36, 2, v11")
    a("v_add_u32 v11, s75, v11")
    cST, cRA, cRB, cS01, cS2, cSA = 224, 225, 226, 227, 228, 229
    a(f"v_lshrrev_b32 v24, 2, v{vLANE}      ; c16")
    a(f"v_and_b32 v25, 3, v{vLANE}          ; k")
    a("v_lshrrev_b32 v26, 1, v24")
    a("v_and_b32 v27, 1, v24               ; e")
    a("v_mul_u32_u24 v28, 5, v26")
    a("v_lshl_add_u32 v28, v27, 1, v28     ; cb")
    a("v_lshlrev_b32 v28, 1, v28")
    a("v_and_b32 v28, 0xfffc, v28")
    a("v_mul_u32_u24 v29, 2560, v25")
    a(f"s_and_b32 s76, s{sW}, 1")
    a("s_mul_i32 s75, s76, 640")
    a(f"s_add_u32 s75, s75, {XQ}")
    a(f"v_add3_u32 v{cRA}, v28, v29, s75")
    a(f"v_add_u32 v{cRB}, 1280, v{cRA}")
    a("v_and_b32 v26, 1, v26               ; parity")
    a("v_add_u32 v29, v26, v27             ; q1")
    a("v_lshlrev_b32 v30, 1, v27")
    a("v_sub_u32 v30, v26, v30")
    a("v_add_u32 v30, 2, v30               ; q0")
    a("v_lshl_add_u32 v30, v29, 16, v30")
    a("s_mov_b32 s75, 0x0202")
    a("v_mul_lo_u32 v30, v30, s75")
    a(f"v_add_u32 v{cS01}, 0x01000100, v30")
    a("v_add_u32 v29, 1, v29")
    a("s_mov_b32 s75, 0x02020202")
    a("v_mul_lo_u32 v29, v29, s75")
    a(f"v_add_u32 v{cS2}, 0x01000100, v29")
    a("v_lshlrev_b32 v24, 14, v24")
    a(f"v_lshl_add_u32 v{cST}, v25, 4, v24")
    a(f"v_lshrrev_b32 v24, 3, v{vLANE}")
    a("v_mul_u32_u24 v24, 1280, v24")
    a(f"v_and_b32 v25, 7, v{vLANE}")
    a("v_lshl_add_u32 v24, v25, 4, v24")
    a(f"v_add_u32 v{cSA}, {XQ}, v24")
    stamp(a, "f0")
    a(f"s_cmp_eq_u32 s{sW}, 0")
    a("s_cbranch_scc1 LD0")
    for n in range(4):
        a(f"s_add_u32 m0, s74, {3072*n}")
        a(f"s_add_u32 s75, s73, {3072*n}")
        if n == 3:
            a(f"s_cmp_eq_u32 s{sW}, 1")
            a(f"s_cselect_b32 s75, s75, {BIG:#x}")
        a(f"buffer_load_dwordx4 v{vL16}, {sr(RX)}, s75 offen lds")
    a("s_branch LDC")
    a.label("LD0")
    param_loads([2])
    a.label("LDC")
    param_loads([1])
    srd(a, RX, sWDP, SZ_W)
    t0, t1, t2, t3, t4, t5 = 24, 25, 26, 27, 28, 29
    a(f"v_and_b32 v{t0}, 1, v{vLANE}")
    a(f"v_bfe_u32 v{t1}, v{vLANE}, 1, 3")
    a(f"v_lshrrev_b32 v{t2}, 4, v{vLANE}     ; g")
    a(f"s_lshl_b32 s75, s{sW}, 7")
    a(f"s_sub_u32 s76, {CHB + C_KE + 2*252 - 64}, s75")
    a(f"v_mul_u32_u24 v{vA}, {C_KE-C_KO}, v{t0}")
    a(f"v_sub_u32 v{vA}, s76, v{vA}")
    a(f"v_lshlrev_b32 v{t3}, 3, v{t1}")
    a(f"v_sub_u32 v{vA}, v{vA}, v{t3}")
    a(f"v_lshl_add_u32 v{vA}, v{t2}, 4, v{vA}")
    a(f"s_sub_u32 s76, {CHB + C_U2 + 1024 - 64}, s75")
    a(f"v_mul_u32_u24 v{vB}, {C_U2-C_U0}, v{t0}")
    a(f"v_sub_u32 v{vB}, s76, v{vB}")
    a(f"v_lshl_add_u32 v{vB}, v{t1}, 6, v{vB}")
    a(f"v_lshl_add_u32 v{vB}, v{t2}, 4, v{vB}")
    a(f"s_lshl_b32 s76, s{sE}, 9")
    a(f"v_add_u32 v{vB0}, s76, v{vB}")
    a(f"v_subrev_u32 v{vB0}, 512, v{vB0}")
    a(f"v_bfe_u32 v{t3}, v{vLANE}, 2, 1")
    a(f"v_lshl_add_u32 v{t3}, v{t3}, 1, v{t0}")
    a(f"v_xor_b32 v{t3}, v{t3}, v{t2}")
    a(f"v_lshlrev_b32 v{t3}, 4, v{t3}")
    a(f"v_lshl_add_u32 v{t3}, v{t1}, 6, v{t3}")
    a(f"v_lshl_add_u32 v{t4}, v{t0}, 12, v{t3}")
    a(f"s_lshl_b32 s77, s{sW}, 13")
    a(f"s_add_u32 s76, s77, {R1B}")
    a(f"v_add_u32 v{vRW1}, s76, v{t4}")
    a(f"s_add_u32 s76, s77, {R2B}")
    a(f"v_add_u32 v{vRW2}, s76, v{t4}")
    a(f"v_lshl_add_u32 v{t4}, v{t0}, 11, v{t3}")
    a(f"s_lshl_b32 s77, s{sW}, 12")
    a(f"v_add_u32 v{vRW0}, s77, v{t4}")
    a(f"v_bfe_u32 v{t3}, v0, 3, 1")
    a(f"v_lshlrev_b32 v{t3}, 1, v{t3}")
    a(f"v_xor_b32 v{t3}, v{t3}, v0")
    a(f"v_lshlrev_b32 v{t3}, 4, v{t3}")
    a(f"v_add_u32 v{vRR0}, {R1B}, v{t3}")
    a(f"v_xor_b32 v{vRR1}, 16, v{vRR0}")
    a(f"v_add_u32 v{vRQ0}, {R2B}, v{t3}")
    a(f"v_xor_b32 v{vRQ1}, 16, v{vRQ0}")
    a(f"v_and_b32 v{t3}, 511, v{t3}")
    a(f"s_lshl_b32 s77, s{sW}, 9")
    a(f"v_add_u32 v{vRZ0}, s77, v{t3}")
    a(f"v_xor_b32 v{vRZ1}, 16, v{vRZ0}")
    a(f"v_bfe_u32 v{t3}, v{vLANE}, 5, 1")
    a(f"v_cmp_eq_u32 vcc, s{sE}, v{t3}")
    a(f"v_mov_b32 v{vH0}, {BIG:#x}")
    a(f"v_lshlrev_b32 v{vPU}, 2, v0")
    a(f"v_cndmask_b32 v{vH0}, v{vH0}, v{vH}, vcc")
    a(f"v_add_u32 v{vPU}, {CHB}, v{vPU}")
    a(f"v_lshlrev_b32 v{vPB}, 3, v0")
    a(f"v_add_u32 v{vPB}, {BSB}, v{vPB}")
    a(f"v_lshlrev_b32 v{vOB}, 5, v0")
    a(f"v_add_u32 v{vOB}, {BSB}, v{vOB}")
    a(f"s_lshl_b32 s{sXR}, s2, 14")
    a(f"s_add_u32 s{sXR}, s{sXR}, {XR:#x}")
    a(f"s_lshl_b32 s{sH0}, s{sCH0}, 12")
    a(f"s_add_u32 s{sH0}, s{sH0}, {HT:#x}")
    a(f"s_lshl_b32 s{sH1}, s{sCH1}, 12")
    a(f"s_add_u32 s{sH1}, s{sH1}, {HT:#x}")
    a(f"s_add_u32 s{sH2}, s{sH1}, 4096")
    a(f"s_lshl_b32 s{sFHO}, s{sW}, 8")
    a(f"s_add_u32 s{sFHO}, s{sFHO}, s2")
    a(f"s_lshl_b32 s{sFHO}, s{sFHO}, 6")
    a(f"s_add_u32 s{sFHO}, s{sFHO}, {FH:#x}")
    a(f"v_lshrrev_b32 v{t1}, 3, v{vLANE}     ; q")
    a(f"v_mul_u32_u24 v{t3}, 5, v{t1}")
    a(f"v_add_u32 v30, 2, v{t3}")
    a(f"v_mul_u32_u24 v{t4}, 5, v{t2}")
    a(f"v_and_b32 v{t5}, 1, v{t1}")
    a(f"v_mul_u32_u24 v{t5}, 3, v{t5}")
    a(f"v_add_u32 v31, v{t4}, v{t5}")
    a(f"v_and_b32 v32, 7, v{vLANE}")
    a(f"v_and_b32 v33, 1, v{t2}              ; (row>>1)&1")
    a(f"s_and_b32 s75, s{sW}, 1")
    a(f"s_lshl_b32 s75, s75, 1")
    a("v_or_b32 v33, s75, v33")
    a("v_lshlrev_b32 v33, 1, v33")
    a("v_xor_b32 v33, v33, v32")
    a("v_lshlrev_b32 v33, 4, v33")
    a(f"s_mul_i32 s75, s{sW}, 40")
    a("v_add_u32 v30, s75, v30")
    a("v_lshl_add_u32 v30, v30, 12, v33")
    a("v_accvgpr_write_b32 a240, v30")
    a(f"s_mul_i32 s75, s{sW}, 20")
    a("v_add_u32 v31, s75, v31")
    a("v_lshl_add_u32 v31, v31, 12, v33")
    a("v_accvgpr_write_b32 a241, v31")
    a(f"s_lshl_b32 s75, s{sW}, 3")
    a(f"v_lshlrev_b32 v30, 5, v{t1}")
    a("v_add3_u32 v30, v30, v32, s75       ; 32s'+8w+j")
    a("v_lshlrev_b32 v31, 6, v30")
    a("v_accvgpr_write_b32 a243, v31")
    a("v_and_b32 v30, 127, v30")
    a("v_lshlrev_b32 v30, 7, v30")
    a("v_accvgpr_write_b32 a242, v30")
    a(f"s_lshr_b32 s75, s{sTB}, 2")
    a("s_lshl_b32 s75, s75, 14")
    a(f"s_add_u32 s{sPH1}, s75, {FH + 65536:#x}")
    a(f"s_add_u32 s{sPH2}, s75, {FH + 131072:#x}")
    a(f"s_bfe_u32 s76, s{sTB}, 0x10001")
    a("s_lshl_b32 s76, s76, 6")
    a("s_add_u32 s75, s75, s76")
    a(f"s_add_u32 s{sPH0}, s75, {FH:#x}")
    a(f"s_lshl_b32 s{sACT}, s{sTB}, 8")
    a(f"s_add_u32 s{sACT}, s{sACT}, {HT:#x}")
    a(f"s_lshl_b32 s{sM0}, s{sW}, 10")
    a(f"v_bfe_u32 v{t1}, v{vLANE}, 2, 2      ; rr")
    a(f"v_lshl_add_u32 v{t3}, v{t2}, 3, v{t1}")
    a(f"v_lshlrev_b32 v{t3}, 7, v{t3}        ; row*128")
    a(f"v_and_b32 v{t4}, 1, v{t2}")
    a(f"v_lshrrev_b32 v{t5}, 1, v{t1}")
    a(f"v_lshl_add_u32 v{t4}, v{t4}, 1, v{t5}")
    a(f"v_xor_b32 v30, s{sW}, v{t4}")
    a(f"v_lshl_add_u32 v30, v30, 5, v{t3}")
    a(f"v_and_b32 v31, 3, v{vLANE}")
    a("v_lshl_add_u32 v30, v31, 3, v30")
    a("v_accvgpr_write_b32 a244, v30")
    a(f"s_cmp_ge_u32 s{sW}, 2")
    a(f"s_cselect_b64 s[{RW}:{RW+1}], s[{RWD}:{RWD+1}], s[{RW}:{RW+1}]")
    a(f"s_mul_i32 s{sWJ}, s{sJ}, 192")
    a(f"s_mul_i32 s{sM3}, s{sW}, 3072")
    a(f"s_and_b32 s76, s{sW}, 1")
    a("s_lshl_b32 s75, s76, 4")
    for n in range(3):
        a(f"v_add_u32 v32, {64*n}, v{vLANE}")
        a("v_mul_u32_u24 v33, 5462, v32")
        a("v_lshrrev_b32 v33, 16, v33          ; L'/12")
        a("v_mul_u32_u24 v34, 12, v33")
        a("v_sub_u32 v32, v32, v34")
        a("v_lshlrev_b32 v32, 4, v32")
        a("v_add_u32 v33, s75, v33             ; row")
        a("v_mul_u32_u24 v34, 5, v33")
        a("v_add_u32 v34, 2, v34")
        a("v_mul_u32_u24 v34, 3072, v34")
        a(f"v_add_u32 v{vWA+n}, v34, v32")
        a("v_lshrrev_b32 v34, 1, v33")
        a("v_mul_u32_u24 v34, 5, v34")
        a("v_and_b32 v33, 1, v33")
        a("v_mul_u32_u24 v33, 3, v33")
        a("v_add_u32 v34, v34, v33")
        a("v_mul_u32_u24 v34, 3072, v34")
        a(f"v_add_u32 v{vWB+n}, v34, v32")
    a(f"v_lshl_add_u32 v{t3}, v{t2}, 3, v{t1}")
    a(f"v_mul_u32_u24 v{t4}, 192, v{t3}")
    a(f"s_mul_i32 s75, s{sW}, 48")
    a(f"s_add_u32 s75, s75, {RT[2]}")
    a(f"v_add_u32 v{t4}, s75, v{t4}")
    a(f"v_lshl_add_u32 v{vT0}, v31, 3, v{t4}")
    a(f"v_add_u32 v{vT0+1}, 6144, v{vT0}")
    a(f"v_bfe_u32 v{t5}, v{vLANE}, 1, 1")
    a(f"v_mul_u32_u24 v{t5}, 6144, v{t5}")
    a(f"v_lshl_add_u32 v{t5}, v{t0}, 3, v{t5}")
    a(f"v_add3_u32 v{vT0+2}, v{t4}, v{t5}, 32")
    a("s_lshl_b32 s75, s2, 1")
    a("s_add_u32 s75, s75, s76")
    a("s_mul_i32 s75, s75, 30")
    a(f"v_min_u32 v250, 29, v{vLANE}")
    a("v_add_lshl_u32 v250, v250, s75, 7")
    stamp(a, "f1")
    a(f"v_mul_u32_u24 v24, 6554, v{vLANE}")
    a("v_lshrrev_b32 v24, 16, v24          ; L/10")
    a("v_mul_u32_u24 v24, 1120, v24")
    a(f"v_add_u32 v{vW2V}, v24, v{vL16}")
    a(f"s_lshl_b32 s75, s{sW}, 8")
    a("s_add_u32 s75, s75, s2              ; task")
    a("s_lshr_b32 s72, s75, 3")
    a("s_and_b32 s73, s75, 7")
    a(f"s_lshl_b32 s{sFW2O}, s75, 6")
    a(f"s_add_u32 s{sFW2O}, s{sFW2O}, {FW2:#x}")
    a(f"s_mul_i32 s{sW2R}, s72, {32*1280}")
    a("s_mul_i32 s74, s73, 160")
    a(f"s_add_u32 s{sW2R}, s{sW2R}, s74")
    a(f"s_mul_i32 s{sW2ST}, s73, 245760")
    a("s_mul_i32 s74, s72, 5120")
    a(f"s_add_u32 s{sW2ST}, s{sW2ST}, s74")
    a(f"s_add_u32 s{sW2ST}, s{sW2ST}, {W2P:#x}")
    a("s_cmp_lt_u32 s75, 384")
    a(f"s_cselect_b32 s{sW2ST}, s{sW2ST}, {BIG:#x}")
    a(f"s_cselect_b32 s{sFW2O}, s{sFW2O}, {BIG:#x}")
    a(f"s_mul_i32 s{sWT}, s{sW}, 5888")
    a(f"s_add_u32 s{sWT}, s{sWT}, {WTS}")
    a(f"v_mul_u32_u24 v24, 160, v{t3}")
    a(f"v_add_u32 v24, s{sWT}, v24")
    a(f"v_and_b32 v25, 3, v{vLANE}")
    a(f"v_lshl_add_u32 v{vW2R0}, v25, 4, v24")
    a(f"v_lshl_add_u32 v{vW2R1}, v25, 3, v24")
    a(f"s_mul_i32 s{sTAG}, s{sTAG}, 0x9E3779B1")
    a(f"s_add_u32 s{sTAG}, s{sTAG}, 0x7F4A7C15")
    a(f"v_mov_b32 v{vTAGV}, s{sTAG}")
    a(f"s_and_b32 s74, s{sP}, 1")
    for r in range(3):
        lo, hi = DSEL[r]
        if r == 0:
            a(f"s_lshl_b32 s73, s{sE}, 1")
            a("s_sub_u32 s73, s74, s73")
            a("s_add_u32 s73, s73, 2")
        else:
            a(f"s_add_u32 s73, s74, s{sE}")
            if r == 2:
                a("s_add_u32 s73, s73, 1")
        a("s_lshl_b32 s73, s73, 4")
        a(f"s_lshr_b64 s[{lo}:{hi}], s[78:79], s73")
        a(f"s_lshl_b32 s{lo}, s{lo}, 16")
        a(f"s_mov_b32 s{hi}, s{lo}")
    a(f"s_mov_b32 s76, {LOG2E:#x}")
    a(f"s_mov_b32 s77, {f2u(0.15915494309189535):#x}")
    a("s_mov_b32 m0, s63")
    a(f"s_mov_b32 s75, s{sW}                ; unit")
    a("s_waitcnt vmcnt(14)")
    a(f"s_cmp_eq_u32 s{sW}, 0")
    a("s_cbranch_scc1 P0W")
    a("s_waitcnt vmcnt(11)")
    a.label("P0W")
    a("; @clearvm")
    stamp(a, "job")
    a.label("KGEN")
    stamp(a, "k0")
    A_, B_, C_, LD_ = PB, PB + 2, PB + 4, PB + 6
    a(f"v_mul_f32 v32, {LOG2E:#x}, v{LD_}")
    a("v_exp_f32 v32, v32")
    a("v_cvt_pk_bf16_f32 v32, v32, v32")
    a("v_lshlrev_b32 v32, 16, v32          ; dt")
    a(f"v_pk_mul_f32 v[24:25], {vr(A_,2)}, v[32:33] op_sel:[0,0] op_sel_hi:[1,0]")
    a(f"v_pk_mul_f32 v[26:27], {vr(B_,2)}, v[32:33] op_sel:[0,0] op_sel_hi:[1,0]")
    a("v_pk_mul_f32 v[24:25], v[24:25], s[76:77]")
    P, Q, CV = 40, 56, 72
    p1, qq, w8 = 88, 90, 92
    RA = 104
    Rr = lambda k: RA + 2 * k
    R0 = Rr(0)
    cmuls(a, [(R0, C_, 26)])
    ev = [(P + 2, 8.0, 96), (p1, 1.0, 98), (qq, 256.0, 100)]
    for dst, sc, t in ev:
        if sc == 1.0:
            a(f"v_fract_f32 v{t+1}, v25")
        else:
            a(f"v_mul_f32 v{t}, {f2u(sc):#x}, v24")
            a(f"v_mul_f32 v{t+1}, {f2u(sc):#x}, v25")
            a(f"v_fract_f32 v{t+1}, v{t+1}")
    for dst, sc, t in ev:
        a(f"v_exp_f32 v{t}, v{24 if sc == 1.0 else t}")
        a(f"v_cos_f32 v{dst}, v{t+1}")
        a(f"v_sin_f32 v{dst+1}, v{t+1}")
    for dst, sc, t in ev:
        a(f"v_pk_mul_f32 {vr(dst,2)}, {vr(dst,2)}, {vr(t,2)} op_sel:[0,0] op_sel_hi:[1,0]")
    stamp(a, "k1")
    W = lambda k: P + 2 * k
    p2, p4, q2 = 96, 98, 100
    cmuls(a, [(W(2), W(1), W(1)), (p2, p1, p1), (q2, qq, qq), (Rr(1), R0, p1)])
    cmuls(a, [(W(3), W(2), W(1)), (W(4), W(2), W(2)), (p4, p2, p2), (Rr(2), R0, p2), (Rr(3), Rr(1), p2)])
    cmuls(a, [(W(5), W(4), W(1)), (W(6), W(4), W(2)), (W(7), W(4), W(3)), (Q, W(4), W(4))])
    AOFF = 32 * 272

    def put(vals, cv, neg):
        for k, (r, col) in enumerate(vals):
            if r is None:
                a(f"v_mov_b32 v{cv+k}, 0x3f80")
            else:
                a(f"v_cvt_pk_bf16_f32 v{cv+k}, v{r}, {'-' if neg else ''}v{r+1}")
        for k, (r, col) in enumerate(vals):
            a(f"ds_write_addtid_b32 v{cv+k} offset:{STG+272*col+(AOFF if neg else 0)}")

    stamp(a, "k2")
    a(f"v_pk_mov_b32 {vr(w8,2)}, {vr(Q,2)}, {vr(Q,2)} op_sel:[0,1]")
    cmuls(a, [(Q + 2 * k, P + 2 * k, w8) for k in range(1, 8)])
    put([(None, 0)] + [(P + 2 * k, k) for k in range(1, 8)] + [(Q + 2 * k, 8 + k) for k in range(8)], CV, False)
    cmuls(a, [(P + 2 * k, Q + 2 * k, w8) for k in range(8)])
    cmuls(a, [(Q + 2 * k, P + 2 * k, w8) for k in range(8)])
    put([(P + 2 * k, 16 + k) for k in range(8)] + [(Q + 2 * k, 24 + k) for k in range(8)], CV, False)
    FB, FA = 40, 148
    for s in range(8):
        a(f"ds_read_b128 {vr(FB+4*s,4)}, v35 offset:{32*s}")
    stamp(a, "k3")
    cmuls(a, [(Rr(4 + k), Rr(k), p4) for k in range(4)] + [(Rr(8), R0, qq), (Rr(9), Rr(2), qq), (Rr(12), R0, q2)])
    cmuls(a, [(Rr(10), Rr(4), qq), (Rr(11), Rr(6), qq), (Rr(13), Rr(4), q2), (Rr(14), Rr(8), q2), (Rr(16), Rr(12), q2)])
    cmuls(a, [(Rr(15), Rr(10), q2), (Rr(17), Rr(14), q2), (Rr(18), Rr(16), q2)])
    cmuls(a, [(Rr(20), Rr(17), q2), (Rr(21), Rr(18), q2)])
    stamp(a, "k4")
    put([(Rr(k), k) for k in list(range(19)) + [20, 21]], CV, True)
    for s in range(8):
        a(f"ds_read_b128 {vr(FA+4*s,4)}, v35 offset:{AOFF+32*s}")
    stamp(a, "k5")
    DK = 180
    for s in range(8):
        a(f"v_mfma_f32_32x32x16_bf16 {vr(DK,16)}, {vr(FA+4*s,4)}, {vr(FB+4*s,4)}, {'0' if s == 0 else vr(DK,16)}")
    stamp(a, "k6")
    a("s_add_u32 s75, s75, 4")
    a(f"ds_write_b128 v8, {vr(DK,4)}")
    a(f"ds_write_b64 v9, {vr(DK+4,2)}")
    a(f"ds_write_b64 v10, {vr(DK+6,2)}")
    for r in range(3):
        a(f"ds_write_b32 v11, v{DK+8+r} offset:{2048+128*r}")
    for r in range(8, 12):
        a(f"v_add_u32 v{r}, {4*TABS}, v{r}")
    a("s_cmp_ge_u32 s75, 8")
    a("s_cbranch_scc1 KG2")
    a("s_waitcnt vmcnt(0)")
    a("s_barrier")
    stamp(a, "xq")
    a(f"s_cmp_eq_u32 s{sW}, 0")
    a("s_cbranch_scc1 KNEXT1")
    a(f"s_cmp_eq_u32 s{sW}, 1")
    a("s_cbranch_scc1 PRE1")
    for i in range(8):
        a(f"ds_read2_b32 {vr(40+4*i,2)}, v{cRA} offset0:{20*i} offset1:{20*i+1}")
        a(f"ds_read2_b32 {vr(42+4*i,2)}, v{cRB} offset0:{20*i} offset1:{20*i+1}")
    a(f"s_and_b32 s78, s{sW}, 1")
    a("s_lshl_b32 s78, s78, 21")
    a("s_lshl_b32 s79, s2, 6")
    a("s_add_u32 s78, s78, s79")
    a(f"s_add_u32 s78, s78, {XR:#x}")
    a("s_mov_b32 s72, 0x05040100")
    a("s_mov_b32 s73, 0x07060302")
    for i in range(8):
        a(f"v_mov_b32 v{104+4*i+3}, s{sTAG}")
    for i in range(8):
        b = 40 + 4 * i
        o = 104 + 4 * i
        a(f"v_perm_b32 v32, v{b+1}, v{b}, v{cS01}")
        a(f"v_perm_b32 v33, v{b+3}, v{b+2}, v{cS01}")
        a(f"v_perm_b32 v34, v{b+1}, v{b}, v{cS2}")
        a(f"v_perm_b32 v38, v{b+3}, v{b+2}, v{cS2}")
        a(f"v_perm_b32 v{o}, v33, v32, s72")
        a(f"v_perm_b32 v{o+1}, v33, v32, s73")
        a(f"v_perm_b32 v{o+2}, v38, v34, s72")
        a(f"buffer_store_dwordx4 {vr(o,4)}, v{cST}, {sr(RWS)}, s78 offen sc1")
        if i < 7:
            a(f"s_add_u32 s78, s78, {16*16384}")
    stamp(a, "recs")
    a("s_branch KNEXT1")
    a.label("PRE1")
    SB = 40
    for c in range(10):
        a(f"ds_read_b128 {vr(SB+4*c,4)}, v{cSA} offset:{128*c}")
    a(f"v_and_b32 v38, 15, v{vLANE}")
    a("v_cmp_eq_u32 vcc, 0, v38")
    a(f"v_mov_b32 v38, {BIG:#x}")
    a(f"v_mov_b32 v107, s{sTAG}")
    a(f"v_cndmask_b32 v38, v38, v{vLANE}, vcc")
    a("s_lshl_b32 s78, s2, 6")
    a(f"s_add_u32 s78, s78, {S1:#x}")
    for k in range(40):
        a(f"v_dot2_f32_bf16 v32, v{SB+k}, s{sONE}, {'0' if k == 0 else 'v32'}")
        a(f"v_dot2_f32_bf16 v33, v{SB+k}, v{SB+k}, {'0' if k == 0 else 'v33'}")
    for m in ("quad_perm:[1,0,3,2]", "quad_perm:[2,3,0,1]", "row_half_mirror"):
        a(f"v_add_f32_dpp v32, v32, v32 {m} row_mask:0xf bank_mask:0xf")
        a(f"v_add_f32_dpp v33, v33, v33 {m} row_mask:0xf bank_mask:0xf")
    ln_den(a, 32, 33, 34)
    a("v_mov_b32 v104, v33")
    a("v_mov_b32_dpp v105, v33 row_ror:8 row_mask:0xf bank_mask:0xf")
    a("v_mov_b32_dpp v34, v32 row_ror:8 row_mask:0xf bank_mask:0xf")
    a("v_cvt_pk_bf16_f32 v106, v32, v34")
    a(f"buffer_store_dwordx4 v[104:107], v38, {sr(RWS)}, s78 offen sc1")
    stamp(a, "recs")
    a.label("KNEXT1")
    a.label("KNEXT")
    for k in range(0, 16, 2):
        a(f"v_pk_mov_b32 {vr(PB+k,2)}, {vr(PB+8+k,2)}, {vr(PB+8+k,2)} op_sel:[0,1]")
    a("s_branch KGEN")
    a.label("KG2")
    a("s_cmp_eq_u32 s75, 8")
    a("s_cbranch_scc1 KNEXT")
    stamp(a, "kgen")
    XRV, STV = 196, 212

    def recv_loads():
        a(f"s_mov_b32 s73, s{sXR}")
        a(f"s_mov_b32 s74, {S1:#x}")
        for i in range(4):
            a(f"buffer_load_dwordx4 {vr(XRV+4*i,4)}, v{vH}, {sr(RWS)}, s73 offen sc1")
            a(f"buffer_load_dwordx4 {vr(STV+4*i,4)}, v{vH}, {sr(RWS)}, s74 offen sc1")
            if i < 3:
                a("s_add_u32 s73, s73, 4096")
                a("s_add_u32 s74, s74, 4096")

    a("s_waitcnt lgkmcnt(0)")
    a("s_barrier")
    recv_loads()
    stamp(a, "bar1")
    a(f"s_cmp_eq_u32 s{sW}, 3")
    a("s_cbranch_scc1 NOPAD")
    for r in range(40, 44):
        a(f"v_mov_b32 v{r}, 0")
    a(f"s_mul_i32 s75, s{sW}, {CHS}")
    a(f"s_add_u32 s75, s75, {CHB}")
    a(f"v_add_u32 v16, s75, v{vL16}")
    a(f"v_and_b32 v17, 48, v{vL16}")
    a("v_add_u32 v17, s75, v17")
    a("v_mov_b32 v18, s75")
    a(f"ds_write_b128 v16, v[40:43] offset:{C_U0}")
    a(f"ds_write_b128 v16, v[40:43] offset:{C_U2}")
    a(f"ds_write_b128 v17, v[40:43] offset:{C_KO+4096}")
    a(f"ds_write_b128 v17, v[40:43] offset:{C_KE+4096}")
    a(f"ds_write_b32 v18, v40 offset:{C_U2+1024}")
    a.label("NOPAD")
    KB = CHB + C_KO
    KD = C_KE - C_KO

    def pk(dst, lo, hi):
        a(f"v_cvt_pk_bf16_f32 v{dst}, v{lo}, v{hi}")

    a(f"v_cmp_eq_u32 vcc, 0, v{vLANE}")
    a(f"s_cmp_eq_u32 s{sW}, 0")
    a("s_cbranch_scc0 EXPN")
    a(f"v_subrev_u32 v17, 4, v{vL16}")
    a("v_max_i32 v17, 0, v17")
    for rc in range(3):
        for t in range(3):
            a(f"ds_read_b128 {vr(44+16*rc+4*t,4)}, v{vL16} offset:{TABS*(3*rc+t)}")
            a(f"ds_read_b32 v{56+16*rc+t}, v17 offset:{TABS*(3*rc+t)}")
    a(f"v_lshlrev_b32 v18, 3, v{vLANE}")
    a(f"v_sub_u32 v18, {KB+2*2044}, v18")
    for rc in range(3):
        b = 44 + 16 * rc
        o = 96 + 4 * rc
        for t in (1, 2):
            a(f"v_pk_add_f32 {vr(b,2)}, {vr(b,2)}, {vr(b+4*t,2)}")
            a(f"v_pk_add_f32 {vr(b+2,2)}, {vr(b+2,2)}, {vr(b+4*t+2,2)}")
            a(f"v_add_f32 v{b+12}, v{b+12}, v{b+12+t}")
        a(f"v_cndmask_b32 v{b+12}, v{b+12}, 0, vcc")
        pk(o, b + 3, b + 2); pk(o + 1, b + 1, b); pk(o + 2, b + 2, b + 1); pk(o + 3, b, b + 12)
        a(f"ds_write_b64 v18, {vr(o,2)} offset:{CHS*rc}")
        a(f"ds_write_b64 v18, {vr(o+2,2)} offset:{CHS*rc+KD}")
    a("s_branch EXPD")
    a.label("EXPN")
    a(f"s_lshl_b32 s75, s{sW}, 9")
    a("s_add_u32 s75, s75, 508")
    a(f"v_lshlrev_b32 v16, 3, v{vLANE}")
    a("v_add_u32 v16, s75, v16")
    for rc in range(3):
        for t in range(3):
            b = 44 + 12 * rc + 4 * t
            off = TABS * (3 * rc + t)
            a(f"ds_read_b64 {vr(b,2)}, v16 offset:{off+4}")
            a(f"ds_read_b32 v{b+2}, v16 offset:{off+12}")
            a(f"ds_read_b32 v{b+3}, v16 offset:{off}")
    for rc in range(3):
        b = 44 + 12 * rc
        for t in (1, 2):
            a(f"v_pk_add_f32 {vr(b,2)}, {vr(b,2)}, {vr(b+4*t,2)}")
            a(f"v_pk_add_f32 {vr(b+2,2)}, {vr(b+2,2)}, {vr(b+4*t+2,2)}")
    a(f"s_cmp_eq_u32 s{sW}, 2")
    a("s_cbranch_scc1 EXP2")
    a(f"s_cmp_eq_u32 s{sW}, 3")
    a("s_cbranch_scc1 EXP3")
    a(f"v_lshlrev_b32 v18, 3, v{vLANE}")
    a(f"v_sub_u32 v18, {KB+2*(2044-256)}, v18")
    for rc in range(3):
        va, vb, vc, vm = (44 + 12 * rc + k for k in range(4))
        o = 96 + 4 * rc
        a(f"v_cndmask_b32 v{vm}, v{va}, v{vm}, vcc")
        pk(o, vc, vb); pk(o + 1, va, va); pk(o + 2, vb, va); pk(o + 3, va, vm)
        a(f"ds_write_b64 v18, {vr(o,2)} offset:{CHS*rc}")
        a(f"ds_write_b64 v18, {vr(o+2,2)} offset:{CHS*rc+KD}")
    a("s_branch EXPD")
    a.label("EXP2")
    a(f"v_sub_u32 v18, {KB+2*(2040-512)}, v{vL16}")
    for rc in range(3):
        va, vb, vc, vm = (44 + 12 * rc + k for k in range(4))
        o = 96 + 8 * rc
        for k, (lo, hi) in enumerate([(vc, vc), (vb, vb), (vb, va), (va, va), (vc, vb), (vb, vb), (va, va), (va, va)]):
            pk(o + k, lo, hi)
        a(f"ds_write_b128 v18, {vr(o,4)} offset:{CHS*rc}")
        a(f"ds_write_b128 v18, {vr(o+4,4)} offset:{CHS*rc+KD}")
    a("s_branch EXPD")
    a.label("EXP3")
    a(f"v_lshlrev_b32 v18, 5, v{vLANE}")
    a(f"v_sub_u32 v18, {KB+2*(2032-1024)}, v18")
    for rc in range(3):
        va, vb, vc, vm = (44 + 12 * rc + k for k in range(4))
        o = 96 + 16 * rc
        pat = [(vc, vc), (vc, vc), (vb, vb), (vb, vb), (vb, vb), (vb, va), (va, va), (va, va),
               (vc, vc), (vc, vb), (vb, vb), (vb, vb), (vb, vb), (va, va), (va, va), (va, va)]
        for k, (lo, hi) in enumerate(pat):
            pk(o + k, lo, hi)
            if k & 3 == 3:
                a(f"ds_write_b128 v18, {vr(o+k-3,4)} offset:{CHS*rc+(KD if k >= 8 else 0)+(16 if k & 4 else 0)}")
    a.label("EXPD")
    stamp(a, "exp")
    a(f"s_mov_b32 s{sT}, 0")
    a.label("RCHK")
    a(f"v_xor_b32 v16, s{sTAG}, v{XRV+3}")
    for r in [XRV + 7, XRV + 11, XRV + 15, STV + 3, STV + 7, STV + 11, STV + 15]:
        a(f"v_xor_b32 v18, s{sTAG}, v{r}")
        a("v_or_b32 v16, v16, v18")
    a("v_cmp_ne_u32 vcc, 0, v16")
    a("s_cbranch_vccz RDONE")
    a(f"s_add_u32 s{sT}, s{sT}, 1")
    a(f"s_cmp_gt_u32 s{sT}, {SPIN}")
    a("s_cbranch_scc1 RDONE")
    a("s_sleep 4")
    recv_loads()
    a("s_waitcnt vmcnt(0)")
    a("s_branch RCHK")
    a.label("RDONE")
    stamp(a, "recv")
    nm = Lst()
    for i in range(4):
        st = STV + 4 * i
        nm(f"v_and_b32 v{st+3}, 0xffff0000, v{st+2}")
        nm(f"v_lshlrev_b32 v{st+2}, 16, v{st+2}")
    for i in range(4):
        st = STV + 4 * i
        nm(f"v_pk_mul_f32 {vr(st+2,2)}, {vr(st+2,2)}, {vr(st,2)} neg_lo:[1,0] neg_hi:[1,0]")
    for rc in range(3):
        X, U = 40 + 8 * rc, 64 + 8 * (rc & 1)
        for i in range(4):
            nm(f"v_lshlrev_b32 v{X+2*i}, 16, v{XRV+4*i+rc}")
            nm(f"v_and_b32 v{X+2*i+1}, 0xffff0000, v{XRV+4*i+rc}")
        for i in range(4):
            st = STV + 4 * i
            nm(f"v_pk_fma_f32 {vr(U+2*i,2)}, {vr(X+2*i,2)}, {vr(st,2)}, {vr(st+2,2)}")
        for i in range(4):
            nm(f"v_cvt_pk_bf16_f32 v{80+4*rc+i}, v{U+2*i}, v{U+2*i+1}")
        for i in range(4):
            nm(f"v_pk_fma_f32 {vr(X+2*i,2)}, {vr(U+2*i,2)}, s[{DSEL[rc][0]}:{DSEL[rc][1]}], {vr(X+2*i,2)}")
        for i in range(0, 4, 2):
            o = CHS * rc + 1024 * i + C_U0 + 1024
            nm(f"ds_write2st64_b32 v{vPU}, v{80+4*rc+i}, v{81+4*rc+i} offset0:{o//256} offset1:{o//256+4}")
        for i in range(4):
            nm(f"ds_write_b32 v{vPU}, v{80+4*rc+i} offset:{CHS*rc+1024*i+C_U2+1028}")
        for i in range(0, 4, 2):
            o = (8192 * rc + 2048 * i) // 512
            nm(f"ds_write2st64_b64 v{vPB}, {vr(X+2*i,2)}, {vr(X+2*i+2,2)} offset0:{o} offset1:{o+4}")
    w2d = []
    for n in range(6):
        w2d.append([f"s_add_u32 m0, s{sWT}, {960*n}",
                    f"s_add_u32 s75, s{sW2R}, {6*1280*n}",
                    f"buffer_load_dwordx4 v{vW2V}, {sr(RX)}, s75 offen lds ; @def:w2raw"])
    rest = interleave(a, nm, wd(0) + w2d, start=0, every=8)
    assert not rest
    a(f"buffer_load_dword v254, v250, {sr(RW)}, 0 offen")

    a("s_waitcnt lgkmcnt(0)")
    a("s_barrier")
    stamp(a, "bar2")
    ACCS = [16, 48]
    BASE = 80
    EP = 104
    free = list(range(136, 228, 4))
    def pairs_of(rnd, k):
        ps = []
        for o in range(k + 1):
            if k + o <= 7 and (rnd > 0 or (k + o) & 1):
                ps.append((k, o))
                if o != k:
                    ps.append((o, k))
        return ps

    groups = [(rnd, r, k) for rnd in range(3) for r in range(2) for k in range(8)]
    fa, fb = {}, {}

    def issue(gk):
        rnd, r, k = gk
        fa[gk] = free.pop(0)
        fb[gk] = free.pop(0)
        ro = 64 * (1 - r) + CHS * rnd
        return [f"ds_read_b64 {vr(fa[gk],2)}, v{vA} offset:{512*(7-k)+ro}",
                f"ds_read_b64 {vr(fa[gk]+2,2)}, v{vA} offset:{512*(7-k)+ro+8}",
                f"ds_read_b128 {vr(fb[gk],4)}, v{vB0 if rnd == 0 else vB} offset:{512*k+ro} ; @def:cv{rnd}_{r}_{k}"]

    def last_level(rnd, idx):
        return max(k for k in range(8) for (q, c) in pairs_of(rnd, k) if idx in (q, c))

    def epi_fill(rnd, plain=True, toks=""):
        f = [[f"; @use:red{rnd} {toks}", "s_barrier"]]
        r0, r1, ws, ps = [(vRZ0, vRZ1, 4096, 2048), (vRR0, vRR1, 8192, 4096), (vRQ0, vRQ1, 8192, 4096)][rnd]
        for w in range(4):
            f.append(f"ds_read_b128 {vr(EP+8*w,4)}, v{r0} offset:{ws*w}")
            f.append(f"ds_read_b128 {vr(EP+4+8*w,4)}, v{r1} offset:{ws*w+ps} ; @def:ep{rnd}_{w}")
        ymap = [0, 4, 2, 6]
        b = BASE + 8 * rnd
        for w in range(4):
            for p in range(4):
                src = EP + 8 * w + ymap[p]
                if plain:
                    g = [f"v_add_f32 v{b+2*p}, v{b+2*p}, v{src}"]
                    if p == 0:
                        g = [f"; @use:ep{rnd}_{w}"] + g
                    f.append(g)
                    f.append(f"v_add_f32 v{b+2*p+1}, v{b+2*p+1}, v{src+1}")
                else:
                    f.append(f"v_pk_add_f32 {vr(b+2*p,2)}, {vr(b+2*p,2)}, {vr(src,2)}")
        for p in range(4):
            f.append(f"v_cvt_pk_bf16_f32 v{b+p}, v{b+2*p}, v{b+2*p+1}")
        f.append(f"buffer_store_dwordx4 {vr(b,4)}, v{vH0 if rnd == 0 else vH}, {sr(RWS)}, s{[sH0, sH1, sH2][rnd]} offen sc1 ; @def:ht{rnd}")
        return f

    def hflag(rnd):
        g = [f"; @use:ht{rnd}", f"buffer_store_dword v{vTAGV}, v{vFLAG}, {sr(RWS)}, s{sFHO} offen sc1"]
        if rnd < 2:
            g.append(f"s_add_u32 s{sFHO}, s{sFHO}, 65536")
        return g

    def w2_job():
        JF = EP
        f = []
        for rt in range(5):
            off = 64 * (rt >> 1) + 8 * (rt & 1) if rt < 4 else 128
            g = [f"ds_read_b64_tr_b16 {vr(JF+4*rt,2)}, v{vW2R0 if rt < 4 else vW2R1} offset:{off}"]
            f.append(["; @use:w2raw"] + g if rt == 0 else g)
            f.append(f"ds_read_b64_tr_b16 {vr(JF+4*rt+2,2)}, v{vW2R0 if rt < 4 else vW2R1} offset:{off+640}")
        f += ["s_nop 0"] * 4
        for rt in range(5):
            if rt == 4:
                f.append(f"s_add_u32 s{sW2ST}, s{sW2ST}, 4096")
            f.append(f"buffer_store_dwordx4 {vr(JF+4*rt,4)}, v{vL16}, {sr(RWS)}, s{sW2ST} offen offset:{1024*(rt&3)} sc1 ; @def:w2st")
        return f

    vD0, vD1, vPL0, vPL1 = 128, 129, 130, 131
    vRA = 132
    vCS0, vCS1 = 136, 137
    vRES = 138
    vSR, vMW, vGW, vMR, vSC = 141, 142, 143, 144, 145
    EPO = 148
    TMP = 160
    SVH = [172, 174]
    HRES = [176, 182]
    CS = 188
    RS, GR, ONE, NM = 200, 204, 208, 212
    vSW = 216
    MS = 26624

    def cs(s):
        return [f"v_mfma_f32_16x16x32_bf16 {vr(CS+4*r,4)}, {ar(12*s+4*r,4)}, {vr(ONE,4)}, {'0' if s == 0 else vr(CS+4*r,4)}" for r in range(3)]

    def dma(h, s):
        drow = 160 * s if s < 4 else 80 * ((s - 4) & 7) + (1 if s >= 12 else 0)
        return [f"s_add_u32 m0, s{sM0}, {HALF*h+4096*s}",
                f"s_add_u32 s75, s{sACT}, {drow*4096+128*h}",
                f"buffer_load_dwordx4 v{vD0 if s < 4 else vD1}, {sr(RWS)}, s75 offen sc1 lds ; @def:d{h}_{s}"]

    PF = 4
    for gi in range(PF):
        emit(a, issue(groups[gi]))
    for rc in range(3):
        a(f"ds_read_b128 {vr(BASE+8*rc,4)}, v{vOB} offset:{8192*rc}")
        a(f"ds_read_b128 {vr(BASE+8*rc+4,4)}, v{vOB} offset:{8192*rc+16}")
    rq = []
    fl = lambda l: [t for g in l for t in g]
    for rnd in range(3):
        acc = ACCS[rnd & 1]
        touched = set()
        stamp(a, f"r{rnd}")
        if rnd == 0:
            other = []
        elif rnd == 1:
            other = epi_fill(0) + [["; @use:wd0", "s_barrier"]] + wr(0) + w2_job()
        else:
            other = epi_fill(1, toks="@use:wr1") + fl(wd(1) + wd(2)) + ["v_accvgpr_read_b32 v8, a242", "v_accvgpr_read_b32 v9, a243"]
        nm_ = 0
        for gi, (rn, r, k) in enumerate(groups):
            if rn != rnd:
                continue
            ps = pairs_of(rnd, k)
            if gi + PF < len(groups):
                rq += issue(groups[gi + PF])
            if ps:
                while any(f"@def:cv{rnd}_{r}_{k}" in t for t in rq):
                    a(rq.pop(0))
                a(f"; @use:cv{rnd}_{r}_{k}")
            for pi, (q, c) in enumerate(ps):
                t = (q + c) >> 1 if rnd == 0 else q + c
                cin = vr(acc + 4 * t, 4) if t in touched else "0"
                touched.add(t)
                a(f"v_mfma_f32_16x16x32_bf16 {vr(acc+4*t,4)}, {vr(fa[(rnd,r,q)],4)}, {vr(fb[(rnd,r,c)],4)}, {cin}")
                nm_ += 1
                slots = 2 if pi + 1 < len(ps) else 1
                if rq and slots:
                    a(rq.pop(0))
                    slots -= 1
                if len(rq) > 6 and slots:
                    a(rq.pop(0))
                    slots -= 1
                while slots and other and nm_ >= 3:
                    emit(a, [other.pop(0)])
                    slots -= 1
            for idx in range(8):
                if last_level(rnd, idx) == k:
                    free.append(fa[(rnd, r, idx)])
                    free.append(fb[(rnd, r, idx)])
        print(f"round {rnd}: {len(other)} fillers left over")
        emit(a, other)
        stamp(a, f"w{rnd}")
        if rnd == 2:
            emit(a, [hflag(1)])
        nt = 4 if rnd == 0 else 8
        for c in range(nt):
            tok = f" ; @def:red{rnd}" if c == nt - 1 else ""
            a(f"ds_write_b128 v{[vRW0, vRW1, vRW2][rnd]}, {vr(acc+4*c,4)} offset:{512*c}{tok}")
        if rnd == 1:
            emit(a, [hflag(0)])
    assert not rq
    for k in range(4):
        a(f"v_mov_b32 v{ONE+k}, s{sONE}")
    a(f"buffer_load_dword v{vPD}, v8, {sr(RWS)}, s{sPH0} offen sc1")
    emit(a, epi_fill(2, plain=False))
    stamp(a, "conv")
    a(f"buffer_load_dword v{TMP}, v9, {sr(RWS)}, s{sPH1} offen sc1")
    for k, r in enumerate([vD0, vD1, vPL0, vPL1, vRA]):
        a(f"v_accvgpr_read_b32 v{r}, a{240+k}")
    for ct in range(1, 4):
        a(f"v_xor_b32 v{vRA+ct}, {32*ct}, v{vRA}")
    a(f"v_cmp_ne_u32 vcc, s{sTAG}, v{vPD}")
    a("s_cmp_eq_u64 vcc, 0")
    a(f"s_cselect_b32 s64, s{sACT}, {BIG:#x}")
    a("s_cselect_b32 s63, 1, 0")
    emit(a, [[t.replace(f"s{sACT},", "s64,") for t in dma(0, s)] for s in range(4)])
    a("; @use:wd2")
    a("s_barrier")
    emit(a, wr(1) + wr(2))
    interleave(a, [m for s in range(0, 6) for m in cs(s)], wd(3), start=2, every=3)
    emit(a, [hflag(2), ["; @use:w2st", f"buffer_store_dword v{vTAGV}, v{vFLAG}, {sr(RWS)}, s{sFW2O} offen sc1"]])
    stamp(a, "flag2")
    a("s_cmp_eq_u32 s63, 1")
    a("s_cbranch_scc1 HAVE0")
    poll(a, vPL0, sPH0, vPD)
    emit(a, [[t.split(" ; @def")[0] for t in dma(0, s)] for s in range(4)])
    a("s_waitcnt vmcnt(0)")
    a.label("HAVE0")
    stamp(a, "pollH0")
    BF = 96

    def reads(h, s):
        o = []
        gs = 20 * h + s
        for ct in range(4):
            for hh in range(2):
                tok = f" ; @def:bf{gs}" if ct == 3 and hh == 1 else ""
                o.append(f"ds_read_b64_tr_b16 {vr(BF+16*(gs&1)+4*ct+2*hh,2)}, v{vRA+ct} offset:{4096*(gs%16)+512*hh}{tok}")
        if gs % 16 == 15:
            o += [f"v_add_u32 v{vRA+ct}, 0x10000, v{vRA+ct}" for ct in range(4)]
        return o

    def mf(h, s):
        gs = 20 * h + s
        b0 = vr(BF + 16 * (gs & 1), 4)
        o = [f"v_mfma_f32_16x16x32_bf16 {vr(RS,4)}, {vr(ONE,4)}, {b0}, {'0' if s == 0 else vr(RS,4)}",
             f"v_mfma_f32_16x16x32_bf16 {vr(GR,4)}, {b0}, {b0}, {'0' if s == 0 else vr(GR,4)}"]
        for ct in range(4):
            for r in range(3):
                acc = vr(48 * h + 12 * ct + 4 * r, 4)
                o.append(f"v_mfma_f32_16x16x32_bf16 {acc}, {ar(12*s+4*r,4)}, {vr(BF+16*(gs&1)+4*ct,4)}, {'0' if s == 0 else acc}")
        return o

    def sync(toks):
        a("; " + " ".join("@use:" + t for t in toks))
        a("s_barrier")

    def res_reads(h):
        o = []
        for sg in range(3):
            o.append(f"ds_read_b64_tr_b16 {vr(HRES[h]+2*sg,2)}, v{vRES+sg}" + (f" ; @def:res{h}" if sg == 2 else ""))
        if h == 0:
            o += [f"v_add_u32 v{vRES+sg}, {HALF}, v{vRES+sg}" for sg in range(3)]
        return o

    def stat_calc():
        return [f"v_mul_f32 v{NM}, {f2u(-1.0/D):#x}, v{RS}",
                f"v_cndmask_b32 v{TMP}, v{GR}, v{GR+1}, s[66:67]",
                f"v_cndmask_b32 v{TMP+1}, v{GR+2}, v{GR+3}, s[66:67]",
                f"v_cndmask_b32 v{TMP}, v{TMP}, v{TMP+1}, s[68:69]"]

    def stat_write(h):
        return [f"ds_write_b32 v{vMW}, v{NM} offset:{512*h}",
                f"ds_write_b32 v{vGW}, v{TMP} offset:{512*h} ; @def:mw{h}"]

    def stat_reads(h):
        o = []
        for ct in range(1, 4):
            o.append(f"v_xor_b32 v{vMR}, {128*ct}, v{vMW}")
            o.append(f"ds_read_b32 v{NM+ct}, v{vMR} offset:{512*h}")
        o.append(f"ds_read2_b32 {vr(SVH[h],2)}, v{vSC} offset0:{128*h} offset1:{128*h+16}")
        return o

    def epi1(h, plain):
        so = 13312 * h
        o = []

        def corr(ct):
            for r in range(3):
                b = 48 * h + 12 * ct + 4 * r
                if plain:
                    for k in range(4):
                        o.append(f"v_fma_f32 v{b+k}, v{NM+ct}, v{CS+4*r+k}, v{b+k}")
                else:
                    sel = "op_sel:[1,0,0] op_sel_hi:[1,1,1]" if ct & 1 else "op_sel:[0,0,0] op_sel_hi:[0,1,1]"
                    for k in (0, 2):
                        o.append(f"v_pk_fma_f32 {vr(b+k,2)}, {vr(NM+(ct&2),2)}, {vr(CS+4*r+k,2)}, {vr(b+k,2)} {sel}")

        def prod(lst):
            for g_, u_, ad in lst:
                for k in range(4):
                    o.append(f"v_max_f32 v{g_+k}, 0, v{g_+k}")
            for g_, u_, ad in lst:
                if plain:
                    for k in range(4):
                        o.append(f"v_mul_f32 v{g_+k}, v{g_+k}, v{u_+k}")
                else:
                    for k in (0, 2):
                        o.append(f"v_pk_mul_f32 {vr(g_+k,2)}, {vr(g_+k,2)}, {vr(u_+k,2)}")
            for g_, u_, ad in lst:
                o.append(f"v_cvt_pk_bf16_f32 v{g_}, v{g_}, v{g_+1}")
                o.append(f"v_cvt_pk_bf16_f32 v{g_+1}, v{g_+2}, v{g_+3}")
            for g_, u_, ad in lst:
                o.append(f"ds_write_b64 v{ad}, {vr(g_,2)} offset:{so}")

        for p in range(2):
            x, y = 48 * h + 24 * p, 48 * h + 24 * p + 12
            corr(2 * p)
            corr(2 * p + 1)
            for k in range(4):
                o.append(f"v_permlane32_swap_b32 v{x+8+k}, v{y+8+k}")
            prod([(x, x + 4, vSW + 2 * p), (y, y + 4, vSW + 2 * p + 1), (x + 8, y + 8, vSW + 4 + p)])
        o[-1] += f" ; @def:stg{h}"
        return o

    def epi2(h):
        o = [[f"; @use:stg{h}", "s_barrier"]]
        for ksl in range(3):
            o.append(f"ds_read_b128 {vr(EPO+4*ksl,4)}, v{vSR} offset:{13312*h+64*ksl}")
        if h == 0:
            o += ["s_nop 0"] * 6
        for ksl in range(3):
            tok = f" ; @def:hm{h}" if ksl == 2 else ""
            o.append(f"buffer_store_dwordx4 {vr(EPO+4*ksl,4)}, v{vL16}, {sr(RWS)}, s{[sHMA, sHMB][h]} offen offset:{1024*ksl} sc1{tok}")
        return o

    def mflag(h):
        return [f"; @use:hm{h}", f"buffer_store_dword v{vTAGV}, v{vFLAG}, {sr(RWS)}, s{[sFMA, sFMB][h]} offen sc1"]

    vW2P, vW2M = 244, 245
    vPM, vHM, vO4, vO2 = 246, 247, 249, 250
    vQ = 228
    sHML, sFMP, sOUTO = 4, 5, 6
    RB = 32768
    w2n = [0]

    def w2_load():
        n = w2n[0]
        w2n[0] += 1
        rt = n % 5
        v = vW2P if rt < 2 else vW2M if rt < 4 else vL16
        off = {0: 0, 1: 1024, 2: 0, 3: 1024, 4: 2048}[rt]
        g = [f"buffer_load_dwordx4 {ar(4*n,4)}, v{v}, {sr(RWS)}, s{sW2A if rt < 4 else sW2B} offen offset:{off} sc1"]
        if rt == 4:
            g += [f"s_add_u32 s{sW2A}, s{sW2A}, 5120", f"s_add_u32 s{sW2B}, s{sW2B}, 5120"]
        return g

    G = lambda *x: ["; @use:none"] + list(x)
    su = Lst()
    u0, u1, u2, u3, u4, u5, u6, u7 = (TMP + 2 + k for k in range(8))
    su(f"s_and_b32 s73, s{sJ}, 7")
    su("s_lshl_b32 s73, s73, 6")
    su(f"s_add_u32 s{sFW2P}, s73, {FW2:#x}")
    su(f"v_min_u32 v{vPL0}, 11, v{vLANE}")
    su(f"s_mul_i32 s73, s{sW}, 12")
    su(f"v_add_u32 v{vPL0}, s73, v{vPL0}")
    su(f"v_lshlrev_b32 v{vPL0}, 9, v{vPL0}")
    su(f"v_lshrrev_b32 v{u0}, 4, v{vLANE}     ; g")
    su(f"v_bfe_u32 v{u1}, v{vLANE}, 2, 2      ; rr")
    su(f"v_and_b32 v{u2}, 3, v{vLANE}         ; cc")
    su(f"s_lshr_b32 s72, s{sJ}, 3")
    su("s_lshl_b32 s72, s72, 1")
    su(f"s_lshr_b32 s73, s{sW}, 1")
    su("s_add_u32 s72, s72, s73")
    su(f"s_and_b32 s73, s{sJ}, 7")
    su("s_lshl_b32 s73, s73, 4              ; 16*db")
    su(f"s_and_b32 s74, s{sW}, 1")
    su("s_lshl_b32 s74, s74, 5")
    for sg in range(3):
        if sg < 2:
            su(f"v_lshl_add_u32 v{u3}, v{u0}, 3, v{u1}")
            su(f"v_add3_u32 v{u3}, v{u3}, s74, {4*sg}")
        else:
            su(f"v_lshl_add_u32 v{u3}, v{u0}, 2, v{u1}")
            su(f"v_add_u32 v{u3}, 64, v{u3}")
        su(f"v_mul_u32_u24 v{u4}, 205, v{u3}")
        su(f"v_lshrrev_b32 v{u4}, 10, v{u4}       ; dl/5")
        su(f"v_mul_u32_u24 v{u5}, 5, v{u4}")
        su(f"v_sub_u32 v{u5}, v{u3}, v{u5}         ; r5")
        su(f"v_add_u32 v{u4}, s73, v{u4}          ; P")
        su(f"v_cmp_lt_u32 s[76:77], 2, v{u5}")
        su(f"v_cmp_eq_u32 s[78:79], 2, v{u5}")
        su(f"v_subrev_u32 v{u7}, 3, v{u5}")
        su(f"v_cndmask_b32 v{u7}, v{u5}, v{u7}, s[76:77]")
        su(f"v_cndmask_b32 v{u6}, 0, 1, s[76:77]")
        su(f"v_lshl_add_u32 v{u6}, v{u4}, 1, v{u6}")
        su(f"v_lshl_add_u32 v{u6}, v{u7}, 8, v{u6}")
        su(f"v_add_u32 v{u6}, 128, v{u6}")
        su(f"v_cndmask_b32 v{u6}, v{u6}, v{u4}, s[78:79]   ; kappa")
        su(f"v_bfe_u32 v{u4}, v{u6}, 1, 1")
        su(f"v_bfe_u32 v{u5}, v{u6}, 3, 1")
        su(f"v_lshl_add_u32 v{u4}, v{u5}, 1, v{u4}")
        su(f"v_xor_b32 v{u4}, s72, v{u4}")
        su(f"v_lshlrev_b32 v{u6}, 7, v{u6}")
        su(f"v_lshl_add_u32 v{u6}, v{u4}, 5, v{u6}")
        su(f"v_lshl_add_u32 v{vRES+sg}, v{u2}, 3, v{u6}")
    su(f"v_and_b32 v{u3}, 15, v{vLANE}        ; n")
    su(f"v_lshlrev_b32 v{u4}, 2, v{u3}")
    su(f"s_lshl_b32 s73, s{sW}, 7")
    su(f"s_add_u32 s73, s73, {MS}")
    su(f"v_add_u32 v{vMW}, s73, v{u4}")
    su("s_lshl_b32 s73, s72, 7")
    su(f"s_add_u32 s73, s73, {MS}")
    su(f"v_add_u32 v{vSC}, s73, v{u4}")
    su(f"v_cmp_eq_u32 s[76:77], v{u0}, v{u1}")
    su(f"v_add_u32 v{u5}, 64, v{vMW}")
    su(f"v_mov_b32 v{u6}, {MS+1024}")
    su(f"v_cndmask_b32 v{vGW}, v{u6}, v{u5}, s[76:77]")
    su("s_mov_b32 s66, 0xaaaaaaaa")
    su("s_mov_b32 s67, 0xaaaaaaaa")
    su("s_mov_b32 s68, 0xcccccccc")
    su("s_mov_b32 s69, 0xcccccccc")
    su(f"s_lshl_b32 s73, s{sTB}, 3")
    su("s_add_u32 s73, s73, s72")
    su(f"s_mul_i32 s{sOUTO}, s73, {16*1280}")
    su(f"s_and_b32 s73, s{sJ}, 7")
    su("s_mul_i32 s73, s73, 160")
    su(f"s_add_u32 s{sOUTO}, s{sOUTO}, s73")
    su(f"v_mul_u32_u24 v{u3}, 1280, v{u3}")
    su("s_lshl_b32 s73, s74, 1              ; 64*(w&1)")
    su(f"v_lshl_add_u32 v{u4}, v{u0}, 4, v{u3}")
    su(f"v_add_u32 v{vO4}, s73, v{u4}")
    su(f"s_and_b32 s73, s{sW}, 1")
    su(f"s_mul_i32 s73, s73, {BIG:#x}")
    su("s_add_u32 s73, s73, 128")
    su(f"v_lshl_add_u32 v{u4}, v{u0}, 3, v{u3}")
    su(f"v_add_u32 v{vO2}, s73, v{u4}")
    su(f"v_and_b32 v{u3}, 15, v{vLANE}")
    su(f"v_mul_u32_u24 v{u3}, 208, v{u3}")
    su(f"s_mul_i32 s73, s{sW}, 3328")
    su(f"v_lshl_add_u32 v{u4}, v{u0}, 4, v{u3}")
    su(f"v_add_u32 v{vSR}, s73, v{u4}")
    su(f"s_mul_i32 s76, s{sW}, 48")
    su(f"v_add_u32 v{u3}, s76, v{u3}")
    su(f"v_lshl_add_u32 v{u4}, v{u0}, 3, v{u3}")
    for ct in range(4):
        su(f"s_xor_b32 s73, s{sW}, {ct}")
        su("s_mul_i32 s73, s73, 3328")
        su(f"v_add_u32 v{vSW+ct}, s73, v{u4}")
    su(f"v_and_b32 v{u4}, 1, v{u0}")
    su(f"v_lshl_add_u32 v{u3}, v{u4}, 3, v{u3}")
    su(f"v_lshrrev_b32 v{u4}, 5, v{vLANE}")
    su(f"v_xor_b32 v{u4}, s{sW}, v{u4}")
    su(f"v_mul_u32_u24 v{u5}, 3328, v{u4}")
    su(f"v_add3_u32 v{vSW+4}, v{u5}, v{u3}, 32")
    su(f"v_xor_b32 v{u4}, 2, v{u4}")
    su(f"v_mul_u32_u24 v{u5}, 3328, v{u4}")
    su(f"v_add3_u32 v{vSW+5}, v{u5}, v{u3}, 32")
    su(f"s_lshl_b32 s73, s{sTB}, 3")
    su(f"s_add_u32 s73, s73, s{sW}")
    su("s_mul_i32 s73, s73, 49152")
    su(f"s_mul_i32 s74, s{sJ}, 3072")
    su("s_add_u32 s73, s73, s74")
    su(f"s_add_u32 s{sHMA}, s73, {HM:#x}")
    su(f"s_add_u32 s{sHMB}, s73, {HM + 4*49152:#x}")
    su(f"s_lshl_b32 s73, s{sTB}, 4")
    su(f"s_add_u32 s73, s73, s{sJ}")
    su("s_lshl_b32 s73, s73, 2")
    su(f"s_add_u32 s73, s73, s{sW}")
    su("s_lshl_b32 s73, s73, 6")
    su(f"s_add_u32 s{sFMA}, s73, {FM:#x}")
    su(f"s_add_u32 s{sFMB}, s73, {FM + 65536:#x}")
    su(f"s_and_b32 s73, s{sJ}, 7")
    su("s_mul_i32 s74, s73, 245760")
    su(f"s_mul_i32 s73, s{sW}, 61440")
    su("s_add_u32 s74, s74, s73")
    su(f"s_add_u32 s{sW2A}, s74, {W2P:#x}")
    su(f"s_add_u32 s{sW2B}, s74, {W2P + 2048:#x}")
    su(f"s_and_b32 s73, s{sW}, 1")
    su("s_lshl_b32 s73, s73, 11")
    su(f"v_add_u32 v{vW2P}, s73, v{vL16}")
    su(f"v_xor_b32 v{vW2M}, 0x800, v{vW2P}")
    suA = list(su)
    su = Lst()
    su(f"s_lshr_b32 s72, s{sJ}, 3            ; gamma")
    su(f"v_bfe_u32 v{u0}, v{vLANE}, 1, 2")
    su(f"s_lshl_b32 s73, s{sW}, 2")
    su(f"v_add_u32 v{u0}, s73, v{u0}")
    su(f"v_lshlrev_b32 v{u0}, 2, v{u0}")
    su(f"v_and_b32 v{u1}, 1, v{vLANE}")
    su("s_lshl_b32 s73, s72, 1")
    su(f"v_add3_u32 v{u0}, v{u0}, v{u1}, s73    ; 4j+wave")
    su(f"v_lshlrev_b32 v{vPM}, 6, v{u0}")
    su(f"s_lshl_b32 s{sFMP}, s{sTB}, 12")
    su(f"s_add_u32 s{sFMP}, s{sFMP}, {FM:#x}")
    su(f"s_lshr_b32 s73, s{sW}, 1")
    su("s_mul_i32 s74, s73, 49152")
    su(f"v_add_u32 v{vHM}, s74, v{vL16}")
    su("s_xor_b32 s73, s73, 1")
    su("s_mul_i32 s74, s73, 49152")
    su(f"v_add_u32 v{vHM+1}, s74, v{vL16}")
    su(f"s_lshl_b32 s73, s{sTB}, 2")
    su("s_add_u32 s73, s73, s72")
    su("s_mul_i32 s73, s73, 98304")
    su(f"s_mul_i32 s74, s{sW}, 12288")
    su("s_add_u32 s73, s73, s74")
    su(f"s_add_u32 s{sHML}, s73, {HM:#x}")
    for rel in range(1, 4):
        su(f"s_xor_b32 s73, s{sW}, {rel}")
        su("s_mul_i32 s73, s73, 6144")
        su(f"s_add_u32 s73, s73, {RB + (rel-1)*2048}")
        su(f"v_add_u32 v{vQ+rel-1}, s73, v{vL16}")
    su(f"s_lshr_b32 s73, s{sW}, 1")
    su("s_lshl_b32 s73, s73, 12")
    su(f"s_add_u32 s73, s73, {RB + 24576}")
    su(f"v_add_u32 v{vQ+6}, s73, v{vL16}")
    su(f"v_add_u32 v{vQ+3}, s{sM0}, v{vQ+6}")
    su(f"v_xor_b32 v{vQ+4}, 0x1000, v{vQ+3}")
    su(f"s_mul_i32 s73, s{sW}, 6144")
    su(f"s_add_u32 s73, s73, {RB}")
    su(f"v_add_u32 v{vQ+5}, s73, v{vL16}")
    HX = [160, 132]
    suB = list(su)

    def flat(lst):
        o = []
        for g in lst:
            if isinstance(g, list) and not any("@use" in t for t in g):
                o += g
            else:
                o.append(g)
        return o

    def step(main, rd, extra, vm=(), width=2):
        rd = list(rd)
        extra = flat(extra)
        vm = list(vm)
        pos = {}
        for k, g in enumerate(vm):
            pos.setdefault(1 + (k * (len(main) - 1)) // len(vm), []).extend(g)
        carry = []
        for i, m in enumerate(main):
            a(m)
            slots = width if i + 1 < len(main) else width - 1
            if i in pos:
                carry += pos[i]
            if rd:
                a(rd.pop(0))
                slots -= 1
            while slots and carry:
                a(carry.pop(0))
                slots -= 1
            while slots and extra:
                emit(a, [extra.pop(0)])
                slots -= 1
        emit(a, rd)
        emit(a, carry)
        return extra

    sync(["d0_3"])
    stamp(a, "acts")
    emit(a, reads(0, 0))
    poll(a, vPL1, sPH1, TMP, pre_issued=True)
    stamp(a, "pollH1")
    Dm = lambda h, lo, hi: [dma(h, k) for k in range(lo, hi)]
    pl2 = [f"buffer_load_dword v{vPD}, v{vPL1}, {sr(RWS)}, s{sPH2} offen sc1"]
    plw = [f"buffer_load_dword v{vPD}, v{vPL0}, {sr(RWS)}, s{sFW2P} offen sc1"]
    fw2flag = ["; @use:w2st", f"buffer_store_dword v{vTAGV}, v{vFLAG}, {sr(RWS)}, s{sFW2O} offen sc1"]
    plan = {0: Dm(0, 4, 8), 1: wd(4)[:5], 2: wd(4)[5:] + Dm(0, 8, 10) + wd(5)[:2], 3: Dm(0, 10, 12) + wd(5)[2:4], 4: wd(5)[4:] + [pl2],
            5: wd(6)[:4], 6: wd(6)[4:] + Dm(0, 12, 14), 7: Dm(0, 14, 16) + wd(7)[:2], 8: wd(7)[2:],
            9: Dm(0, 16, 18) + wd(8)[:2], 10: wd(8)[2:], 11: Dm(0, 18, 20) + wd(9)[:2], 12: wd(9)[2:],
            13: Dm(1, 0, 2) + Dm(1, 14, 15), 14: Dm(1, 15, 18), 15: Dm(1, 8, 11), 16: Dm(1, 11, 14) + [plw], 17: Dm(1, 2, 5), 18: Dm(1, 5, 8), 19: Dm(1, 18, 20)}
    syncs = {3: (["wd3", "d0_7"], 3), 5: (["wr7", "wd4"], 4), 7: (["wr9", "wd5", "d0_11"], 5), 9: (["wr11", "wd6"], 6),
             11: (["wr13", "wd7", "d0_15"], 7), 13: (["wr15", "wd8"], 8), 15: (["wr17", "wd9", "d0_19"], 9), 17: (["wr19", "d1_1"], None)}
    q = suA
    for s in range(20):
        if s == 6:
            poll(a, vPL1, sPH2, vPD, pre_issued=True)
            stamp(a, "pollH2")
        if s in syncs:
            sync(syncs[s][0])
            if syncs[s][1]:
                q = wr(syncs[s][1]) + q
        stamp(a, f"a{s}")
        a(f"; @use:bf{s} @use:wr{s}")
        main = mf(0, s) + (cs(s) if s >= 6 else [])
        if s == 19:
            assert not q
            poll(a, vPL0, sFW2P, vPD, pre_issued=True)
            q = 3 * ["s_nop 0"] + stat_calc()
        q = step(main, reads(0, s + 1) if s < 19 else res_reads(0) + reads(1, 0), q, plan[s], width=3 if s < 8 else 2)
        if not q and s < 19 and suA:
            print("pass A set-up done in step", s)
            suA = None
    emit(a, q)
    stamp(a, "passA")
    sync(["res0"])
    emit(a, stat_write(0))
    q = ["s_nop 0", ["; @use:mw0 @use:d1_4", "s_barrier"]] + stat_reads(0) + epi1(0, True) + epi2(0) + suB
    for s in range(20):
        if s == 3:
            sync(["d1_19"])
        stamp(a, f"b{s}")
        a(f"; @use:bf{20+s}")
        vm = []
        while len(vm) < (3 if s & 1 else 2) and w2n[0] < 3 * s:
            vm.append(w2_load())
        if s == 13:
            vm.append(mflag(0))
        if s == 17:
            vm.append([f"buffer_load_dword v{vPD}, v{vPM}, {sr(RWS)}, s{sFMP} offen sc1"])
        if s == 19:
            assert not q
            q = 6 * ["s_nop 0"] + stat_calc() + stat_write(1)
        had = len(q)
        q = step(mf(1, s), reads(1, s + 1) if s < 19 else res_reads(1), q, vm)
        if had > len(suB) >= len(q):
            print("epilogue A done in step", s)
    assert not q
    stamp(a, "passB")
    sync(["mw1"])
    emit(a, stat_reads(1))
    HF = 0

    def hm_loads(h, order):
        o = []
        for ks, c in order:
            o.append([f"s_add_u32 s75, s{sHML}, {4*49152*h + 4096*(ks>>2)}",
                      f"buffer_load_dwordx4 {vr(HF+8*ks+4*c,4)}, v{vHM+c}, {sr(RWS)}, s75 offen offset:{1024*(ks&3)} sc1"])
        return o

    ksmaj = [(ks, c) for ks in range(12) for c in range(2)]
    cmaj = [(ks, c) for c in (1, 0) for ks in range(12)]
    wl = []
    while w2n[0] < 60:
        wl.append(w2_load())
    print("W2 loads left after pass B:", len(wl))
    poll(a, vPM, sFMP, vPD, pre_issued=True)
    stamp(a, "pollMA")
    hl = hm_loads(0, ksmaj)
    rest = interleave(a, epi1(1, False), hl[:12], start=2, every=6)
    assert not rest
    hl = hl[12:]
    emit(a, epi2(1))
    stamp(a, "epiB")
    AC = 188
    RDR = 96
    rdr = [96 + 4 * k for k in range(8)] + [148, 152]

    def g2_pass(h, order, loads, pre, extra):
        emit(a, loads[:pre])
        loads = loads[pre:]
        fill = Lst()
        den_from(fill, SVH[h], SVH[h] + 1, 146)
        for k in range(6):
            fill(f"v_lshlrev_b32 v{HX[h]+2*k}, 16, v{HRES[h]+k}")
            fill(f"v_and_b32 v{HX[h]+2*k+1}, 0xffff0000, v{HRES[h]+k}")
        ro = 32768 * h
        wr1 = [(vQ + 1, 20, 0), (vQ + 1, 24, 1024), (vQ + 2, 28, 0), (vQ + 2, 32, 1024), (vQ + 4, 36, 0)]
        wr0 = [(vQ, 8, 0), (vQ, 12, 1024), (vQ + 3, 16, 0)]
        wf = lambda l: [f"ds_write_b128 v{va_}, {vr(AC+r,4)} offset:{ro+off}" for va_, r, off in l]
        n = 0
        for i, (ks, c) in enumerate(order):
            for r in range(5):
                acc = vr(AC + 20 * c + 4 * r, 4)
                for g in loads:
                    for t in g:
                        assert not t.startswith(f"buffer_load_dwordx4 {ar(20*ks+4*r,4)},") and not t.startswith(f"buffer_load_dwordx4 {vr(HF+8*ks+4*c,4)},"), t
                a(f"v_mfma_f32_16x16x32_bf16 {acc}, {ar(20*ks+4*r,4)}, {vr(HF+8*ks+4*c,4)}, {'0' if ks == 0 else acc}")
                n += 1
                if n in extra:
                    emit(a, [extra[n]])
                elif loads and n % 3 == 0:
                    emit(a, [loads.pop(0)])
                elif fill:
                    a(fill.pop(0))
                elif order is cmaj and n > 70 and n % 5 == 0 and wr1:
                    emit(a, wf([wr1.pop(0)]))
        assert not loads and not fill
        emit(a, wf(wr1 + wr0))

    def g2_fin(h):
        ro = 32768 * h
        a("s_waitcnt lgkmcnt(0)")
        a("s_barrier")
        for k in range(6):
            a(f"ds_read_b128 {vr(rdr[k],4)}, v{vQ+5} offset:{ro+1024*k}")
        for k in range(4):
            a(f"ds_read_b128 {vr(rdr[6+k],4)}, v{vQ+6} offset:{ro+1024*k}")
        for k in range(6):
            for e in (0, 2):
                a(f"v_pk_add_f32 {vr(AC+4*(k&1)+e,2)}, {vr(AC+4*(k&1)+e,2)}, {vr(rdr[k]+e,2)}")
        for e in (0, 2):
            a(f"v_pk_add_f32 {vr(rdr[6]+e,2)}, {vr(rdr[6]+e,2)}, {vr(rdr[7]+e,2)}")
            a(f"v_pk_add_f32 {vr(rdr[8]+e,2)}, {vr(rdr[8]+e,2)}, {vr(rdr[9]+e,2)}")
        for e in (0, 2):
            a(f"v_pk_add_f32 {vr(AC+8+e,2)}, {vr(rdr[6]+e,2)}, {vr(rdr[8]+e,2)}")
        for k in range(6):
            a(f"v_pk_fma_f32 {vr(AC+2*k,2)}, {vr(AC+2*k,2)}, {vr(SVH[h],2)}, {vr(HX[h]+2*k,2)} op_sel:[0,1,0] op_sel_hi:[1,1,1]")
        for k in range(6):
            a(f"v_cvt_pk_bf16_f32 v{96+k}, v{AC+2*k}, v{AC+2*k+1}")
        a(f"buffer_store_dwordx4 v[96:99], v{vO4}, {sr(ROUT)}, s{sOUTO} offen")
        a(f"buffer_store_dwordx2 v[100:101], v{vO2}, {sr(ROUT)}, s{sOUTO} offen")
        if h == 0:
            a(f"s_add_u32 s{sOUTO}, s{sOUTO}, {64*1280}")

    mix = []
    for k in range(max(len(hl), len(wl))):
        if k < len(hl):
            mix.append(hl[k])
        if k < len(wl):
            mix.append(wl[k])
    print("g2A loads", len(mix))
    g2_pass(0, ksmaj, mix, 2, {55: mflag(1), 110: [f"s_add_u32 s{sFMP}, s{sFMP}, 65536",
                                                  f"buffer_load_dword v{vPD}, v{vPM}, {sr(RWS)}, s{sFMP} offen sc1"]})
    stamp(a, "g2A")
    poll(a, vPM, sFMP, vPD, pre_issued=True)
    stamp(a, "pollMB")
    hl = hm_loads(1, cmaj)
    emit(a, hl[:12])
    g2_fin(0)
    stamp(a, "finA")
    g2_pass(1, cmaj, hl[12:], 0, {})
    stamp(a, "g2B")
    g2_fin(1)
    a("s_cmp_eq_u32 s2, 0")
    a("s_cbranch_scc0 NOGEN")
    a(f"s_cmp_eq_u32 s{sW}, 0")
    a("s_cbranch_scc0 NOGEN")
    a(f"buffer_store_dword v{vTAGV}, v{vFLAG}, {sr(RWS)}, 0 offen sc1")
    a.label("NOGEN")
    if PROF:
        a("s_waitcnt vmcnt(0)")
        a("s_memtime s[100:101]")
        a("s_memrealtime s[76:77]")
        a("s_waitcnt lgkmcnt(0)")
        a("v_mov_b32 v1, 0")
        for k in range(11):
            a(f"v_writelane_b32 v1, s{80+2*k}, {k}")
        a("v_writelane_b32 v1, s76, 11")
        if os.environ.get("PROFDBG"):
            a("s_load_dwordx2 s[44:45], s[0:1], 112")
            a("s_waitcnt lgkmcnt(0)")
            a("s_mov_b32 s46, 256")
            a("s_mov_b32 s47, 0x20000")
            a("v_mov_b32 v3, 0")
            a("v_mov_b32 v4, 0")
            for k in range(9):
                a(f"s_sub_u32 s72, s{84+2*k}, s82")
                a("s_lshr_b32 s72, s72, 2")
                a(f"v_writelane_b32 v3, s72, {k}")
            a("s_sub_u32 s72, s100, s82")
            a("v_writelane_b32 v4, s72, 9")
            a("v_writelane_b32 v4, s76, 10")
            a("s_not_b32 s72, s80")
            a("v_writelane_b32 v4, s72, 11")
            for k in range(4):
                a(f"s_sub_u32 s72, s{84+4*k}, s82")
                a(f"v_writelane_b32 v4, s72, {12+k}")
            a(f"v_lshlrev_b32 v2, 2, v{vLANE}")
            a("s_mov_b64 exec, 0x1ff")
            a("buffer_atomic_add v3, v2, s[44:47], 0 offen")
            a("s_mov_b64 exec, 0xfe00")
            a("buffer_atomic_umax v4, v2, s[44:47], 0 offen")
            a("s_mov_b64 exec, -1")
        a(f"s_add_u32 s40, s{sWS}, {PROFBASE:#x}")
        a(f"s_addc_u32 s41, s{sWS+1}, 0")
        a("s_mov_b32 s42, 0x40000")
        a(f"v_lshlrev_b32 v2, 2, v{vLANE}")
        a("s_lshl_b32 s72, s2, 2")
        a(f"s_add_u32 s72, s72, s{sW}")
        a("s_lshl_b32 s72, s72, 7")
        a("s_mov_b64 exec, 0xffffffff")
        a("buffer_store_dword v1, v2, s[40:43], s72 offen")
    a.label("END")
    a("s_endpgm")
    return a


def main(path):
    ref = open(f"cdna_kernels/{NAME}.s.ref").read().split("\n")
    head = [l for l in ref if l.startswith(";") and "@launch" not in l]
    out = head[:]
    out.append("; @launch grid=(256,1,1) block=(256,1,1) lds=163840")
    out.append('.amdgcn_target "amdgcn-amd-amdhsa--gfx950"')
    out.append(".text")
    a = gen()
    for i in a.ins:
        if "CODE_LIM" in i.text:
            i.text = i.text.replace("CODE_LIM", "0x1230")
    b, d, e = kernel_text(NAME + "_kernel", a, auto=True, align=True)
    size = sum(getattr(i, "size", 0) for i in a.ins)
    lim = (size - 256) & ~15
    b = b.replace("v_min_u32 v2, 0x1230, v2", f"v_min_u32 v2, {lim:#x}, v2")
    out.append(b)
    out.append('.section .rodata,"a"')
    out.append(d)
    open(path, "w").write("\n".join(out))


if __name__ == "__main__":
    main(sys.argv[1] if len(sys.argv) > 1 else f"cdna_kernels/{NAME}.s")
```

```python
import os
import sys
import struct
from asmgen import Asm, kernel_text

NAME = "sequential_preLN__ssm_conv_s4__glu_gated_reglu__prompt"
L, D, N, F = 2048, 640, 192, 1536
PROF = bool(os.environ.get("PROF", ""))
PROFBASE = 0x2000000

FW2 = 0x1000
GEN, FW, FH, FM, S1, ST2 = 0x0, 0x70000, 0x10000, 0x40000, 0x60000, 0x80000
CSP = 0xC0000
XR, HT, W1P, W2P, HM, WS_END = 0x100000, 0x500000, 0x800000, 0xC00000, 0xE00000, 0x1400000
SZ_X = D * L * 2
SZ_W = D * F * 2
TAB, TABS = 0, 2816
STG, STGS = 25600, 15232
XQ = 88832
WTS = 114688
R0B, R1B = 0, 24320
BSB = 25600
CHB, CHS = 57344, 18944
RT = [139264, 114688, 90112]
C_U0, C_U2, C_KO, C_KE = 0, 5152, 10304, 14528
R2B = CHB
HALF = 81920
SPIN = 200000

sWG, sW = 2, 3
sX, sPAR, sLDT, sDSK, sWGP, sWUP, sWDP, sOUT, sWS = 4, 6, 18, 20, 24, 26, 28, 30, 34
RWS, RX, RW, RWD, ROUT = 36, 40, 44, 48, 52
sTAG = 56
sP, sE, sCH0, sCH1 = 57, 58, 59, 60
sTB, sJ = 61, 62
sLO, sHI, sONE = 63, 64, 65
sD0 = 22
DSEL = [(22, 23), (66, 67), (68, 69)]
sT = 70
vLANE, vL16, vFLAG, vTAGV, vW1 = 240, 241, 242, 243, 244
BIG = 0x7FFFFFF0


def f2u(x):
    return struct.unpack("<I", struct.pack("<f", x))[0]


def vr(b, n):
    return f"v[{b}:{b+n-1}]"


def ar(b, n):
    return f"a[{b}:{b+n-1}]"


def sr(b, n=4):
    return f"s[{b}:{b+n-1}]"


class Lst(list):
    def __call__(self, t):
        self.append(t)


PSEL = [x for x in os.environ.get("PROF", "").split(",") if x]
assert len(PSEL) <= 8


def stamp(a, name):
    if name in PSEL:
        k = PSEL.index(name)
        a(f"s_memtime s[{84+2*k}:{85+2*k}] ; stamp")


def srd(a, s, base, size):
    a(f"s_mov_b32 s{s}, s{base}")
    a(f"s_mov_b32 s{s+1}, s{base+1}")
    a(f"s_mov_b32 s{s+2}, {size:#x}")
    a(f"s_mov_b32 s{s+3}, 0x20000")


def interleave(a, main, fill, start=0, per=1, every=1):
    k = 0
    for i, m in enumerate(main):
        for t in (m if isinstance(m, list) else [m]):
            a(t)
        if i >= start and (i - start) % every == 0:
            for _ in range(per):
                if k < len(fill):
                    g = fill[k]
                    for t in (g if isinstance(g, list) else [g]):
                        a(t)
                    k += 1
    return fill[k:]


def emit(a, lst):
    for g in lst:
        for t in (g if isinstance(g, list) else [g]):
            a(t)


def ln_den(a, vs, vq, t0):
    inv = f2u(1.0 / D)
    a(f"v_mul_f32 v{vs}, {inv:#x}, v{vs}")
    a(f"v_mul_f32 v{vq}, {inv:#x}, v{vq}")
    a(f"v_fma_f32 v{vq}, -v{vs}, v{vs}, v{vq}")
    a(f"v_max_f32 v{vq}, 0, v{vq}")
    a(f"v_cvt_pk_bf16_f32 v{t0}, v{vq}, v{vq}")
    a(f"v_lshlrev_b32 v{vq}, 16, v{t0}")
    a(f"v_add_f32 v{vq}, {f2u(1e-5):#x}, v{vq}")
    a(f"v_cvt_pk_bf16_f32 v{t0}, v{vq}, v{vq}")
    a(f"v_lshlrev_b32 v{vq}, 16, v{t0}")
    a(f"v_sqrt_f32 v{vq}, v{vq}")
    a(f"v_cvt_pk_bf16_f32 v{t0}, v{vq}, v{vq}")
    a(f"v_lshlrev_b32 v{vq}, 16, v{t0}")
    a(f"v_rcp_f32 v{vq}, v{vq}")


def den_from(a, vm, vq, t0):
    a(f"v_mul_f32 v{vq}, {f2u(1.0 / D):#x}, v{vq}")
    a(f"v_fma_f32 v{vq}, -v{vm}, v{vm}, v{vq}")
    a(f"v_max_f32 v{vq}, 0, v{vq}")
    a(f"v_cvt_pk_bf16_f32 v{t0}, v{vq}, v{vq}")
    a(f"v_lshlrev_b32 v{vq}, 16, v{t0}")
    a(f"v_add_f32 v{vq}, {f2u(1e-5):#x}, v{vq}")
    a(f"v_cvt_pk_bf16_f32 v{t0}, v{vq}, v{vq}")
    a(f"v_lshlrev_b32 v{vq}, 16, v{t0}")
    a(f"v_sqrt_f32 v{vq}, v{vq}")
    a(f"v_cvt_pk_bf16_f32 v{t0}, v{vq}, v{vq}")
    a(f"v_lshlrev_b32 v{vq}, 16, v{t0}")
    a(f"v_rcp_f32 v{vq}, v{vq}")
    a(f"v_mul_f32 v{vq}, v{vq}, v{vq}")


def cmuls(a, lst):
    for d, x, y in lst:
        assert d not in (x, y)
        a(f"v_pk_mul_f32 {vr(d,2)}, {vr(x,2)}, {vr(y,2)} op_sel:[0,0] op_sel_hi:[0,1]")
    for d, x, y in lst:
        a(f"v_pk_fma_f32 {vr(d,2)}, {vr(x,2)}, {vr(y,2)}, {vr(d,2)} op_sel:[1,1,0] op_sel_hi:[1,0,1] neg_lo:[1,0,0]")


_pollid = [0]


def poll(a, vaddr, soff, vdst, pre_issued=False):
    n = _pollid[0]
    _pollid[0] += 1
    a(f"s_mov_b32 s{sT}, 0")
    if pre_issued:
        a(f"v_cmp_ne_u32 vcc, s{sTAG}, v{vdst}")
        a(f"s_cbranch_vccz POLLD{n}")
    a.label(f"POLL{n}")
    a(f"buffer_load_dword v{vdst}, v{vaddr}, {sr(RWS)}, s{soff} offen sc1")
    a(f"s_add_u32 s{sT}, s{sT}, 1")
    a(f"s_cmp_gt_u32 s{sT}, {SPIN}")
    a("s_waitcnt vmcnt(0)")
    a(f"s_cbranch_scc1 POLLD{n}")
    a(f"v_cmp_ne_u32 vcc, s{sTAG}, v{vdst}")
    a(f"s_cbranch_vccnz POLL{n}")
    a.label(f"POLLD{n}")


def flag_store(a, soff):
    a(f"buffer_store_dword v{vTAGV}, v{vFLAG}, {sr(RWS)}, s{soff} offen sc1")


W1EV = int(os.environ.get("W1EV", "5"))
NW1C = int(os.environ.get("NW1C", "48"))
W1AT = int(os.environ.get("W1AT", "0"))
NW1A = int(os.environ.get("NW1A", "6"))
NW1B = int(os.environ.get("NW1B", "9"))


sW1D, sW1STEP, sW1ST, sCSST, sFWO, sFHO, sH0, sH1, sH2 = 4, 5, 6, 7, 8, 9, 10, 11, 12
sW1L, sCSL, sPH0, sPH1, sPH2, sACT, sM0, sXR, sWT = 13, 14, 15, 16, 17, 18, 19, 20, 21
sHMA, sHMB, sFMA, sFMB, sW2R, sW2ST, sFW2O, sFW2P, sW2A, sW2B = 24, 25, 26, 27, 28, 29, 30, 31, 32, 33
sFWP = 71
vH, vA, vB, vB0, vRW1, vRW0, vRW2 = 1, 2, 3, 4, 5, 6, 7
vRR0, vRR1, vRQ0, vRQ1 = 12, 13, 14, 15
vRZ0, vRZ1, vH0, vPU, vPB, vOB = 244, 245, 246, 247, 248, 249
vPD = 255
vWA, vWB, vT0 = 230, 233, 251
sWJ, sM3 = 13, 14
vW2V, vW2R0, vW2R1 = 236, 237, 238


def gen():
    a = Asm()
    a("s_cmp_ge_u32 s2, 256")
    a("s_cbranch_scc1 END")
    if PROF:
        a("s_memrealtime s[80:81] ; stamp")
        a("s_memtime s[82:83] ; stamp")
    a("s_load_dwordx16 s[4:19], s[0:1], 0")
    a("s_load_dwordx16 s[20:35], s[0:1], 64")
    a("v_lshrrev_b32 v1, 6, v0")
    a(f"v_and_b32 v{vLANE}, 63, v0")
    a(f"v_readfirstlane_b32 s{sW}, v1")
    a(f"v_lshlrev_b32 v{vL16}, 4, v{vLANE}")
    a("s_getpc_b64 s[70:71]")
    a("s_lshr_b32 s72, s2, 3")
    a("s_lshl_b32 s72, s72, 12")
    a(f"v_lshlrev_b32 v{vH}, 4, v0           ; 16*tid")
    a(f"v_add_u32 v2, s72, v{vH}")
    a("v_min_u32 v2, CODE_LIM, v2")
    a("global_load_dwordx4 v[196:199], v2, s[70:71]")
    a(f"s_lshr_b32 s{sP}, s2, 1")
    a(f"s_and_b32 s{sE}, s2, 1")
    a(f"s_mul_i32 s{sCH0}, s{sP}, 5")
    a(f"s_mul_i32 s{sCH1}, s{sE}, 3")
    a(f"s_add_u32 s{sCH1}, s{sCH1}, s{sCH0}")
    a(f"s_add_u32 s{sCH0}, s{sCH0}, 2")
    a(f"s_and_b32 s{sTB}, s2, 1")
    a(f"s_lshl_b32 s{sTB}, s{sTB}, 3")
    a("s_bfe_u32 s72, s2, 0x30003")
    a(f"s_add_u32 s{sTB}, s{sTB}, s72")
    a(f"s_bfe_u32 s{sJ}, s2, 0x20001")
    a(f"s_lshl_b32 s{sJ}, s{sJ}, 2")
    a("s_lshr_b32 s72, s2, 6")
    a(f"s_add_u32 s{sJ}, s{sJ}, s72")
    a(f"s_mov_b32 s{sONE}, 0x3f803f80")
    a(f"v_cmp_eq_u32 vcc, 0, v{vLANE}")
    a(f"v_mov_b32 v{vFLAG}, {BIG:#x}")
    a(f"v_cndmask_b32 v{vFLAG}, v{vFLAG}, 0, vcc")
    PB = 200
    TH = [0, 0, 1, 2, 0, 1, 2, 0, 1, 2]

    def wd(g):
        o = []
        for s in (2 * g, 2 * g + 1):
            drow = 160 * s if s < 4 else 80 * ((s - 4) & 7) + (1 if s >= 12 else 0)
            for n in range(3):
                x = [f"s_add_u32 s71, s{sWJ}, {drow*3072}"] if n == 0 else []
                x += [f"s_add_u32 m0, s{sM3}, {RT[TH[g]]+12288*(s&1)+1024*n}"]
                if n:
                    x += ["s_nop 0"] if False else []
                x += [f"buffer_load_dwordx4 v{(vWA if s < 4 else vWB)+n}, {sr(RW)}, s71 offen lds ; @def:wd{g}"]
                o.append(x)
        return o

    def wr(g):
        o = []
        for s in (2 * g, 2 * g + 1):
            for r in range(3):
                for hh in range(2):
                    tok = f" ; @def:wr{s}" if r == 2 and hh == 1 else ""
                    o.append(f"ds_read_b64_tr_b16 {ar(12*s+4*r+2*hh,2)}, v{vT0+r} offset:{RT[TH[g]]-RT[2]+12288*(s&1)+768*hh}{tok}")
        return o

    for it in range(3):
        a(f"s_add_u32 s75, s{sW}, {4*it}      ; unit")
        a("s_mul_i32 s76, s75, 11")
        a("s_lshr_b32 s76, s76, 5            ; rc = u/3")
        a("s_mul_i32 s77, s76, 3")
        a("s_sub_u32 s77, s75, s77           ; third")
        a(f"s_add_u32 s78, s{sCH1}, s76")
        a("s_sub_u32 s78, s78, 1")
        a("s_cmp_eq_u32 s76, 0")
        a(f"s_cselect_b32 s78, s{sCH0}, s78   ; channel")
        a("s_min_u32 s78, s78, 639")
        a("s_lshl_b32 s79, s78, 1")
        a(f"v_mov_b32 v{19+it}, s79")
        a("s_mul_i32 s78, s78, 384")
        a("s_lshl_b32 s77, s77, 7")
        a("s_add_u32 s78, s78, s77")
        a(f"v_lshlrev_b32 v{16+it}, 1, v{vLANE}")
        a(f"v_add_u32 v{16+it}, s78, v{16+it}")
    for r in range(PB, PB + 24):
        a(f"v_mov_b32 v{r}, 0")
    a(f"s_mul_i32 s75, s{sP}, 5")
    a(f"s_lshl_b32 s76, s{sE}, 1")
    a("s_add_u32 s75, s75, s76             ; cb")
    a("s_lshl_b32 s76, s75, 1")
    a("s_and_b32 s76, s76, 0xfffc")
    a("s_mul_i32 s72, s2, 10240")
    a(f"s_sub_u32 s74, s{sW}, 1")
    a("s_lshl_b32 s74, s74, 10")
    a("s_add_u32 s73, s72, s74")
    a(f"s_add_u32 s74, s74, {XQ}")
    a("s_waitcnt lgkmcnt(0)")
    stamp(a, "karg")

    def param_loads(its):
        for it in its:
            for k in range(6):
                a(f"global_load_short_d16_hi v{PB+8*it+k}, v{16+it}, s[{sPAR+2*k}:{sPAR+2*k+1}]")
            a(f"global_load_short_d16_hi v{PB+8*it+6}, v{19+it}, s[{sLDT}:{sLDT+1}]")

    param_loads([0])
    a(f"s_load_dword s{sTAG}, s[{sWS}:{sWS+1}], {GEN}")
    a(f"s_load_dwordx2 s[78:79], s[{sDSK}:{sDSK+1}], s76")
    srd(a, RX, sX, SZ_X)
    srd(a, RWS, sWS, WS_END)
    srd(a, RW, sWGP, SZ_W)
    srd(a, RWD, sWUP, SZ_W)
    srd(a, ROUT, sOUT, SZ_X)
    LOG2E = f2u(1.4426950408889634)
    a(f"s_mul_i32 s63, s{sW}, {STGS}")
    a(f"s_add_u32 s75, s63, {STG}")
    a(f"v_and_b32 v36, 31, v{vLANE}         ; b")
    a(f"v_bfe_u32 v37, v{vLANE}, 5, 1       ; h")
    a("v_mul_u32_u24 v35, 272, v36")
    a("v_lshl_add_u32 v35, v37, 4, v35")
    a("v_add_u32 v35, s75, v35")
    a(f"s_mul_i32 s75, s{sW}, {TABS}")
    a("v_lshlrev_b32 v8, 5, v36")
    a("v_lshl_add_u32 v8, v37, 4, v8")
    a("v_add_u32 v8, s75, v8")
    a("v_lshlrev_b32 v9, 4, v36")
    a("v_add_u32 v9, 1024, v9")
    a("v_lshlrev_b32 v10, 3, v36")
    a("v_add_u32 v10, 1536, v10")
    a("v_cmp_eq_u32 vcc, 1, v37")
    a("v_mov_b32 v11, 8")
    a("v_mov_b32 v24, 256")
    a("v_cndmask_b32 v9, v9, v10, vcc")
    a("v_cndmask_b32 v11, v11, v24, vcc")
    a("v_add_u32 v9, s75, v9")
    a("v_add_u32 v10, v9, v11")
    a("v_mul_u32_u24 v11, 384, v37")
    a("v_lshl_add_u32 v11, v36, 2, v11")
    a("v_add_u32 v11, s75, v11")
    cST, cRA, cRB, cS01, cS2, cSA = 224, 225, 226, 227, 228, 229
    a(f"v_lshrrev_b32 v24, 2, v{vLANE}      ; c16")
    a(f"v_and_b32 v25, 3, v{vLANE}          ; k")
    a("v_lshrrev_b32 v26, 1, v24")
    a("v_and_b32 v27, 1, v24               ; e")
    a("v_mul_u32_u24 v28, 5, v26")
    a("v_lshl_add_u32 v28, v27, 1, v28     ; cb")
    a("v_lshlrev_b32 v28, 1, v28")
    a("v_and_b32 v28, 0xfffc, v28")
    a("v_mul_u32_u24 v29, 2560, v25")
    a(f"s_and_b32 s76, s{sW}, 1")
    a("s_mul_i32 s75, s76, 640")
    a(f"s_add_u32 s75, s75, {XQ}")
    a(f"v_add3_u32 v{cRA}, v28, v29, s75")
    a(f"v_add_u32 v{cRB}, 1280, v{cRA}")
    a("v_and_b32 v26, 1, v26               ; parity")
    a("v_add_u32 v29, v26, v27             ; q1")
    a("v_lshlrev_b32 v30, 1, v27")
    a("v_sub_u32 v30, v26, v30")
    a("v_add_u32 v30, 2, v30               ; q0")
    a("v_lshl_add_u32 v30, v29, 16, v30")
    a("s_mov_b32 s75, 0x0202")
    a("v_mul_lo_u32 v30, v30, s75")
    a(f"v_add_u32 v{cS01}, 0x01000100, v30")
    a("v_add_u32 v29, 1, v29")
    a("s_mov_b32 s75, 0x02020202")
    a("v_mul_lo_u32 v29, v29, s75")
    a(f"v_add_u32 v{cS2}, 0x01000100, v29")
    a("v_lshlrev_b32 v24, 14, v24")
    a(f"v_lshl_add_u32 v{cST}, v25, 4, v24")
    a(f"v_lshrrev_b32 v24, 3, v{vLANE}")
    a("v_mul_u32_u24 v24, 1280, v24")
    a(f"v_and_b32 v25, 7, v{vLANE}")
    a("v_lshl_add_u32 v24, v25, 4, v24")
    a(f"v_add_u32 v{cSA}, {XQ}, v24")
    stamp(a, "f0")
    a(f"s_cmp_eq_u32 s{sW}, 0")
    a("s_cbranch_scc1 LD0")
    for n in range(4):
        a(f"s_add_u32 m0, s74, {3072*n}")
        a(f"s_add_u32 s75, s73, {3072*n}")
        if n == 3:
            a(f"s_cmp_eq_u32 s{sW}, 1")
            a(f"s_cselect_b32 s75, s75, {BIG:#x}")
        a(f"buffer_load_dwordx4 v{vL16}, {sr(RX)}, s75 offen lds")
    a("s_branch LDC")
    a.label("LD0")
    param_loads([2])
    a.label("LDC")
    param_loads([1])
    srd(a, RX, sWDP, SZ_W)
    t0, t1, t2, t3, t4, t5 = 24, 25, 26, 27, 28, 29
    a(f"v_and_b32 v{t0}, 1, v{vLANE}")
    a(f"v_bfe_u32 v{t1}, v{vLANE}, 1, 3")
    a(f"v_lshrrev_b32 v{t2}, 4, v{vLANE}     ; g")
    a(f"s_lshl_b32 s75, s{sW}, 7")
    a(f"s_sub_u32 s76, {CHB + C_KE + 2*252 - 64}, s75")
    a(f"v_mul_u32_u24 v{vA}, {C_KE-C_KO}, v{t0}")
    a(f"v_sub_u32 v{vA}, s76, v{vA}")
    a(f"v_lshlrev_b32 v{t3}, 3, v{t1}")
    a(f"v_sub_u32 v{vA}, v{vA}, v{t3}")
    a(f"v_lshl_add_u32 v{vA}, v{t2}, 4, v{vA}")
    a(f"s_sub_u32 s76, {CHB + C_U2 + 1024 - 64}, s75")
    a(f"v_mul_u32_u24 v{vB}, {C_U2-C_U0}, v{t0}")
    a(f"v_sub_u32 v{vB}, s76, v{vB}")
    a(f"v_lshl_add_u32 v{vB}, v{t1}, 6, v{vB}")
    a(f"v_lshl_add_u32 v{vB}, v{t2}, 4, v{vB}")
    a(f"s_lshl_b32 s76, s{sE}, 9")
    a(f"v_add_u32 v{vB0}, s76, v{vB}")
    a(f"v_subrev_u32 v{vB0}, 512, v{vB0}")
    a(f"v_bfe_u32 v{t3}, v{vLANE}, 2, 1")
    a(f"v_lshl_add_u32 v{t3}, v{t3}, 1, v{t0}")
    a(f"v_xor_b32 v{t3}, v{t3}, v{t2}")
    a(f"v_lshlrev_b32 v{t3}, 4, v{t3}")
    a(f"v_lshl_add_u32 v{t3}, v{t1}, 6, v{t3}")
    a(f"v_lshl_add_u32 v{t4}, v{t0}, 12, v{t3}")
    a(f"s_lshl_b32 s77, s{sW}, 13")
    a(f"s_add_u32 s76, s77, {R1B}")
    a(f"v_add_u32 v{vRW1}, s76, v{t4}")
    a(f"s_add_u32 s76, s77, {R2B}")
    a(f"v_add_u32 v{vRW2}, s76, v{t4}")
    a(f"v_lshl_add_u32 v{t4}, v{t0}, 11, v{t3}")
    a(f"s_lshl_b32 s77, s{sW}, 12")
    a(f"v_add_u32 v{vRW0}, s77, v{t4}")
    a(f"v_bfe_u32 v{t3}, v0, 3, 1")
    a(f"v_lshlrev_b32 v{t3}, 1, v{t3}")
    a(f"v_xor_b32 v{t3}, v{t3}, v0")
    a(f"v_lshlrev_b32 v{t3}, 4, v{t3}")
    a(f"v_add_u32 v{vRR0}, {R1B}, v{t3}")
    a(f"v_xor_b32 v{vRR1}, 16, v{vRR0}")
    a(f"v_add_u32 v{vRQ0}, {R2B}, v{t3}")
    a(f"v_xor_b32 v{vRQ1}, 16, v{vRQ0}")
    a(f"v_and_b32 v{t3}, 511, v{t3}")
    a(f"s_lshl_b32 s77, s{sW}, 9")
    a(f"v_add_u32 v{vRZ0}, s77, v{t3}")
    a(f"v_xor_b32 v{vRZ1}, 16, v{vRZ0}")
    a(f"v_bfe_u32 v{t3}, v{vLANE}, 5, 1")
    a(f"v_cmp_eq_u32 vcc, s{sE}, v{t3}")
    a(f"v_mov_b32 v{vH0}, {BIG:#x}")
    a(f"v_lshlrev_b32 v{vPU}, 2, v0")
    a(f"v_cndmask_b32 v{vH0}, v{vH0}, v{vH}, vcc")
    a(f"v_add_u32 v{vPU}, {CHB}, v{vPU}")
    a(f"v_lshlrev_b32 v{vPB}, 3, v0")
    a(f"v_add_u32 v{vPB}, {BSB}, v{vPB}")
    a(f"v_lshlrev_b32 v{vOB}, 5, v0")
    a(f"v_add_u32 v{vOB}, {BSB}, v{vOB}")
    a(f"s_lshl_b32 s{sXR}, s2, 14")
    a(f"s_add_u32 s{sXR}, s{sXR}, {XR:#x}")
    a(f"s_lshl_b32 s{sH0}, s{sCH0}, 12")
    a(f"s_add_u32 s{sH0}, s{sH0}, {HT:#x}")
    a(f"s_lshl_b32 s{sH1}, s{sCH1}, 12")
    a(f"s_add_u32 s{sH1}, s{sH1}, {HT:#x}")
    a(f"s_add_u32 s{sH2}, s{sH1}, 4096")
    a(f"s_lshl_b32 s{sFHO}, s{sW}, 8")
    a(f"s_add_u32 s{sFHO}, s{sFHO}, s2")
    a(f"s_lshl_b32 s{sFHO}, s{sFHO}, 6")
    a(f"s_add_u32 s{sFHO}, s{sFHO}, {FH:#x}")
    a(f"v_lshrrev_b32 v{t1}, 3, v{vLANE}     ; q")
    a(f"v_mul_u32_u24 v{t3}, 5, v{t1}")
    a(f"v_add_u32 v30, 2, v{t3}")
    a(f"v_mul_u32_u24 v{t4}, 5, v{t2}")
    a(f"v_and_b32 v{t5}, 1, v{t1}")
    a(f"v_mul_u32_u24 v{t5}, 3, v{t5}")
    a(f"v_add_u32 v31, v{t4}, v{t5}")
    a(f"v_and_b32 v32, 7, v{vLANE}")
    a(f"v_and_b32 v33, 1, v{t2}              ; (row>>1)&1")
    a(f"s_and_b32 s75, s{sW}, 1")
    a(f"s_lshl_b32 s75, s75, 1")
    a("v_or_b32 v33, s75, v33")
    a("v_lshlrev_b32 v33, 1, v33")
    a("v_xor_b32 v33, v33, v32")
    a("v_lshlrev_b32 v33, 4, v33")
    a(f"s_mul_i32 s75, s{sW}, 40")
    a("v_add_u32 v30, s75, v30")
    a("v_lshl_add_u32 v30, v30, 12, v33")
    a("v_accvgpr_write_b32 a240, v30")
    a(f"s_mul_i32 s75, s{sW}, 20")
    a("v_add_u32 v31, s75, v31")
    a("v_lshl_add_u32 v31, v31, 12, v33")
    a("v_accvgpr_write_b32 a241, v31")
    a(f"s_lshl_b32 s75, s{sW}, 3")
    a(f"v_lshlrev_b32 v30, 5, v{t1}")
    a("v_add3_u32 v30, v30, v32, s75       ; 32s'+8w+j")
    a("v_lshlrev_b32 v31, 6, v30")
    a("v_accvgpr_write_b32 a243, v31")
    a("v_and_b32 v30, 127, v30")
    a("v_lshlrev_b32 v30, 7, v30")
    a("v_accvgpr_write_b32 a242, v30")
    a(f"s_lshr_b32 s75, s{sTB}, 2")
    a("s_lshl_b32 s75, s75, 14")
    a(f"s_add_u32 s{sPH1}, s75, {FH + 65536:#x}")
    a(f"s_add_u32 s{sPH2}, s75, {FH + 131072:#x}")
    a(f"s_bfe_u32 s76, s{sTB}, 0x10001")
    a("s_lshl_b32 s76, s76, 6")
    a("s_add_u32 s75, s75, s76")
    a(f"s_add_u32 s{sPH0}, s75, {FH:#x}")
    a(f"s_lshl_b32 s{sACT}, s{sTB}, 8")
    a(f"s_add_u32 s{sACT}, s{sACT}, {HT:#x}")
    a(f"s_lshl_b32 s{sM0}, s{sW}, 10")
    a(f"v_bfe_u32 v{t1}, v{vLANE}, 2, 2      ; rr")
    a(f"v_lshl_add_u32 v{t3}, v{t2}, 3, v{t1}")
    a(f"v_lshlrev_b32 v{t3}, 7, v{t3}        ; row*128")
    a(f"v_and_b32 v{t4}, 1, v{t2}")
    a(f"v_lshrrev_b32 v{t5}, 1, v{t1}")
    a(f"v_lshl_add_u32 v{t4}, v{t4}, 1, v{t5}")
    a(f"v_xor_b32 v30, s{sW}, v{t4}")
    a(f"v_lshl_add_u32 v30, v30, 5, v{t3}")
    a(f"v_and_b32 v31, 3, v{vLANE}")
    a("v_lshl_add_u32 v30, v31, 3, v30")
    a("v_accvgpr_write_b32 a244, v30")
    a(f"s_cmp_ge_u32 s{sW}, 2")
    a(f"s_cselect_b64 s[{RW}:{RW+1}], s[{RWD}:{RWD+1}], s[{RW}:{RW+1}]")
    a(f"s_mul_i32 s{sWJ}, s{sJ}, 192")
    a(f"s_mul_i32 s{sM3}, s{sW}, 3072")
    a(f"s_and_b32 s76, s{sW}, 1")
    a("s_lshl_b32 s75, s76, 4")
    for n in range(3):
        a(f"v_add_u32 v32, {64*n}, v{vLANE}")
        a("v_mul_u32_u24 v33, 5462, v32")
        a("v_lshrrev_b32 v33, 16, v33          ; L'/12")
        a("v_mul_u32_u24 v34, 12, v33")
        a("v_sub_u32 v32, v32, v34")
        a("v_lshlrev_b32 v32, 4, v32")
        a("v_add_u32 v33, s75, v33             ; row")
        a("v_mul_u32_u24 v34, 5, v33")
        a("v_add_u32 v34, 2, v34")
        a("v_mul_u32_u24 v34, 3072, v34")
        a(f"v_add_u32 v{vWA+n}, v34, v32")
        a("v_lshrrev_b32 v34, 1, v33")
        a("v_mul_u32_u24 v34, 5, v34")
        a("v_and_b32 v33, 1, v33")
        a("v_mul_u32_u24 v33, 3, v33")
        a("v_add_u32 v34, v34, v33")
        a("v_mul_u32_u24 v34, 3072, v34")
        a(f"v_add_u32 v{vWB+n}, v34, v32")
    a(f"v_lshl_add_u32 v{t3}, v{t2}, 3, v{t1}")
    a(f"v_mul_u32_u24 v{t4}, 192, v{t3}")
    a(f"s_mul_i32 s75, s{sW}, 48")
    a(f"s_add_u32 s75, s75, {RT[2]}")
    a(f"v_add_u32 v{t4}, s75, v{t4}")
    a(f"v_lshl_add_u32 v{vT0}, v31, 3, v{t4}")
    a(f"v_add_u32 v{vT0+1}, 6144, v{vT0}")
    a(f"v_bfe_u32 v{t5}, v{vLANE}, 1, 1")
    a(f"v_mul_u32_u24 v{t5}, 6144, v{t5}")
    a(f"v_lshl_add_u32 v{t5}, v{t0}, 3, v{t5}")
    a(f"v_add3_u32 v{vT0+2}, v{t4}, v{t5}, 32")
    a("s_lshl_b32 s75, s2, 1")
    a("s_add_u32 s75, s75, s76")
    a("s_mul_i32 s75, s75, 30")
    a(f"v_min_u32 v250, 29, v{vLANE}")
    a("v_add_lshl_u32 v250, v250, s75, 7")
    stamp(a, "f1")
    a(f"v_mul_u32_u24 v24, 6554, v{vLANE}")
    a("v_lshrrev_b32 v24, 16, v24          ; L/10")
    a("v_mul_u32_u24 v24, 1120, v24")
    a(f"v_add_u32 v{vW2V}, v24, v{vL16}")
    a(f"s_lshl_b32 s75, s{sW}, 8")
    a("s_add_u32 s75, s75, s2              ; task")
    a("s_lshr_b32 s72, s75, 3")
    a("s_and_b32 s73, s75, 7")
    a(f"s_lshl_b32 s{sFW2O}, s75, 6")
    a(f"s_add_u32 s{sFW2O}, s{sFW2O}, {FW2:#x}")
    a(f"s_mul_i32 s{sW2R}, s72, {32*1280}")
    a("s_mul_i32 s74, s73, 160")
    a(f"s_add_u32 s{sW2R}, s{sW2R}, s74")
    a(f"s_mul_i32 s{sW2ST}, s73, 245760")
    a("s_mul_i32 s74, s72, 5120")
    a(f"s_add_u32 s{sW2ST}, s{sW2ST}, s74")
    a(f"s_add_u32 s{sW2ST}, s{sW2ST}, {W2P:#x}")
    a("s_cmp_lt_u32 s75, 384")
    a(f"s_cselect_b32 s{sW2ST}, s{sW2ST}, {BIG:#x}")
    a(f"s_cselect_b32 s{sFW2O}, s{sFW2O}, {BIG:#x}")
    a(f"s_mul_i32 s{sWT}, s{sW}, 5888")
    a(f"s_add_u32 s{sWT}, s{sWT}, {WTS}")
    a(f"v_mul_u32_u24 v24, 160, v{t3}")
    a(f"v_add_u32 v24, s{sWT}, v24")
    a(f"v_and_b32 v25, 3, v{vLANE}")
    a(f"v_lshl_add_u32 v{vW2R0}, v25, 4, v24")
    a(f"v_lshl_add_u32 v{vW2R1}, v25, 3, v24")
    a(f"s_mul_i32 s{sTAG}, s{sTAG}, 0x9E3779B1")
    a(f"s_add_u32 s{sTAG}, s{sTAG}, 0x7F4A7C15")
    a(f"v_mov_b32 v{vTAGV}, s{sTAG}")
    a(f"s_and_b32 s74, s{sP}, 1")
    for r in range(3):
        lo, hi = DSEL[r]
        if r == 0:
            a(f"s_lshl_b32 s73, s{sE}, 1")
            a("s_sub_u32 s73, s74, s73")
            a("s_add_u32 s73, s73, 2")
        else:
            a(f"s_add_u32 s73, s74, s{sE}")
            if r == 2:
                a("s_add_u32 s73, s73, 1")
        a("s_lshl_b32 s73, s73, 4")
        a(f"s_lshr_b64 s[{lo}:{hi}], s[78:79], s73")
        a(f"s_lshl_b32 s{lo}, s{lo}, 16")
        a(f"s_mov_b32 s{hi}, s{lo}")
    a(f"s_mov_b32 s76, {LOG2E:#x}")
    a(f"s_mov_b32 s77, {f2u(0.15915494309189535):#x}")
    a("s_mov_b32 m0, s63")
    a(f"s_mov_b32 s75, s{sW}                ; unit")
    a("s_waitcnt vmcnt(14)")
    a(f"s_cmp_eq_u32 s{sW}, 0")
    a("s_cbranch_scc1 P0W")
    a("s_waitcnt vmcnt(11)")
    a.label("P0W")
    a("; @clearvm")
    stamp(a, "job")
    a.label("KGEN")
    stamp(a, "k0")
    A_, B_, C_, LD_ = PB, PB + 2, PB + 4, PB + 6
    a(f"v_mul_f32 v32, {LOG2E:#x}, v{LD_}")
    a("v_exp_f32 v32, v32")
    a("v_cvt_pk_bf16_f32 v32, v32, v32")
    a("v_lshlrev_b32 v32, 16, v32          ; dt")
    a(f"v_pk_mul_f32 v[24:25], {vr(A_,2)}, v[32:33] op_sel:[0,0] op_sel_hi:[1,0]")
    a(f"v_pk_mul_f32 v[26:27], {vr(B_,2)}, v[32:33] op_sel:[0,0] op_sel_hi:[1,0]")
    a("v_pk_mul_f32 v[24:25], v[24:25], s[76:77]")
    P, Q, CV = 40, 56, 72
    p1, qq, w8 = 88, 90, 92
    RA = 104
    Rr = lambda k: RA + 2 * k
    R0 = Rr(0)
    cmuls(a, [(R0, C_, 26)])
    ev = [(P + 2, 8.0, 96), (p1, 1.0, 98), (qq, 256.0, 100)]
    for dst, sc, t in ev:
        if sc == 1.0:
            a(f"v_fract_f32 v{t+1}, v25")
        else:
            a(f"v_mul_f32 v{t}, {f2u(sc):#x}, v24")
            a(f"v_mul_f32 v{t+1}, {f2u(sc):#x}, v25")
            a(f"v_fract_f32 v{t+1}, v{t+1}")
    for dst, sc, t in ev:
        a(f"v_exp_f32 v{t}, v{24 if sc == 1.0 else t}")
        a(f"v_cos_f32 v{dst}, v{t+1}")
        a(f"v_sin_f32 v{dst+1}, v{t+1}")
    for dst, sc, t in ev:
        a(f"v_pk_mul_f32 {vr(dst,2)}, {vr(dst,2)}, {vr(t,2)} op_sel:[0,0] op_sel_hi:[1,0]")
    stamp(a, "k1")
    W = lambda k: P + 2 * k
    p2, p4, q2 = 96, 98, 100
    cmuls(a, [(W(2), W(1), W(1)), (p2, p1, p1), (q2, qq, qq), (Rr(1), R0, p1)])
    cmuls(a, [(W(3), W(2), W(1)), (W(4), W(2), W(2)), (p4, p2, p2), (Rr(2), R0, p2), (Rr(3), Rr(1), p2)])
    cmuls(a, [(W(5), W(4), W(1)), (W(6), W(4), W(2)), (W(7), W(4), W(3)), (Q, W(4), W(4))])
    AOFF = 32 * 272

    def put(vals, cv, neg):
        for k, (r, col) in enumerate(vals):
            if r is None:
                a(f"v_mov_b32 v{cv+k}, 0x3f80")
            else:
                a(f"v_cvt_pk_bf16_f32 v{cv+k}, v{r}, {'-' if neg else ''}v{r+1}")
        for k, (r, col) in enumerate(vals):
            a(f"ds_write_addtid_b32 v{cv+k} offset:{STG+272*col+(AOFF if neg else 0)}")

    stamp(a, "k2")
    a(f"v_pk_mov_b32 {vr(w8,2)}, {vr(Q,2)}, {vr(Q,2)} op_sel:[0,1]")
    cmuls(a, [(Q + 2 * k, P + 2 * k, w8) for k in range(1, 8)])
    put([(None, 0)] + [(P + 2 * k, k) for k in range(1, 8)] + [(Q + 2 * k, 8 + k) for k in range(8)], CV, False)
    cmuls(a, [(P + 2 * k, Q + 2 * k, w8) for k in range(8)])
    cmuls(a, [(Q + 2 * k, P + 2 * k, w8) for k in range(8)])
    put([(P + 2 * k, 16 + k) for k in range(8)] + [(Q + 2 * k, 24 + k) for k in range(8)], CV, False)
    FB, FA = 40, 148
    for s in range(8):
        a(f"ds_read_b128 {vr(FB+4*s,4)}, v35 offset:{32*s}")
    stamp(a, "k3")
    cmuls(a, [(Rr(4 + k), Rr(k), p4) for k in range(4)] + [(Rr(8), R0, qq), (Rr(9), Rr(2), qq), (Rr(12), R0, q2)])
    cmuls(a, [(Rr(10), Rr(4), qq), (Rr(11), Rr(6), qq), (Rr(13), Rr(4), q2), (Rr(14), Rr(8), q2), (Rr(16), Rr(12), q2)])
    cmuls(a, [(Rr(15), Rr(10), q2), (Rr(17), Rr(14), q2), (Rr(18), Rr(16), q2)])
    cmuls(a, [(Rr(20), Rr(17), q2), (Rr(21), Rr(18), q2)])
    stamp(a, "k4")
    put([(Rr(k), k) for k in list(range(19)) + [20, 21]], CV, True)
    for s in range(8):
        a(f"ds_read_b128 {vr(FA+4*s,4)}, v35 offset:{AOFF+32*s}")
    stamp(a, "k5")
    DK = 180
    for s in range(8):
        a(f"v_mfma_f32_32x32x16_bf16 {vr(DK,16)}, {vr(FA+4*s,4)}, {vr(FB+4*s,4)}, {'0' if s == 0 else vr(DK,16)}")
    stamp(a, "k6")
    a("s_add_u32 s75, s75, 4")
    a(f"ds_write_b128 v8, {vr(DK,4)}")
    a(f"ds_write_b64 v9, {vr(DK+4,2)}")
    a(f"ds_write_b64 v10, {vr(DK+6,2)}")
    for r in range(3):
        a(f"ds_write_b32 v11, v{DK+8+r} offset:{2048+128*r}")
    for r in range(8, 12):
        a(f"v_add_u32 v{r}, {4*TABS}, v{r}")
    a("s_cmp_ge_u32 s75, 8")
    a("s_cbranch_scc1 KG2")
    a("s_waitcnt vmcnt(0)")
    a("s_barrier")
    stamp(a, "xq")
    a(f"s_cmp_eq_u32 s{sW}, 0")
    a("s_cbranch_scc1 KNEXT1")
    a(f"s_cmp_eq_u32 s{sW}, 1")
    a("s_cbranch_scc1 PRE1")
    for i in range(8):
        a(f"ds_read2_b32 {vr(40+4*i,2)}, v{cRA} offset0:{20*i} offset1:{20*i+1}")
        a(f"ds_read2_b32 {vr(42+4*i,2)}, v{cRB} offset0:{20*i} offset1:{20*i+1}")
    a(f"s_and_b32 s78, s{sW}, 1")
    a("s_lshl_b32 s78, s78, 21")
    a("s_lshl_b32 s79, s2, 6")
    a("s_add_u32 s78, s78, s79")
    a(f"s_add_u32 s78, s78, {XR:#x}")
    a("s_mov_b32 s72, 0x05040100")
    a("s_mov_b32 s73, 0x07060302")
    for i in range(8):
        a(f"v_mov_b32 v{104+4*i+3}, s{sTAG}")
    for i in range(8):
        b = 40 + 4 * i
        o = 104 + 4 * i
        a(f"v_perm_b32 v32, v{b+1}, v{b}, v{cS01}")
        a(f"v_perm_b32 v33, v{b+3}, v{b+2}, v{cS01}")
        a(f"v_perm_b32 v34, v{b+1}, v{b}, v{cS2}")
        a(f"v_perm_b32 v38, v{b+3}, v{b+2}, v{cS2}")
        a(f"v_perm_b32 v{o}, v33, v32, s72")
        a(f"v_perm_b32 v{o+1}, v33, v32, s73")
        a(f"v_perm_b32 v{o+2}, v38, v34, s72")
        a(f"buffer_store_dwordx4 {vr(o,4)}, v{cST}, {sr(RWS)}, s78 offen sc1")
        if i < 7:
            a(f"s_add_u32 s78, s78, {16*16384}")
    stamp(a, "recs")
    a("s_branch KNEXT1")
    a.label("PRE1")
    SB = 40
    for c in range(10):
        a(f"ds_read_b128 {vr(SB+4*c,4)}, v{cSA} offset:{128*c}")
    a(f"v_and_b32 v38, 15, v{vLANE}")
    a("v_cmp_eq_u32 vcc, 0, v38")
    a(f"v_mov_b32 v38, {BIG:#x}")
    a(f"v_mov_b32 v107, s{sTAG}")
    a(f"v_cndmask_b32 v38, v38, v{vLANE}, vcc")
    a("s_lshl_b32 s78, s2, 6")
    a(f"s_add_u32 s78, s78, {S1:#x}")
    for k in range(40):
        a(f"v_dot2_f32_bf16 v32, v{SB+k}, s{sONE}, {'0' if k == 0 else 'v32'}")
        a(f"v_dot2_f32_bf16 v33, v{SB+k}, v{SB+k}, {'0' if k == 0 else 'v33'}")
    for m in ("quad_perm:[1,0,3,2]", "quad_perm:[2,3,0,1]", "row_half_mirror"):
        a(f"v_add_f32_dpp v32, v32, v32 {m} row_mask:0xf bank_mask:0xf")
        a(f"v_add_f32_dpp v33, v33, v33 {m} row_mask:0xf bank_mask:0xf")
    ln_den(a, 32, 33, 34)
    a("v_mov_b32 v104, v33")
    a("v_mov_b32_dpp v105, v33 row_ror:8 row_mask:0xf bank_mask:0xf")
    a("v_mov_b32_dpp v34, v32 row_ror:8 row_mask:0xf bank_mask:0xf")
    a("v_cvt_pk_bf16_f32 v106, v32, v34")
    a(f"buffer_store_dwordx4 v[104:107], v38, {sr(RWS)}, s78 offen sc1")
    stamp(a, "recs")
    a.label("KNEXT1")
    a.label("KNEXT")
    for k in range(0, 16, 2):
        a(f"v_pk_mov_b32 {vr(PB+k,2)}, {vr(PB+8+k,2)}, {vr(PB+8+k,2)} op_sel:[0,1]")
    a("s_branch KGEN")
    a.label("KG2")
    a("s_cmp_eq_u32 s75, 8")
    a("s_cbranch_scc1 KNEXT")
    stamp(a, "kgen")
    XRV, STV = 196, 212

    def recv_loads():
        a(f"s_mov_b32 s73, s{sXR}")
        a(f"s_mov_b32 s74, {S1:#x}")
        for i in range(4):
            a(f"buffer_load_dwordx4 {vr(XRV+4*i,4)}, v{vH}, {sr(RWS)}, s73 offen sc1")
            a(f"buffer_load_dwordx4 {vr(STV+4*i,4)}, v{vH}, {sr(RWS)}, s74 offen sc1")
            if i < 3:
                a("s_add_u32 s73, s73, 4096")
                a("s_add_u32 s74, s74, 4096")

    a("s_waitcnt lgkmcnt(0)")
    a("s_barrier")
    recv_loads()
    stamp(a, "bar1")
    a(f"s_cmp_eq_u32 s{sW}, 3")
    a("s_cbranch_scc1 NOPAD")
    for r in range(40, 44):
        a(f"v_mov_b32 v{r}, 0")
    a(f"s_mul_i32 s75, s{sW}, {CHS}")
    a(f"s_add_u32 s75, s75, {CHB}")
    a(f"v_add_u32 v16, s75, v{vL16}")
    a(f"v_and_b32 v17, 48, v{vL16}")
    a("v_add_u32 v17, s75, v17")
    a("v_mov_b32 v18, s75")
    a(f"ds_write_b128 v16, v[40:43] offset:{C_U0}")
    a(f"ds_write_b128 v16, v[40:43] offset:{C_U2}")
    a(f"ds_write_b128 v17, v[40:43] offset:{C_KO+4096}")
    a(f"ds_write_b128 v17, v[40:43] offset:{C_KE+4096}")
    a(f"ds_write_b32 v18, v40 offset:{C_U2+1024}")
    a.label("NOPAD")
    KB = CHB + C_KO
    KD = C_KE - C_KO

    def pk(dst, lo, hi):
        a(f"v_cvt_pk_bf16_f32 v{dst}, v{lo}, v{hi}")

    a(f"v_cmp_eq_u32 vcc, 0, v{vLANE}")
    a(f"s_cmp_eq_u32 s{sW}, 0")
    a("s_cbranch_scc0 EXPN")
    a(f"v_subrev_u32 v17, 4, v{vL16}")
    a("v_max_i32 v17, 0, v17")
    for rc in range(3):
        for t in range(3):
            a(f"ds_read_b128 {vr(44+16*rc+4*t,4)}, v{vL16} offset:{TABS*(3*rc+t)}")
            a(f"ds_read_b32 v{56+16*rc+t}, v17 offset:{TABS*(3*rc+t)}")
    a(f"v_lshlrev_b32 v18, 3, v{vLANE}")
    a(f"v_sub_u32 v18, {KB+2*2044}, v18")
    for rc in range(3):
        b = 44 + 16 * rc
        o = 96 + 4 * rc
        for t in (1, 2):
            a(f"v_pk_add_f32 {vr(b,2)}, {vr(b,2)}, {vr(b+4*t,2)}")
            a(f"v_pk_add_f32 {vr(b+2,2)}, {vr(b+2,2)}, {vr(b+4*t+2,2)}")
            a(f"v_add_f32 v{b+12}, v{b+12}, v{b+12+t}")
        a(f"v_cndmask_b32 v{b+12}, v{b+12}, 0, vcc")
        pk(o, b + 3, b + 2); pk(o + 1, b + 1, b); pk(o + 2, b + 2, b + 1); pk(o + 3, b, b + 12)
        a(f"ds_write_b64 v18, {vr(o,2)} offset:{CHS*rc}")
        a(f"ds_write_b64 v18, {vr(o+2,2)} offset:{CHS*rc+KD}")
    a("s_branch EXPD")
    a.label("EXPN")
    a(f"s_lshl_b32 s75, s{sW}, 9")
    a("s_add_u32 s75, s75, 508")
    a(f"v_lshlrev_b32 v16, 3, v{vLANE}")
    a("v_add_u32 v16, s75, v16")
    for rc in range(3):
        for t in range(3):
            b = 44 + 12 * rc + 4 * t
            off = TABS * (3 * rc + t)
            a(f"ds_read_b64 {vr(b,2)}, v16 offset:{off+4}")
            a(f"ds_read_b32 v{b+2}, v16 offset:{off+12}")
            a(f"ds_read_b32 v{b+3}, v16 offset:{off}")
    for rc in range(3):
        b = 44 + 12 * rc
        for t in (1, 2):
            a(f"v_pk_add_f32 {vr(b,2)}, {vr(b,2)}, {vr(b+4*t,2)}")
            a(f"v_pk_add_f32 {vr(b+2,2)}, {vr(b+2,2)}, {vr(b+4*t+2,2)}")
    a(f"s_cmp_eq_u32 s{sW}, 2")
    a("s_cbranch_scc1 EXP2")
    a(f"s_cmp_eq_u32 s{sW}, 3")
    a("s_cbranch_scc1 EXP3")
    a(f"v_lshlrev_b32 v18, 3, v{vLANE}")
    a(f"v_sub_u32 v18, {KB+2*(2044-256)}, v18")
    for rc in range(3):
        va, vb, vc, vm = (44 + 12 * rc + k for k in range(4))
        o = 96 + 4 * rc
        a(f"v_cndmask_b32 v{vm}, v{va}, v{vm}, vcc")
        pk(o, vc, vb); pk(o + 1, va, va); pk(o + 2, vb, va); pk(o + 3, va, vm)
        a(f"ds_write_b64 v18, {vr(o,2)} offset:{CHS*rc}")
        a(f"ds_write_b64 v18, {vr(o+2,2)} offset:{CHS*rc+KD}")
    a("s_branch EXPD")
    a.label("EXP2")
    a(f"v_sub_u32 v18, {KB+2*(2040-512)}, v{vL16}")
    for rc in range(3):
        va, vb, vc, vm = (44 + 12 * rc + k for k in range(4))
        o = 96 + 8 * rc
        for k, (lo, hi) in enumerate([(vc, vc), (vb, vb), (vb, va), (va, va), (vc, vb), (vb, vb), (va, va), (va, va)]):
            pk(o + k, lo, hi)
        a(f"ds_write_b128 v18, {vr(o,4)} offset:{CHS*rc}")
        a(f"ds_write_b128 v18, {vr(o+4,4)} offset:{CHS*rc+KD}")
    a("s_branch EXPD")
    a.label("EXP3")
    a(f"v_lshlrev_b32 v18, 5, v{vLANE}")
    a(f"v_sub_u32 v18, {KB+2*(2032-1024)}, v18")
    for rc in range(3):
        va, vb, vc, vm = (44 + 12 * rc + k for k in range(4))
        o = 96 + 16 * rc
        pat = [(vc, vc), (vc, vc), (vb, vb), (vb, vb), (vb, vb), (vb, va), (va, va), (va, va),
               (vc, vc), (vc, vb), (vb, vb), (vb, vb), (vb, vb), (va, va), (va, va), (va, va)]
        for k, (lo, hi) in enumerate(pat):
            pk(o + k, lo, hi)
            if k & 3 == 3:
                a(f"ds_write_b128 v18, {vr(o+k-3,4)} offset:{CHS*rc+(KD if k >= 8 else 0)+(16 if k & 4 else 0)}")
    a.label("EXPD")
    stamp(a, "exp")
    a(f"s_mov_b32 s{sT}, 0")
    a.label("RCHK")
    a(f"v_xor_b32 v16, s{sTAG}, v{XRV+3}")
    for r in [XRV + 7, XRV + 11, XRV + 15, STV + 3, STV + 7, STV + 11, STV + 15]:
        a(f"v_xor_b32 v18, s{sTAG}, v{r}")
        a("v_or_b32 v16, v16, v18")
    a("v_cmp_ne_u32 vcc, 0, v16")
    a("s_cbranch_vccz RDONE")
    a(f"s_add_u32 s{sT}, s{sT}, 1")
    a(f"s_cmp_gt_u32 s{sT}, {SPIN}")
    a("s_cbranch_scc1 RDONE")
    a("s_sleep 4")
    recv_loads()
    a("s_waitcnt vmcnt(0)")
    a("s_branch RCHK")
    a.label("RDONE")
    stamp(a, "recv")
    nm = Lst()
    for i in range(4):
        st = STV + 4 * i
        nm(f"v_and_b32 v{st+3}, 0xffff0000, v{st+2}")
        nm(f"v_lshlrev_b32 v{st+2}, 16, v{st+2}")
    for i in range(4):
        st = STV + 4 * i
        nm(f"v_pk_mul_f32 {vr(st+2,2)}, {vr(st+2,2)}, {vr(st,2)} neg_lo:[1,0] neg_hi:[1,0]")
    for rc in range(3):
        X, U = 40 + 8 * rc, 64 + 8 * (rc & 1)
        for i in range(4):
            nm(f"v_lshlrev_b32 v{X+2*i}, 16, v{XRV+4*i+rc}")
            nm(f"v_and_b32 v{X+2*i+1}, 0xffff0000, v{XRV+4*i+rc}")
        for i in range(4):
            st = STV + 4 * i
            nm(f"v_pk_fma_f32 {vr(U+2*i,2)}, {vr(X+2*i,2)}, {vr(st,2)}, {vr(st+2,2)}")
        for i in range(4):
            nm(f"v_cvt_pk_bf16_f32 v{80+4*rc+i}, v{U+2*i}, v{U+2*i+1}")
        for i in range(4):
            nm(f"v_pk_fma_f32 {vr(X+2*i,2)}, {vr(U+2*i,2)}, s[{DSEL[rc][0]}:{DSEL[rc][1]}], {vr(X+2*i,2)}")
        for i in range(0, 4, 2):
            o = CHS * rc + 1024 * i + C_U0 + 1024
            nm(f"ds_write2st64_b32 v{vPU}, v{80+4*rc+i}, v{81+4*rc+i} offset0:{o//256} offset1:{o//256+4}")
        for i in range(4):
            nm(f"ds_write_b32 v{vPU}, v{80+4*rc+i} offset:{CHS*rc+1024*i+C_U2+1028}")
        for i in range(0, 4, 2):
            o = (8192 * rc + 2048 * i) // 512
            nm(f"ds_write2st64_b64 v{vPB}, {vr(X+2*i,2)}, {vr(X+2*i+2,2)} offset0:{o} offset1:{o+4}")
    w2d = []
    for n in range(6):
        w2d.append([f"s_add_u32 m0, s{sWT}, {960*n}",
                    f"s_add_u32 s75, s{sW2R}, {6*1280*n}",
                    f"buffer_load_dwordx4 v{vW2V}, {sr(RX)}, s75 offen lds ; @def:w2raw"])
    rest = interleave(a, nm, wd(0) + w2d, start=0, every=8)
    assert not rest
    a(f"buffer_load_dword v254, v250, {sr(RW)}, 0 offen")

    a("s_waitcnt lgkmcnt(0)")
    a("s_barrier")
    stamp(a, "bar2")
    ACCS = [16, 48]
    BASE = 80
    EP = 104
    free = list(range(136, 228, 4))
    def pairs_of(rnd, k):
        ps = []
        for o in range(k + 1):
            if k + o <= 7 and (rnd > 0 or (k + o) & 1):
                ps.append((k, o))
                if o != k:
                    ps.append((o, k))
        return ps

    groups = [(rnd, r, k) for rnd in range(3) for r in range(2) for k in range(8)]
    fa, fb = {}, {}

    def issue(gk):
        rnd, r, k = gk
        fa[gk] = free.pop(0)
        fb[gk] = free.pop(0)
        ro = 64 * (1 - r) + CHS * rnd
        return [f"ds_read_b64 {vr(fa[gk],2)}, v{vA} offset:{512*(7-k)+ro}",
                f"ds_read_b64 {vr(fa[gk]+2,2)}, v{vA} offset:{512*(7-k)+ro+8}",
                f"ds_read_b128 {vr(fb[gk],4)}, v{vB0 if rnd == 0 else vB} offset:{512*k+ro} ; @def:cv{rnd}_{r}_{k}"]

    def last_level(rnd, idx):
        return max(k for k in range(8) for (q, c) in pairs_of(rnd, k) if idx in (q, c))

    def epi_fill(rnd, plain=True, toks=""):
        f = [[f"; @use:red{rnd} {toks}", "s_barrier"]]
        r0, r1, ws, ps = [(vRZ0, vRZ1, 4096, 2048), (vRR0, vRR1, 8192, 4096), (vRQ0, vRQ1, 8192, 4096)][rnd]
        for w in range(4):
            f.append(f"ds_read_b128 {vr(EP+8*w,4)}, v{r0} offset:{ws*w}")
            f.append(f"ds_read_b128 {vr(EP+4+8*w,4)}, v{r1} offset:{ws*w+ps} ; @def:ep{rnd}_{w}")
        ymap = [0, 4, 2, 6]
        b = BASE + 8 * rnd
        for w in range(4):
            for p in range(4):
                src = EP + 8 * w + ymap[p]
                if plain:
                    g = [f"v_add_f32 v{b+2*p}, v{b+2*p}, v{src}"]
                    if p == 0:
                        g = [f"; @use:ep{rnd}_{w}"] + g
                    f.append(g)
                    f.append(f"v_add_f32 v{b+2*p+1}, v{b+2*p+1}, v{src+1}")
                else:
                    f.append(f"v_pk_add_f32 {vr(b+2*p,2)}, {vr(b+2*p,2)}, {vr(src,2)}")
        for p in range(4):
            f.append(f"v_cvt_pk_bf16_f32 v{b+p}, v{b+2*p}, v{b+2*p+1}")
        f.append(f"buffer_store_dwordx4 {vr(b,4)}, v{vH0 if rnd == 0 else vH}, {sr(RWS)}, s{[sH0, sH1, sH2][rnd]} offen sc1 ; @def:ht{rnd}")
        return f

    def hflag(rnd):
        g = [f"; @use:ht{rnd}", f"buffer_store_dword v{vTAGV}, v{vFLAG}, {sr(RWS)}, s{sFHO} offen sc1"]
        if rnd < 2:
            g.append(f"s_add_u32 s{sFHO}, s{sFHO}, 65536")
        return g

    def w2_job():
        JF = EP
        f = []
        for rt in range(5):
            off = 64 * (rt >> 1) + 8 * (rt & 1) if rt < 4 else 128
            g = [f"ds_read_b64_tr_b16 {vr(JF+4*rt,2)}, v{vW2R0 if rt < 4 else vW2R1} offset:{off}"]
            f.append(["; @use:w2raw"] + g if rt == 0 else g)
            f.append(f"ds_read_b64_tr_b16 {vr(JF+4*rt+2,2)}, v{vW2R0 if rt < 4 else vW2R1} offset:{off+640}")
        f += ["s_nop 0"] * 4
        for rt in range(5):
            if rt == 4:
                f.append(f"s_add_u32 s{sW2ST}, s{sW2ST}, 4096")
            f.append(f"buffer_store_dwordx4 {vr(JF+4*rt,4)}, v{vL16}, {sr(RWS)}, s{sW2ST} offen offset:{1024*(rt&3)} sc1 ; @def:w2st")
        return f

    vD0, vD1, vPL0, vPL1 = 128, 129, 130, 131
    vRA = 132
    vCS0, vCS1 = 136, 137
    vRES = 138
    vSR, vMW, vGW, vMR, vSC = 141, 142, 143, 144, 145
    EPO = 148
    TMP = 160
    SVH = [172, 174]
    HRES = [176, 182]
    CS = 188
    RS, GR, ONE, NM = 200, 204, 208, 212
    vSW = 216
    MS = 26624

    def cs(s):
        return [f"v_mfma_f32_16x16x32_bf16 {vr(CS+4*r,4)}, {ar(12*s+4*r,4)}, {vr(ONE,4)}, {'0' if s == 0 else vr(CS+4*r,4)}" for r in range(3)]

    def dma(h, s):
        drow = 160 * s if s < 4 else 80 * ((s - 4) & 7) + (1 if s >= 12 else 0)
        return [f"s_add_u32 m0, s{sM0}, {HALF*h+4096*s}",
                f"s_add_u32 s75, s{sACT}, {drow*4096+128*h}",
                f"buffer_load_dwordx4 v{vD0 if s < 4 else vD1}, {sr(RWS)}, s75 offen sc1 lds ; @def:d{h}_{s}"]

    PF = 4
    for gi in range(PF):
        emit(a, issue(groups[gi]))
    for rc in range(3):
        a(f"ds_read_b128 {vr(BASE+8*rc,4)}, v{vOB} offset:{8192*rc}")
        a(f"ds_read_b128 {vr(BASE+8*rc+4,4)}, v{vOB} offset:{8192*rc+16}")
    rq = []
    fl = lambda l: [t for g in l for t in g]
    for rnd in range(3):
        acc = ACCS[rnd & 1]
        touched = set()
        stamp(a, f"r{rnd}")
        if rnd == 0:
            other = []
        elif rnd == 1:
            other = epi_fill(0) + [["; @use:wd0", "s_barrier"]] + wr(0) + w2_job()
        else:
            other = epi_fill(1, toks="@use:wr1") + fl(wd(1) + wd(2)) + ["v_accvgpr_read_b32 v8, a242", "v_accvgpr_read_b32 v9, a243"]
        nm_ = 0
        for gi, (rn, r, k) in enumerate(groups):
            if rn != rnd:
                continue
            ps = pairs_of(rnd, k)
            if gi + PF < len(groups):
                rq += issue(groups[gi + PF])
            if ps:
                while any(f"@def:cv{rnd}_{r}_{k}" in t for t in rq):
                    a(rq.pop(0))
                a(f"; @use:cv{rnd}_{r}_{k}")
            for pi, (q, c) in enumerate(ps):
                t = (q + c) >> 1 if rnd == 0 else q + c
                cin = vr(acc + 4 * t, 4) if t in touched else "0"
                touched.add(t)
                a(f"v_mfma_f32_16x16x32_bf16 {vr(acc+4*t,4)}, {vr(fa[(rnd,r,q)],4)}, {vr(fb[(rnd,r,c)],4)}, {cin}")
                nm_ += 1
                slots = 2 if pi + 1 < len(ps) else 1
                if rq and slots:
                    a(rq.pop(0))
                    slots -= 1
                if len(rq) > 6 and slots:
                    a(rq.pop(0))
                    slots -= 1
                while slots and other and nm_ >= 3:
                    emit(a, [other.pop(0)])
                    slots -= 1
            for idx in range(8):
                if last_level(rnd, idx) == k:
                    free.append(fa[(rnd, r, idx)])
                    free.append(fb[(rnd, r, idx)])
        print(f"round {rnd}: {len(other)} fillers left over")
        emit(a, other)
        stamp(a, f"w{rnd}")
        if rnd == 2:
            emit(a, [hflag(1)])
        nt = 4 if rnd == 0 else 8
        for c in range(nt):
            tok = f" ; @def:red{rnd}" if c == nt - 1 else ""
            a(f"ds_write_b128 v{[vRW0, vRW1, vRW2][rnd]}, {vr(acc+4*c,4)} offset:{512*c}{tok}")
        if rnd == 1:
            emit(a, [hflag(0)])
    assert not rq
    for k in range(4):
        a(f"v_mov_b32 v{ONE+k}, s{sONE}")
    a(f"buffer_load_dword v{vPD}, v8, {sr(RWS)}, s{sPH0} offen sc1")
    emit(a, epi_fill(2, plain=False))
    stamp(a, "conv")
    a(f"buffer_load_dword v{TMP}, v9, {sr(RWS)}, s{sPH1} offen sc1")
    for k, r in enumerate([vD0, vD1, vPL0, vPL1, vRA]):
        a(f"v_accvgpr_read_b32 v{r}, a{240+k}")
    for ct in range(1, 4):
        a(f"v_xor_b32 v{vRA+ct}, {32*ct}, v{vRA}")
    a(f"v_cmp_ne_u32 vcc, s{sTAG}, v{vPD}")
    a("s_cmp_eq_u64 vcc, 0")
    a(f"s_cselect_b32 s64, s{sACT}, {BIG:#x}")
    a("s_cselect_b32 s63, 1, 0")
    emit(a, [[t.replace(f"s{sACT},", "s64,") for t in dma(0, s)] for s in range(4)])
    a("; @use:wd2")
    a("s_barrier")
    emit(a, wr(1) + wr(2))
    interleave(a, [m for s in range(0, 6) for m in cs(s)], wd(3), start=2, every=3)
    emit(a, [hflag(2), ["; @use:w2st", f"buffer_store_dword v{vTAGV}, v{vFLAG}, {sr(RWS)}, s{sFW2O} offen sc1"]])
    stamp(a, "flag2")
    a("s_cmp_eq_u32 s63, 1")
    a("s_cbranch_scc1 HAVE0")
    poll(a, vPL0, sPH0, vPD)
    emit(a, [[t.split(" ; @def")[0] for t in dma(0, s)] for s in range(4)])
    a("s_waitcnt vmcnt(0)")
    a.label("HAVE0")
    stamp(a, "pollH0")
    BF = 96

    def reads(h, s):
        o = []
        gs = 20 * h + s
        for ct in range(4):
            for hh in range(2):
                tok = f" ; @def:bf{gs}" if ct == 3 and hh == 1 else ""
                o.append(f"ds_read_b64_tr_b16 {vr(BF+16*(gs&1)+4*ct+2*hh,2)}, v{vRA+ct} offset:{4096*(gs%16)+512*hh}{tok}")
        if gs % 16 == 15:
            o += [f"v_add_u32 v{vRA+ct}, 0x10000, v{vRA+ct}" for ct in range(4)]
        return o

    def mf(h, s):
        gs = 20 * h + s
        b0 = vr(BF + 16 * (gs & 1), 4)
        o = [f"v_mfma_f32_16x16x32_bf16 {vr(RS,4)}, {vr(ONE,4)}, {b0}, {'0' if s == 0 else vr(RS,4)}",
             f"v_mfma_f32_16x16x32_bf16 {vr(GR,4)}, {b0}, {b0}, {'0' if s == 0 else vr(GR,4)}"]
        for ct in range(4):
            for r in range(3):
                acc = vr(48 * h + 12 * ct + 4 * r, 4)
                o.append(f"v_mfma_f32_16x16x32_bf16 {acc}, {ar(12*s+4*r,4)}, {vr(BF+16*(gs&1)+4*ct,4)}, {'0' if s == 0 else acc}")
        return o

    def sync(toks):
        a("; " + " ".join("@use:" + t for t in toks))
        a("s_barrier")

    def res_reads(h):
        o = []
        for sg in range(3):
            o.append(f"ds_read_b64_tr_b16 {vr(HRES[h]+2*sg,2)}, v{vRES+sg}" + (f" ; @def:res{h}" if sg == 2 else ""))
        if h == 0:
            o += [f"v_add_u32 v{vRES+sg}, {HALF}, v{vRES+sg}" for sg in range(3)]
        return o

    def stat_calc():
        return [f"v_mul_f32 v{NM}, {f2u(-1.0/D):#x}, v{RS}",
                f"v_cndmask_b32 v{TMP}, v{GR}, v{GR+1}, s[66:67]",
                f"v_cndmask_b32 v{TMP+1}, v{GR+2}, v{GR+3}, s[66:67]",
                f"v_cndmask_b32 v{TMP}, v{TMP}, v{TMP+1}, s[68:69]"]

    def stat_write(h):
        return [f"ds_write_b32 v{vMW}, v{NM} offset:{512*h}",
                f"ds_write_b32 v{vGW}, v{TMP} offset:{512*h} ; @def:mw{h}"]

    def stat_reads(h):
        o = []
        for ct in range(1, 4):
            o.append(f"v_xor_b32 v{vMR}, {128*ct}, v{vMW}")
            o.append(f"ds_read_b32 v{NM+ct}, v{vMR} offset:{512*h}")
        o.append(f"ds_read2_b32 {vr(SVH[h],2)}, v{vSC} offset0:{128*h} offset1:{128*h+16}")
        return o

    def epi1(h, plain):
        so = 13312 * h
        o = []

        def corr(ct):
            for r in range(3):
                b = 48 * h + 12 * ct + 4 * r
                if plain:
                    for k in range(4):
                        o.append(f"v_fma_f32 v{b+k}, v{NM+ct}, v{CS+4*r+k}, v{b+k}")
                else:
                    sel = "op_sel:[1,0,0] op_sel_hi:[1,1,1]" if ct & 1 else "op_sel:[0,0,0] op_sel_hi:[0,1,1]"
                    for k in (0, 2):
                        o.append(f"v_pk_fma_f32 {vr(b+k,2)}, {vr(NM+(ct&2),2)}, {vr(CS+4*r+k,2)}, {vr(b+k,2)} {sel}")

        def prod(lst):
            for g_, u_, ad in lst:
                for k in range(4):
                    o.append(f"v_max_f32 v{g_+k}, 0, v{g_+k}")
            for g_, u_, ad in lst:
                if plain:
                    for k in range(4):
                        o.append(f"v_mul_f32 v{g_+k}, v{g_+k}, v{u_+k}")
                else:
                    for k in (0, 2):
                        o.append(f"v_pk_mul_f32 {vr(g_+k,2)}, {vr(g_+k,2)}, {vr(u_+k,2)}")
            for g_, u_, ad in lst:
                o.append(f"v_cvt_pk_bf16_f32 v{g_}, v{g_}, v{g_+1}")
                o.append(f"v_cvt_pk_bf16_f32 v{g_+1}, v{g_+2}, v{g_+3}")
            for g_, u_, ad in lst:
                o.append(f"ds_write_b64 v{ad}, {vr(g_,2)} offset:{so}")

        for p in range(2):
            x, y = 48 * h + 24 * p, 48 * h + 24 * p + 12
            corr(2 * p)
            corr(2 * p + 1)
            for k in range(4):
                o.append(f"v_permlane32_swap_b32 v{x+8+k}, v{y+8+k}")
            prod([(x, x + 4, vSW + 2 * p), (y, y + 4, vSW + 2 * p + 1), (x + 8, y + 8, vSW + 4 + p)])
        o[-1] += f" ; @def:stg{h}"
        return o

    def epi2(h):
        o = [[f"; @use:stg{h}", "s_barrier"]]
        for ksl in range(3):
            o.append(f"ds_read_b128 {vr(EPO+4*ksl,4)}, v{vSR} offset:{13312*h+64*ksl}")
        if h == 0:
            o += ["s_nop 0"] * 6
        for ksl in range(3):
            tok = f" ; @def:hm{h}" if ksl == 2 else ""
            o.append(f"buffer_store_dwordx4 {vr(EPO+4*ksl,4)}, v{vL16}, {sr(RWS)}, s{[sHMA, sHMB][h]} offen offset:{1024*ksl} sc1{tok}")
        return o

    def mflag(h):
        return [f"; @use:hm{h}", f"buffer_store_dword v{vTAGV}, v{vFLAG}, {sr(RWS)}, s{[sFMA, sFMB][h]} offen sc1"]

    vW2P, vW2M = 244, 245
    vPM, vHM, vO4, vO2 = 246, 247, 249, 250
    vQ = 228
    sHML, sFMP, sOUTO = 4, 5, 6
    RB = 32768
    w2n = [0]

    def w2_load():
        n = w2n[0]
        w2n[0] += 1
        rt = n % 5
        v = vW2P if rt < 2 else vW2M if rt < 4 else vL16
        off = {0: 0, 1: 1024, 2: 0, 3: 1024, 4: 2048}[rt]
        g = [f"buffer_load_dwordx4 {ar(4*n,4)}, v{v}, {sr(RWS)}, s{sW2A if rt < 4 else sW2B} offen offset:{off} sc1"]
        if rt == 4:
            g += [f"s_add_u32 s{sW2A}, s{sW2A}, 5120", f"s_add_u32 s{sW2B}, s{sW2B}, 5120"]
        return g

    G = lambda *x: ["; @use:none"] + list(x)
    su = Lst()
    u0, u1, u2, u3, u4, u5, u6, u7 = (TMP + 2 + k for k in range(8))
    su(f"s_and_b32 s73, s{sJ}, 7")
    su("s_lshl_b32 s73, s73, 6")
    su(f"s_add_u32 s{sFW2P}, s73, {FW2:#x}")
    su(f"v_min_u32 v{vPL0}, 11, v{vLANE}")
    su(f"s_mul_i32 s73, s{sW}, 12")
    su(f"v_add_u32 v{vPL0}, s73, v{vPL0}")
    su(f"v_lshlrev_b32 v{vPL0}, 9, v{vPL0}")
    su(f"v_lshrrev_b32 v{u0}, 4, v{vLANE}     ; g")
    su(f"v_bfe_u32 v{u1}, v{vLANE}, 2, 2      ; rr")
    su(f"v_and_b32 v{u2}, 3, v{vLANE}         ; cc")
    su(f"s_lshr_b32 s72, s{sJ}, 3")
    su("s_lshl_b32 s72, s72, 1")
    su(f"s_lshr_b32 s73, s{sW}, 1")
    su("s_add_u32 s72, s72, s73")
    su(f"s_and_b32 s73, s{sJ}, 7")
    su("s_lshl_b32 s73, s73, 4              ; 16*db")
    su(f"s_and_b32 s74, s{sW}, 1")
    su("s_lshl_b32 s74, s74, 5")
    for sg in range(3):
        if sg < 2:
            su(f"v_lshl_add_u32 v{u3}, v{u0}, 3, v{u1}")
            su(f"v_add3_u32 v{u3}, v{u3}, s74, {4*sg}")
        else:
            su(f"v_lshl_add_u32 v{u3}, v{u0}, 2, v{u1}")
            su(f"v_add_u32 v{u3}, 64, v{u3}")
        su(f"v_mul_u32_u24 v{u4}, 205, v{u3}")
        su(f"v_lshrrev_b32 v{u4}, 10, v{u4}       ; dl/5")
        su(f"v_mul_u32_u24 v{u5}, 5, v{u4}")
        su(f"v_sub_u32 v{u5}, v{u3}, v{u5}         ; r5")
        su(f"v_add_u32 v{u4}, s73, v{u4}          ; P")
        su(f"v_cmp_lt_u32 s[76:77], 2, v{u5}")
        su(f"v_cmp_eq_u32 s[78:79], 2, v{u5}")
        su(f"v_subrev_u32 v{u7}, 3, v{u5}")
        su(f"v_cndmask_b32 v{u7}, v{u5}, v{u7}, s[76:77]")
        su(f"v_cndmask_b32 v{u6}, 0, 1, s[76:77]")
        su(f"v_lshl_add_u32 v{u6}, v{u4}, 1, v{u6}")
        su(f"v_lshl_add_u32 v{u6}, v{u7}, 8, v{u6}")
        su(f"v_add_u32 v{u6}, 128, v{u6}")
        su(f"v_cndmask_b32 v{u6}, v{u6}, v{u4}, s[78:79]   ; kappa")
        su(f"v_bfe_u32 v{u4}, v{u6}, 1, 1")
        su(f"v_bfe_u32 v{u5}, v{u6}, 3, 1")
        su(f"v_lshl_add_u32 v{u4}, v{u5}, 1, v{u4}")
        su(f"v_xor_b32 v{u4}, s72, v{u4}")
        su(f"v_lshlrev_b32 v{u6}, 7, v{u6}")
        su(f"v_lshl_add_u32 v{u6}, v{u4}, 5, v{u6}")
        su(f"v_lshl_add_u32 v{vRES+sg}, v{u2}, 3, v{u6}")
    su(f"v_and_b32 v{u3}, 15, v{vLANE}        ; n")
    su(f"v_lshlrev_b32 v{u4}, 2, v{u3}")
    su(f"s_lshl_b32 s73, s{sW}, 7")
    su(f"s_add_u32 s73, s73, {MS}")
    su(f"v_add_u32 v{vMW}, s73, v{u4}")
    su("s_lshl_b32 s73, s72, 7")
    su(f"s_add_u32 s73, s73, {MS}")
    su(f"v_add_u32 v{vSC}, s73, v{u4}")
    su(f"v_cmp_eq_u32 s[76:77], v{u0}, v{u1}")
    su(f"v_add_u32 v{u5}, 64, v{vMW}")
    su(f"v_mov_b32 v{u6}, {MS+1024}")
    su(f"v_cndmask_b32 v{vGW}, v{u6}, v{u5}, s[76:77]")
    su("s_mov_b32 s66, 0xaaaaaaaa")
    su("s_mov_b32 s67, 0xaaaaaaaa")
    su("s_mov_b32 s68, 0xcccccccc")
    su("s_mov_b32 s69, 0xcccccccc")
    su(f"s_lshl_b32 s73, s{sTB}, 3")
    su("s_add_u32 s73, s73, s72")
    su(f"s_mul_i32 s{sOUTO}, s73, {16*1280}")
    su(f"s_and_b32 s73, s{sJ}, 7")
    su("s_mul_i32 s73, s73, 160")
    su(f"s_add_u32 s{sOUTO}, s{sOUTO}, s73")
    su(f"v_mul_u32_u24 v{u3}, 1280, v{u3}")
    su("s_lshl_b32 s73, s74, 1              ; 64*(w&1)")
    su(f"v_lshl_add_u32 v{u4}, v{u0}, 4, v{u3}")
    su(f"v_add_u32 v{vO4}, s73, v{u4}")
    su(f"s_and_b32 s73, s{sW}, 1")
    su(f"s_mul_i32 s73, s73, {BIG:#x}")
    su("s_add_u32 s73, s73, 128")
    su(f"v_lshl_add_u32 v{u4}, v{u0}, 3, v{u3}")
    su(f"v_add_u32 v{vO2}, s73, v{u4}")
    su(f"v_and_b32 v{u3}, 15, v{vLANE}")
    su(f"v_mul_u32_u24 v{u3}, 208, v{u3}")
    su(f"s_mul_i32 s73, s{sW}, 3328")
    su(f"v_lshl_add_u32 v{u4}, v{u0}, 4, v{u3}")
    su(f"v_add_u32 v{vSR}, s73, v{u4}")
    su(f"s_mul_i32 s76, s{sW}, 48")
    su(f"v_add_u32 v{u3}, s76, v{u3}")
    su(f"v_lshl_add_u32 v{u4}, v{u0}, 3, v{u3}")
    for ct in range(4):
        su(f"s_xor_b32 s73, s{sW}, {ct}")
        su("s_mul_i32 s73, s73, 3328")
        su(f"v_add_u32 v{vSW+ct}, s73, v{u4}")
    su(f"v_and_b32 v{u4}, 1, v{u0}")
    su(f"v_lshl_add_u32 v{u3}, v{u4}, 3, v{u3}")
    su(f"v_lshrrev_b32 v{u4}, 5, v{vLANE}")
    su(f"v_xor_b32 v{u4}, s{sW}, v{u4}")
    su(f"v_mul_u32_u24 v{u5}, 3328, v{u4}")
    su(f"v_add3_u32 v{vSW+4}, v{u5}, v{u3}, 32")
    su(f"v_xor_b32 v{u4}, 2, v{u4}")
    su(f"v_mul_u32_u24 v{u5}, 3328, v{u4}")
    su(f"v_add3_u32 v{vSW+5}, v{u5}, v{u3}, 32")
    su(f"s_lshl_b32 s73, s{sTB}, 3")
    su(f"s_add_u32 s73, s73, s{sW}")
    su("s_mul_i32 s73, s73, 49152")
    su(f"s_mul_i32 s74, s{sJ}, 3072")
    su("s_add_u32 s73, s73, s74")
    su(f"s_add_u32 s{sHMA}, s73, {HM:#x}")
    su(f"s_add_u32 s{sHMB}, s73, {HM + 4*49152:#x}")
    su(f"s_lshl_b32 s73, s{sTB}, 4")
    su(f"s_add_u32 s73, s73, s{sJ}")
    su("s_lshl_b32 s73, s73, 2")
    su(f"s_add_u32 s73, s73, s{sW}")
    su("s_lshl_b32 s73, s73, 6")
    su(f"s_add_u32 s{sFMA}, s73, {FM:#x}")
    su(f"s_add_u32 s{sFMB}, s73, {FM + 65536:#x}")
    su(f"s_and_b32 s73, s{sJ}, 7")
    su("s_mul_i32 s74, s73, 245760")
    su(f"s_mul_i32 s73, s{sW}, 61440")
    su("s_add_u32 s74, s74, s73")
    su(f"s_add_u32 s{sW2A}, s74, {W2P:#x}")
    su(f"s_add_u32 s{sW2B}, s74, {W2P + 2048:#x}")
    su(f"s_and_b32 s73, s{sW}, 1")
    su("s_lshl_b32 s73, s73, 11")
    su(f"v_add_u32 v{vW2P}, s73, v{vL16}")
    su(f"v_xor_b32 v{vW2M}, 0x800, v{vW2P}")
    suA = list(su)
    su = Lst()
    su(f"s_lshr_b32 s72, s{sJ}, 3            ; gamma")
    su(f"v_bfe_u32 v{u0}, v{vLANE}, 1, 2")
    su(f"s_lshl_b32 s73, s{sW}, 2")
    su(f"v_add_u32 v{u0}, s73, v{u0}")
    su(f"v_lshlrev_b32 v{u0}, 2, v{u0}")
    su(f"v_and_b32 v{u1}, 1, v{vLANE}")
    su("s_lshl_b32 s73, s72, 1")
    su(f"v_add3_u32 v{u0}, v{u0}, v{u1}, s73    ; 4j+wave")
    su(f"v_lshlrev_b32 v{vPM}, 6, v{u0}")
    su(f"s_lshl_b32 s{sFMP}, s{sTB}, 12")
    su(f"s_add_u32 s{sFMP}, s{sFMP}, {FM:#x}")
    su(f"s_lshr_b32 s73, s{sW}, 1")
    su("s_mul_i32 s74, s73, 49152")
    su(f"v_add_u32 v{vHM}, s74, v{vL16}")
    su("s_xor_b32 s73, s73, 1")
    su("s_mul_i32 s74, s73, 49152")
    su(f"v_add_u32 v{vHM+1}, s74, v{vL16}")
    su(f"s_lshl_b32 s73, s{sTB}, 2")
    su("s_add_u32 s73, s73, s72")
    su("s_mul_i32 s73, s73, 98304")
    su(f"s_mul_i32 s74, s{sW}, 12288")
    su("s_add_u32 s73, s73, s74")
    su(f"s_add_u32 s{sHML}, s73, {HM:#x}")
    for rel in range(1, 4):
        su(f"s_xor_b32 s73, s{sW}, {rel}")
        su("s_mul_i32 s73, s73, 6144")
        su(f"s_add_u32 s73, s73, {RB + (rel-1)*2048}")
        su(f"v_add_u32 v{vQ+rel-1}, s73, v{vL16}")
    su(f"s_lshr_b32 s73, s{sW}, 1")
    su("s_lshl_b32 s73, s73, 12")
    su(f"s_add_u32 s73, s73, {RB + 24576}")
    su(f"v_add_u32 v{vQ+6}, s73, v{vL16}")
    su(f"v_add_u32 v{vQ+3}, s{sM0}, v{vQ+6}")
    su(f"v_xor_b32 v{vQ+4}, 0x1000, v{vQ+3}")
    su(f"s_mul_i32 s73, s{sW}, 6144")
    su(f"s_add_u32 s73, s73, {RB}")
    su(f"v_add_u32 v{vQ+5}, s73, v{vL16}")
    HX = [160, 132]
    suB = list(su)

    def flat(lst):
        o = []
        for g in lst:
            if isinstance(g, list) and not any("@use" in t for t in g):
                o += g
            else:
                o.append(g)
        return o

    def step(main, rd, extra, vm=(), width=2):
        rd = list(rd)
        extra = flat(extra)
        vm = list(vm)
        pos = {}
        for k, g in enumerate(vm):
            pos.setdefault(1 + (k * (len(main) - 1)) // len(vm), []).extend(g)
        carry = []
        for i, m in enumerate(main):
            a(m)
            slots = width if i + 1 < len(main) else width - 1
            if i in pos:
                carry += pos[i]
            if rd:
                a(rd.pop(0))
                slots -= 1
            while slots and carry:
                a(carry.pop(0))
                slots -= 1
            while slots and extra:
                emit(a, [extra.pop(0)])
                slots -= 1
        emit(a, rd)
        emit(a, carry)
        return extra

    sync(["d0_3"])
    stamp(a, "acts")
    emit(a, reads(0, 0))
    poll(a, vPL1, sPH1, TMP, pre_issued=True)
    stamp(a, "pollH1")
    Dm = lambda h, lo, hi: [dma(h, k) for k in range(lo, hi)]
    pl2 = [f"buffer_load_dword v{vPD}, v{vPL1}, {sr(RWS)}, s{sPH2} offen sc1"]
    plw = [f"buffer_load_dword v{vPD}, v{vPL0}, {sr(RWS)}, s{sFW2P} offen sc1"]
    fw2flag = ["; @use:w2st", f"buffer_store_dword v{vTAGV}, v{vFLAG}, {sr(RWS)}, s{sFW2O} offen sc1"]
    plan = {0: Dm(0, 4, 8), 1: wd(4)[:5], 2: wd(4)[5:] + Dm(0, 8, 10) + wd(5)[:2], 3: Dm(0, 10, 12) + wd(5)[2:4], 4: wd(5)[4:] + [pl2],
            5: wd(6)[:4], 6: wd(6)[4:] + Dm(0, 12, 14), 7: Dm(0, 14, 16) + wd(7)[:2], 8: wd(7)[2:],
            9: Dm(0, 16, 18) + wd(8)[:2], 10: wd(8)[2:], 11: Dm(0, 18, 20) + wd(9)[:2], 12: wd(9)[2:],
            13: Dm(1, 0, 2) + Dm(1, 14, 15), 14: Dm(1, 15, 18), 15: Dm(1, 8, 11), 16: Dm(1, 11, 14) + [plw], 17: Dm(1, 2, 5), 18: Dm(1, 5, 8), 19: Dm(1, 18, 20)}
    syncs = {3: (["wd3", "d0_7"], 3), 5: (["wr7", "wd4"], 4), 7: (["wr9", "wd5", "d0_11"], 5), 9: (["wr11", "wd6"], 6),
             11: (["wr13", "wd7", "d0_15"], 7), 13: (["wr15", "wd8"], 8), 15: (["wr17", "wd9", "d0_19"], 9), 17: (["wr19", "d1_1"], None)}
    q = suA
    for s in range(20):
        if s == 6:
            poll(a, vPL1, sPH2, vPD, pre_issued=True)
            stamp(a, "pollH2")
        if s in syncs:
            sync(syncs[s][0])
            if syncs[s][1]:
                q = wr(syncs[s][1]) + q
        stamp(a, f"a{s}")
        a(f"; @use:bf{s} @use:wr{s}")
        main = mf(0, s) + (cs(s) if s >= 6 else [])
        if s == 19:
            assert not q
            poll(a, vPL0, sFW2P, vPD, pre_issued=True)
            q = 3 * ["s_nop 0"] + stat_calc()
        q = step(main, reads(0, s + 1) if s < 19 else res_reads(0) + reads(1, 0), q, plan[s], width=3 if s < 8 else 2)
        if not q and s < 19 and suA:
            print("pass A set-up done in step", s)
            suA = None
    emit(a, q)
    stamp(a, "passA")
    sync(["res0"])
    emit(a, stat_write(0))
    q = ["s_nop 0", ["; @use:mw0 @use:d1_4", "s_barrier"]] + stat_reads(0) + epi1(0, True) + epi2(0) + suB
    for s in range(20):
        if s == 3:
            sync(["d1_19"])
        stamp(a, f"b{s}")
        a(f"; @use:bf{20+s}")
        vm = []
        while len(vm) < (3 if s & 1 else 2) and w2n[0] < 3 * s:
            vm.append(w2_load())
        if s == 13:
            vm.append(mflag(0))
        if s == 17:
            vm.append([f"buffer_load_dword v{vPD}, v{vPM}, {sr(RWS)}, s{sFMP} offen sc1"])
        if s == 19:
            assert not q
            q = 6 * ["s_nop 0"] + stat_calc() + stat_write(1)
        had = len(q)
        q = step(mf(1, s), reads(1, s + 1) if s < 19 else res_reads(1), q, vm)
        if had > len(suB) >= len(q):
            print("epilogue A done in step", s)
    assert not q
    stamp(a, "passB")
    sync(["mw1"])
    emit(a, stat_reads(1))
    HF = 0

    def hm_loads(h, order):
        o = []
        for ks, c in order:
            o.append([f"s_add_u32 s75, s{sHML}, {4*49152*h + 4096*(ks>>2)}",
                      f"buffer_load_dwordx4 {vr(HF+8*ks+4*c,4)}, v{vHM+c}, {sr(RWS)}, s75 offen offset:{1024*(ks&3)} sc1"])
        return o

    ksmaj = [(ks, c) for ks in range(12) for c in range(2)]
    cmaj = [(ks, c) for c in (1, 0) for ks in range(12)]
    wl = []
    while w2n[0] < 60:
        wl.append(w2_load())
    print("W2 loads left after pass B:", len(wl))
    poll(a, vPM, sFMP, vPD, pre_issued=True)
    stamp(a, "pollMA")
    hl = hm_loads(0, ksmaj)
    rest = interleave(a, epi1(1, False), hl[:12], start=2, every=6)
    assert not rest
    hl = hl[12:]
    emit(a, epi2(1))
    stamp(a, "epiB")
    AC = 188
    RDR = 96
    rdr = [96 + 4 * k for k in range(8)] + [148, 152]

    def g2_pass(h, order, loads, pre, extra):
        emit(a, loads[:pre])
        loads = loads[pre:]
        fill = Lst()
        den_from(fill, SVH[h], SVH[h] + 1, 146)
        for k in range(6):
            fill(f"v_lshlrev_b32 v{HX[h]+2*k}, 16, v{HRES[h]+k}")
            fill(f"v_and_b32 v{HX[h]+2*k+1}, 0xffff0000, v{HRES[h]+k}")
        ro = 32768 * h
        wr1 = [(vQ + 1, 20, 0), (vQ + 1, 24, 1024), (vQ + 2, 28, 0), (vQ + 2, 32, 1024), (vQ + 4, 36, 0)]
        wr0 = [(vQ, 8, 0), (vQ, 12, 1024), (vQ + 3, 16, 0)]
        wf = lambda l: [f"ds_write_b128 v{va_}, {vr(AC+r,4)} offset:{ro+off}" for va_, r, off in l]
        n = 0
        for i, (ks, c) in enumerate(order):
            for r in range(5):
                acc = vr(AC + 20 * c + 4 * r, 4)
                for g in loads:
                    for t in g:
                        assert not t.startswith(f"buffer_load_dwordx4 {ar(20*ks+4*r,4)},") and not t.startswith(f"buffer_load_dwordx4 {vr(HF+8*ks+4*c,4)},"), t
                a(f"v_mfma_f32_16x16x32_bf16 {acc}, {ar(20*ks+4*r,4)}, {vr(HF+8*ks+4*c,4)}, {'0' if ks == 0 else acc}")
                n += 1
                if n in extra:
                    emit(a, [extra[n]])
                elif loads and n % 3 == 0:
                    emit(a, [loads.pop(0)])
                elif fill:
                    a(fill.pop(0))
                elif order is cmaj and n > 70 and n % 5 == 0 and wr1:
                    emit(a, wf([wr1.pop(0)]))
        assert not loads and not fill
        emit(a, wf(wr1 + wr0))

    def g2_fin(h):
        ro = 32768 * h
        a("s_waitcnt lgkmcnt(0)")
        a("s_barrier")
        for k in range(6):
            a(f"ds_read_b128 {vr(rdr[k],4)}, v{vQ+5} offset:{ro+1024*k}")
        for k in range(4):
            a(f"ds_read_b128 {vr(rdr[6+k],4)}, v{vQ+6} offset:{ro+1024*k}")
        for k in range(6):
            for e in (0, 2):
                a(f"v_pk_add_f32 {vr(AC+4*(k&1)+e,2)}, {vr(AC+4*(k&1)+e,2)}, {vr(rdr[k]+e,2)}")
        for e in (0, 2):
            a(f"v_pk_add_f32 {vr(rdr[6]+e,2)}, {vr(rdr[6]+e,2)}, {vr(rdr[7]+e,2)}")
            a(f"v_pk_add_f32 {vr(rdr[8]+e,2)}, {vr(rdr[8]+e,2)}, {vr(rdr[9]+e,2)}")
        for e in (0, 2):
            a(f"v_pk_add_f32 {vr(AC+8+e,2)}, {vr(rdr[6]+e,2)}, {vr(rdr[8]+e,2)}")
        for k in range(6):
            a(f"v_pk_fma_f32 {vr(AC+2*k,2)}, {vr(AC+2*k,2)}, {vr(SVH[h],2)}, {vr(HX[h]+2*k,2)} op_sel:[0,1,0] op_sel_hi:[1,1,1]")
        for k in range(6):
            a(f"v_cvt_pk_bf16_f32 v{96+k}, v{AC+2*k}, v{AC+2*k+1}")
        a(f"buffer_store_dwordx4 v[96:99], v{vO4}, {sr(ROUT)}, s{sOUTO} offen")
        a(f"buffer_store_dwordx2 v[100:101], v{vO2}, {sr(ROUT)}, s{sOUTO} offen")
        if h == 0:
            a(f"s_add_u32 s{sOUTO}, s{sOUTO}, {64*1280}")

    mix = []
    for k in range(max(len(hl), len(wl))):
        if k < len(hl):
            mix.append(hl[k])
        if k < len(wl):
            mix.append(wl[k])
    print("g2A loads", len(mix))
    g2_pass(0, ksmaj, mix, 2, {55: mflag(1), 110: [f"s_add_u32 s{sFMP}, s{sFMP}, 65536",
                                                  f"buffer_load_dword v{vPD}, v{vPM}, {sr(RWS)}, s{sFMP} offen sc1"]})
    stamp(a, "g2A")
    poll(a, vPM, sFMP, vPD, pre_issued=True)
    stamp(a, "pollMB")
    hl = hm_loads(1, cmaj)
    emit(a, hl[:12])
    g2_fin(0)
    stamp(a, "finA")
    g2_pass(1, cmaj, hl[12:], 0, {})
    stamp(a, "g2B")
    g2_fin(1)
    a("s_cmp_eq_u32 s2, 0")
    a("s_cbranch_scc0 NOGEN")
    a(f"s_cmp_eq_u32 s{sW}, 0")
    a("s_cbranch_scc0 NOGEN")
    a(f"buffer_store_dword v{vTAGV}, v{vFLAG}, {sr(RWS)}, 0 offen sc1")
    a.label("NOGEN")
    if PROF:
        a("s_waitcnt vmcnt(0)")
        a("s_memtime s[100:101]")
        a("s_memrealtime s[76:77]")
        a("s_waitcnt lgkmcnt(0)")
        if os.environ.get("SPINX"):
            src = 100 if os.environ["SPINX"] == "total" else 84
            a(f"s_sub_u32 s72, s{src}, s82")
            a.label("SPINL")
            a("s_memtime s[74:75]")
            a("s_waitcnt lgkmcnt(0)")
            a("s_sub_u32 s73, s74, s100")
            a("s_cmp_lt_u32 s73, s72")
            a("s_cbranch_scc1 SPINL")
            a("s_endpgm")
        a("v_mov_b32 v1, 0")
        for k in range(11):
            a(f"v_writelane_b32 v1, s{80+2*k}, {k}")
        a("v_writelane_b32 v1, s76, 11")
        if os.environ.get("PROFDBG"):
            a("s_load_dwordx2 s[44:45], s[0:1], 112")
            a("s_waitcnt lgkmcnt(0)")
            a("s_mov_b32 s46, 256")
            a("s_mov_b32 s47, 0x20000")
            a("v_mov_b32 v3, 0")
            a("v_mov_b32 v4, 0")
            for k in range(9):
                a(f"s_sub_u32 s72, s{84+2*k}, s82")
                a("s_lshr_b32 s72, s72, 2")
                a(f"v_writelane_b32 v3, s72, {k}")
            a("s_sub_u32 s72, s100, s82")
            a("v_writelane_b32 v4, s72, 9")
            a("v_writelane_b32 v4, s76, 10")
            a("s_not_b32 s72, s80")
            a("v_writelane_b32 v4, s72, 11")
            for k in range(4):
                a(f"s_sub_u32 s72, s{84+4*k}, s82")
                a(f"v_writelane_b32 v4, s72, {12+k}")
            a(f"v_lshlrev_b32 v2, 2, v{vLANE}")
            a("s_mov_b64 exec, 0x1ff")
            a("buffer_atomic_add v3, v2, s[44:47], 0 offen")
            a("s_mov_b64 exec, 0xfe00")
            a("buffer_atomic_umax v4, v2, s[44:47], 0 offen")
            a("s_mov_b64 exec, -1")
        a(f"s_add_u32 s40, s{sWS}, {PROFBASE:#x}")
        a(f"s_addc_u32 s41, s{sWS+1}, 0")
        a("s_mov_b32 s42, 0x40000")
        a(f"v_lshlrev_b32 v2, 2, v{vLANE}")
        a("s_lshl_b32 s72, s2, 2")
        a(f"s_add_u32 s72, s72, s{sW}")
        a("s_lshl_b32 s72, s72, 7")
        a("s_mov_b64 exec, 0xffffffff")
        a("buffer_store_dword v1, v2, s[40:43], s72 offen")
    a.label("END")
    a("s_endpgm")
    return a


def main(path):
    ref = open(f"cdna_kernels/{NAME}.s.ref").read().split("\n")
    head = [l for l in ref if l.startswith(";") and "@launch" not in l]
    out = head[:]
    out.append("; @launch grid=(256,1,1) block=(256,1,1) lds=163840")
    out.append('.amdgcn_target "amdgcn-amd-amdhsa--gfx950"')
    out.append(".text")
    a = gen()
    for i in a.ins:
        if "CODE_LIM" in i.text:
            i.text = i.text.replace("CODE_LIM", "0x1230")
    b, d, e = kernel_text(NAME + "_kernel", a, auto=True, align=True)
    size = sum(getattr(i, "size", 0) for i in a.ins)
    lim = (size - 256) & ~15
    b = b.replace("v_min_u32 v2, 0x1230, v2", f"v_min_u32 v2, {lim:#x}, v2")
    out.append(b)
    out.append('.section .rodata,"a"')
    out.append(d)
    open(path, "w").write("\n".join(out))


if __name__ == "__main__":
    main(sys.argv[1] if len(sys.argv) > 1 else f"cdna_kernels/{NAME}.s")
```

```python
import os
import sys
import struct
from asmgen import Asm, kernel_text

NAME = "sequential_preLN__ssm_conv_s4__glu_gated_reglu__prompt"
L, D, N, F = 2048, 640, 192, 1536
PROF = bool(os.environ.get("PROF", ""))
PROFBASE = 0x2000000

FW2 = 0x1000
GEN, FW, FH, FM, S1, ST2 = 0x0, 0x70000, 0x10000, 0x40000, 0x60000, 0x80000
CSP = 0xC0000
XR, HT, W1P, W2P, HM, WS_END = 0x100000, 0x500000, 0x800000, 0xC00000, 0xE00000, 0x1400000
SZ_X = D * L * 2
SZ_W = D * F * 2
TAB, TABS = 0, 2816
STG, STGS = 25600, 15232
XQ = 88832
WTS = 114688
R0B, R1B = 0, 24320
BSB = 25600
CHB, CHS = 57344, 18944
RT = [139264, 114688, 90112]
C_U0, C_U2, C_KO, C_KE = 0, 5152, 10304, 14528
R2B = CHB
HALF = 81920
SPIN = 200000

sWG, sW = 2, 3
sX, sPAR, sLDT, sDSK, sWGP, sWUP, sWDP, sOUT, sWS = 4, 6, 18, 20, 24, 26, 28, 30, 34
RWS, RX, RW, RWD, ROUT = 36, 40, 44, 48, 52
sTAG = 56
sP, sE, sCH0, sCH1 = 57, 58, 59, 60
sTB, sJ = 61, 62
sLO, sHI, sONE = 63, 64, 65
sD0 = 22
DSEL = [(22, 23), (66, 67), (68, 69)]
sT = 70
vLANE, vL16, vFLAG, vTAGV, vW1 = 240, 241, 242, 243, 244
BIG = 0x7FFFFFF0


def f2u(x):
    return struct.unpack("<I", struct.pack("<f", x))[0]


def vr(b, n):
    return f"v[{b}:{b+n-1}]"


def ar(b, n):
    return f"a[{b}:{b+n-1}]"


def sr(b, n=4):
    return f"s[{b}:{b+n-1}]"


class Lst(list):
    def __call__(self, t):
        self.append(t)


PSEL = [x for x in os.environ.get("PROF", "").split(",") if x]
assert len(PSEL) <= 8


def stamp(a, name):
    if name in PSEL:
        k = PSEL.index(name)
        a(f"s_memtime s[{84+2*k}:{85+2*k}] ; stamp")


def srd(a, s, base, size):
    a(f"s_mov_b32 s{s}, s{base}")
    a(f"s_mov_b32 s{s+1}, s{base+1}")
    a(f"s_mov_b32 s{s+2}, {size:#x}")
    a(f"s_mov_b32 s{s+3}, 0x20000")


def interleave(a, main, fill, start=0, per=1, every=1):
    k = 0
    for i, m in enumerate(main):
        for t in (m if isinstance(m, list) else [m]):
            a(t)
        if i >= start and (i - start) % every == 0:
            for _ in range(per):
                if k < len(fill):
                    g = fill[k]
                    for t in (g if isinstance(g, list) else [g]):
                        a(t)
                    k += 1
    return fill[k:]


def emit(a, lst):
    for g in lst:
        for t in (g if isinstance(g, list) else [g]):
            a(t)


def ln_den(a, vs, vq, t0):
    inv = f2u(1.0 / D)
    a(f"v_mul_f32 v{vs}, {inv:#x}, v{vs}")
    a(f"v_mul_f32 v{vq}, {inv:#x}, v{vq}")
    a(f"v_fma_f32 v{vq}, -v{vs}, v{vs}, v{vq}")
    a(f"v_max_f32 v{vq}, 0, v{vq}")
    a(f"v_cvt_pk_bf16_f32 v{t0}, v{vq}, v{vq}")
    a(f"v_lshlrev_b32 v{vq}, 16, v{t0}")
    a(f"v_add_f32 v{vq}, {f2u(1e-5):#x}, v{vq}")
    a(f"v_cvt_pk_bf16_f32 v{t0}, v{vq}, v{vq}")
    a(f"v_lshlrev_b32 v{vq}, 16, v{t0}")
    a(f"v_sqrt_f32 v{vq}, v{vq}")
    a(f"v_cvt_pk_bf16_f32 v{t0}, v{vq}, v{vq}")
    a(f"v_lshlrev_b32 v{vq}, 16, v{t0}")
    a(f"v_rcp_f32 v{vq}, v{vq}")


def den_from(a, vm, vq, t0):
    a(f"v_mul_f32 v{vq}, {f2u(1.0 / D):#x}, v{vq}")
    a(f"v_fma_f32 v{vq}, -v{vm}, v{vm}, v{vq}")
    a(f"v_max_f32 v{vq}, 0, v{vq}")
    a(f"v_cvt_pk_bf16_f32 v{t0}, v{vq}, v{vq}")
    a(f"v_lshlrev_b32 v{vq}, 16, v{t0}")
    a(f"v_add_f32 v{vq}, {f2u(1e-5):#x}, v{vq}")
    a(f"v_cvt_pk_bf16_f32 v{t0}, v{vq}, v{vq}")
    a(f"v_lshlrev_b32 v{vq}, 16, v{t0}")
    a(f"v_sqrt_f32 v{vq}, v{vq}")
    a(f"v_cvt_pk_bf16_f32 v{t0}, v{vq}, v{vq}")
    a(f"v_lshlrev_b32 v{vq}, 16, v{t0}")
    a(f"v_rcp_f32 v{vq}, v{vq}")
    a(f"v_mul_f32 v{vq}, v{vq}, v{vq}")


def cmuls(a, lst):
    for d, x, y in lst:
        assert d not in (x, y)
        a(f"v_pk_mul_f32 {vr(d,2)}, {vr(x,2)}, {vr(y,2)} op_sel:[0,0] op_sel_hi:[0,1]")
    for d, x, y in lst:
        a(f"v_pk_fma_f32 {vr(d,2)}, {vr(x,2)}, {vr(y,2)}, {vr(d,2)} op_sel:[1,1,0] op_sel_hi:[1,0,1] neg_lo:[1,0,0]")


_pollid = [0]


def poll(a, vaddr, soff, vdst, pre_issued=False):
    n = _pollid[0]
    _pollid[0] += 1
    a(f"s_mov_b32 s{sT}, 0")
    if pre_issued:
        a(f"v_cmp_ne_u32 vcc, s{sTAG}, v{vdst}")
        a(f"s_cbranch_vccz POLLD{n}")
    a.label(f"POLL{n}")
    a(f"buffer_load_dword v{vdst}, v{vaddr}, {sr(RWS)}, s{soff} offen sc1")
    a(f"s_add_u32 s{sT}, s{sT}, 1")
    a(f"s_cmp_gt_u32 s{sT}, {SPIN}")
    a("s_waitcnt vmcnt(0)")
    a(f"s_cbranch_scc1 POLLD{n}")
    a(f"v_cmp_ne_u32 vcc, s{sTAG}, v{vdst}")
    a(f"s_cbranch_vccnz POLL{n}")
    a.label(f"POLLD{n}")


def flag_store(a, soff):
    a(f"buffer_store_dword v{vTAGV}, v{vFLAG}, {sr(RWS)}, s{soff} offen sc1")


W1EV = int(os.environ.get("W1EV", "5"))
NW1C = int(os.environ.get("NW1C", "48"))
W1AT = int(os.environ.get("W1AT", "0"))
NW1A = int(os.environ.get("NW1A", "6"))
NW1B = int(os.environ.get("NW1B", "9"))


sW1D, sW1STEP, sW1ST, sCSST, sFWO, sFHO, sH0, sH1, sH2 = 4, 5, 6, 7, 8, 9, 10, 11, 12
sW1L, sCSL, sPH0, sPH1, sPH2, sACT, sM0, sXR, sWT = 13, 14, 15, 16, 17, 18, 19, 20, 21
sHMA, sHMB, sFMA, sFMB, sW2R, sW2ST, sFW2O, sFW2P, sW2A, sW2B = 24, 25, 26, 27, 28, 29, 30, 31, 32, 33
sFWP = 71
vH, vA, vB, vB0, vRW1, vRW0, vRW2 = 1, 2, 3, 4, 5, 6, 7
vRR0, vRR1, vRQ0, vRQ1 = 12, 13, 14, 15
vRZ0, vRZ1, vH0, vPU, vPB, vOB = 244, 245, 246, 247, 248, 249
vPD = 255
vWA, vWB, vT0 = 230, 233, 251
sWJ, sM3 = 13, 14
vW2V, vW2R0, vW2R1 = 236, 237, 238


def gen():
    a = Asm()
    a("s_cmp_ge_u32 s2, 256")
    a("s_cbranch_scc1 END")
    if PROF:
        a("s_memrealtime s[80:81] ; stamp")
        a("s_memtime s[82:83] ; stamp")
    a("s_load_dwordx16 s[4:19], s[0:1], 0")
    a("s_load_dwordx16 s[20:35], s[0:1], 64")
    a("v_lshrrev_b32 v1, 6, v0")
    a(f"v_and_b32 v{vLANE}, 63, v0")
    a(f"v_readfirstlane_b32 s{sW}, v1")
    a(f"v_lshlrev_b32 v{vL16}, 4, v{vLANE}")
    a("s_getpc_b64 s[70:71]")
    a("s_lshr_b32 s72, s2, 3")
    a("s_lshl_b32 s72, s72, 12")
    a(f"v_lshlrev_b32 v{vH}, 4, v0           ; 16*tid")
    a(f"v_add_u32 v2, s72, v{vH}")
    a("v_min_u32 v2, CODE_LIM, v2")
    a("global_load_dwordx4 v[196:199], v2, s[70:71]")
    a(f"s_lshr_b32 s{sP}, s2, 1")
    a(f"s_and_b32 s{sE}, s2, 1")
    a(f"s_mul_i32 s{sCH0}, s{sP}, 5")
    a(f"s_mul_i32 s{sCH1}, s{sE}, 3")
    a(f"s_add_u32 s{sCH1}, s{sCH1}, s{sCH0}")
    a(f"s_add_u32 s{sCH0}, s{sCH0}, 2")
    a(f"s_and_b32 s{sTB}, s2, 1")
    a(f"s_lshl_b32 s{sTB}, s{sTB}, 3")
    a("s_bfe_u32 s72, s2, 0x30003")
    a(f"s_add_u32 s{sTB}, s{sTB}, s72")
    a(f"s_bfe_u32 s{sJ}, s2, 0x20001")
    a(f"s_lshl_b32 s{sJ}, s{sJ}, 2")
    a("s_lshr_b32 s72, s2, 6")
    a(f"s_add_u32 s{sJ}, s{sJ}, s72")
    a(f"s_mov_b32 s{sONE}, 0x3f803f80")
    a(f"v_cmp_eq_u32 vcc, 0, v{vLANE}")
    a(f"v_mov_b32 v{vFLAG}, {BIG:#x}")
    a(f"v_cndmask_b32 v{vFLAG}, v{vFLAG}, 0, vcc")
    PB = 200
    TH = [0, 0, 1, 2, 0, 1, 2, 0, 1, 2]

    def wd(g):
        o = []
        for s in (2 * g, 2 * g + 1):
            drow = 160 * s if s < 4 else 80 * ((s - 4) & 7) + (1 if s >= 12 else 0)
            for n in range(3):
                x = [f"s_add_u32 s71, s{sWJ}, {drow*3072}"] if n == 0 else []
                x += [f"s_add_u32 m0, s{sM3}, {RT[TH[g]]+12288*(s&1)+1024*n}"]
                if n:
                    x += ["s_nop 0"] if False else []
                x += [f"buffer_load_dwordx4 v{(vWA if s < 4 else vWB)+n}, {sr(RW)}, s71 offen lds ; @def:wd{g}"]
                o.append(x)
        return o

    def wr(g):
        o = []
        for s in (2 * g, 2 * g + 1):
            for r in range(3):
                for hh in range(2):
                    tok = f" ; @def:wr{s}" if r == 2 and hh == 1 else ""
                    o.append(f"ds_read_b64_tr_b16 {ar(12*s+4*r+2*hh,2)}, v{vT0+r} offset:{RT[TH[g]]-RT[2]+12288*(s&1)+768*hh}{tok}")
        return o

    for it in range(3):
        a(f"s_add_u32 s75, s{sW}, {4*it}      ; unit")
        a("s_mul_i32 s76, s75, 11")
        a("s_lshr_b32 s76, s76, 5            ; rc = u/3")
        a("s_mul_i32 s77, s76, 3")
        a("s_sub_u32 s77, s75, s77           ; third")
        a(f"s_add_u32 s78, s{sCH1}, s76")
        a("s_sub_u32 s78, s78, 1")
        a("s_cmp_eq_u32 s76, 0")
        a(f"s_cselect_b32 s78, s{sCH0}, s78   ; channel")
        a("s_min_u32 s78, s78, 639")
        a("s_lshl_b32 s79, s78, 1")
        a(f"v_mov_b32 v{19+it}, s79")
        a("s_mul_i32 s78, s78, 384")
        a("s_lshl_b32 s77, s77, 7")
        a("s_add_u32 s78, s78, s77")
        a(f"v_lshlrev_b32 v{16+it}, 1, v{vLANE}")
        a(f"v_add_u32 v{16+it}, s78, v{16+it}")
    for r in range(PB, PB + 24):
        a(f"v_mov_b32 v{r}, 0")
    a(f"s_mul_i32 s75, s{sP}, 5")
    a(f"s_lshl_b32 s76, s{sE}, 1")
    a("s_add_u32 s75, s75, s76             ; cb")
    a("s_lshl_b32 s76, s75, 1")
    a("s_and_b32 s76, s76, 0xfffc")
    a("s_mul_i32 s72, s2, 10240")
    a(f"s_sub_u32 s74, s{sW}, 1")
    a("s_lshl_b32 s74, s74, 10")
    a("s_add_u32 s73, s72, s74")
    a(f"s_add_u32 s74, s74, {XQ}")
    a("s_waitcnt lgkmcnt(0)")
    stamp(a, "karg")

    def param_loads(its):
        for it in its:
            for k in range(6):
                a(f"global_load_short_d16_hi v{PB+8*it+k}, v{16+it}, s[{sPAR+2*k}:{sPAR+2*k+1}]")
            a(f"global_load_short_d16_hi v{PB+8*it+6}, v{19+it}, s[{sLDT}:{sLDT+1}]")

    param_loads([0])
    a(f"s_load_dword s{sTAG}, s[{sWS}:{sWS+1}], {GEN}")
    a(f"s_load_dwordx2 s[78:79], s[{sDSK}:{sDSK+1}], s76")
    srd(a, RX, sX, SZ_X)
    srd(a, RWS, sWS, WS_END)
    srd(a, RW, sWGP, SZ_W)
    srd(a, RWD, sWUP, SZ_W)
    srd(a, ROUT, sOUT, SZ_X)
    LOG2E = f2u(1.4426950408889634)
    a(f"s_mul_i32 s63, s{sW}, {STGS}")
    a(f"s_add_u32 s75, s63, {STG}")
    a(f"v_and_b32 v36, 31, v{vLANE}         ; b")
    a(f"v_bfe_u32 v37, v{vLANE}, 5, 1       ; h")
    a("v_mul_u32_u24 v35, 272, v36")
    a("v_lshl_add_u32 v35, v37, 4, v35")
    a("v_add_u32 v35, s75, v35")
    a(f"s_mul_i32 s75, s{sW}, {TABS}")
    a("v_lshlrev_b32 v8, 5, v36")
    a("v_lshl_add_u32 v8, v37, 4, v8")
    a("v_add_u32 v8, s75, v8")
    a("v_lshlrev_b32 v9, 4, v36")
    a("v_add_u32 v9, 1024, v9")
    a("v_lshlrev_b32 v10, 3, v36")
    a("v_add_u32 v10, 1536, v10")
    a("v_cmp_eq_u32 vcc, 1, v37")
    a("v_mov_b32 v11, 8")
    a("v_mov_b32 v24, 256")
    a("v_cndmask_b32 v9, v9, v10, vcc")
    a("v_cndmask_b32 v11, v11, v24, vcc")
    a("v_add_u32 v9, s75, v9")
    a("v_add_u32 v10, v9, v11")
    a("v_mul_u32_u24 v11, 384, v37")
    a("v_lshl_add_u32 v11, v36, 2, v11")
    a("v_add_u32 v11, s75, v11")
    cST, cRA, cRB, cS01, cS2, cSA = 224, 225, 226, 227, 228, 229
    a(f"v_lshrrev_b32 v24, 2, v{vLANE}      ; c16")
    a(f"v_and_b32 v25, 3, v{vLANE}          ; k")
    a("v_lshrrev_b32 v26, 1, v24")
    a("v_and_b32 v27, 1, v24               ; e")
    a("v_mul_u32_u24 v28, 5, v26")
    a("v_lshl_add_u32 v28, v27, 1, v28     ; cb")
    a("v_lshlrev_b32 v28, 1, v28")
    a("v_and_b32 v28, 0xfffc, v28")
    a("v_mul_u32_u24 v29, 2560, v25")
    a(f"s_and_b32 s76, s{sW}, 1")
    a("s_mul_i32 s75, s76, 640")
    a(f"s_add_u32 s75, s75, {XQ}")
    a(f"v_add3_u32 v{cRA}, v28, v29, s75")
    a(f"v_add_u32 v{cRB}, 1280, v{cRA}")
    a("v_and_b32 v26, 1, v26               ; parity")
    a("v_add_u32 v29, v26, v27             ; q1")
    a("v_lshlrev_b32 v30, 1, v27")
    a("v_sub_u32 v30, v26, v30")
    a("v_add_u32 v30, 2, v30               ; q0")
    a("v_lshl_add_u32 v30, v29, 16, v30")
    a("s_mov_b32 s75, 0x0202")
    a("v_mul_lo_u32 v30, v30, s75")
    a(f"v_add_u32 v{cS01}, 0x01000100, v30")
    a("v_add_u32 v29, 1, v29")
    a("s_mov_b32 s75, 0x02020202")
    a("v_mul_lo_u32 v29, v29, s75")
    a(f"v_add_u32 v{cS2}, 0x01000100, v29")
    a("v_lshlrev_b32 v24, 14, v24")
    a(f"v_lshl_add_u32 v{cST}, v25, 4, v24")
    a(f"v_lshrrev_b32 v24, 3, v{vLANE}")
    a("v_mul_u32_u24 v24, 1280, v24")
    a(f"v_and_b32 v25, 7, v{vLANE}")
    a("v_lshl_add_u32 v24, v25, 4, v24")
    a(f"v_add_u32 v{cSA}, {XQ}, v24")
    stamp(a, "f0")
    a(f"s_cmp_eq_u32 s{sW}, 0")
    a("s_cbranch_scc1 LD0")
    for n in range(4):
        a(f"s_add_u32 m0, s74, {3072*n}")
        a(f"s_add_u32 s75, s73, {3072*n}")
        if n == 3:
            a(f"s_cmp_eq_u32 s{sW}, 1")
            a(f"s_cselect_b32 s75, s75, {BIG:#x}")
        a(f"buffer_load_dwordx4 v{vL16}, {sr(RX)}, s75 offen lds")
    a("s_branch LDC")
    a.label("LD0")
    param_loads([2])
    a.label("LDC")
    param_loads([1])
    srd(a, RX, sWDP, SZ_W)
    t0, t1, t2, t3, t4, t5 = 24, 25, 26, 27, 28, 29
    a(f"v_and_b32 v{t0}, 1, v{vLANE}")
    a(f"v_bfe_u32 v{t1}, v{vLANE}, 1, 3")
    a(f"v_lshrrev_b32 v{t2}, 4, v{vLANE}     ; g")
    a(f"s_lshl_b32 s75, s{sW}, 7")
    a(f"s_sub_u32 s76, {CHB + C_KE + 2*252 - 64}, s75")
    a(f"v_mul_u32_u24 v{vA}, {C_KE-C_KO}, v{t0}")
    a(f"v_sub_u32 v{vA}, s76, v{vA}")
    a(f"v_lshlrev_b32 v{t3}, 3, v{t1}")
    a(f"v_sub_u32 v{vA}, v{vA}, v{t3}")
    a(f"v_lshl_add_u32 v{vA}, v{t2}, 4, v{vA}")
    a(f"s_sub_u32 s76, {CHB + C_U2 + 1024 - 64}, s75")
    a(f"v_mul_u32_u24 v{vB}, {C_U2-C_U0}, v{t0}")
    a(f"v_sub_u32 v{vB}, s76, v{vB}")
    a(f"v_lshl_add_u32 v{vB}, v{t1}, 6, v{vB}")
    a(f"v_lshl_add_u32 v{vB}, v{t2}, 4, v{vB}")
    a(f"s_lshl_b32 s76, s{sE}, 9")
    a(f"v_add_u32 v{vB0}, s76, v{vB}")
    a(f"v_subrev_u32 v{vB0}, 512, v{vB0}")
    a(f"v_bfe_u32 v{t3}, v{vLANE}, 2, 1")
    a(f"v_lshl_add_u32 v{t3}, v{t3}, 1, v{t0}")
    a(f"v_xor_b32 v{t3}, v{t3}, v{t2}")
    a(f"v_lshlrev_b32 v{t3}, 4, v{t3}")
    a(f"v_lshl_add_u32 v{t3}, v{t1}, 6, v{t3}")
    a(f"v_lshl_add_u32 v{t4}, v{t0}, 12, v{t3}")
    a(f"s_lshl_b32 s77, s{sW}, 13")
    a(f"s_add_u32 s76, s77, {R1B}")
    a(f"v_add_u32 v{vRW1}, s76, v{t4}")
    a(f"s_add_u32 s76, s77, {R2B}")
    a(f"v_add_u32 v{vRW2}, s76, v{t4}")
    a(f"v_lshl_add_u32 v{t4}, v{t0}, 11, v{t3}")
    a(f"s_lshl_b32 s77, s{sW}, 12")
    a(f"v_add_u32 v{vRW0}, s77, v{t4}")
    a(f"v_bfe_u32 v{t3}, v0, 3, 1")
    a(f"v_lshlrev_b32 v{t3}, 1, v{t3}")
    a(f"v_xor_b32 v{t3}, v{t3}, v0")
    a(f"v_lshlrev_b32 v{t3}, 4, v{t3}")
    a(f"v_add_u32 v{vRR0}, {R1B}, v{t3}")
    a(f"v_xor_b32 v{vRR1}, 16, v{vRR0}")
    a(f"v_add_u32 v{vRQ0}, {R2B}, v{t3}")
    a(f"v_xor_b32 v{vRQ1}, 16, v{vRQ0}")
    a(f"v_and_b32 v{t3}, 511, v{t3}")
    a(f"s_lshl_b32 s77, s{sW}, 9")
    a(f"v_add_u32 v{vRZ0}, s77, v{t3}")
    a(f"v_xor_b32 v{vRZ1}, 16, v{vRZ0}")
    a(f"v_bfe_u32 v{t3}, v{vLANE}, 5, 1")
    a(f"v_cmp_eq_u32 vcc, s{sE}, v{t3}")
    a(f"v_mov_b32 v{vH0}, {BIG:#x}")
    a(f"v_lshlrev_b32 v{vPU}, 2, v0")
    a(f"v_cndmask_b32 v{vH0}, v{vH0}, v{vH}, vcc")
    a(f"v_add_u32 v{vPU}, {CHB}, v{vPU}")
    a(f"v_lshlrev_b32 v{vPB}, 3, v0")
    a(f"v_add_u32 v{vPB}, {BSB}, v{vPB}")
    a(f"v_lshlrev_b32 v{vOB}, 5, v0")
    a(f"v_add_u32 v{vOB}, {BSB}, v{vOB}")
    a(f"s_lshl_b32 s{sXR}, s2, 14")
    a(f"s_add_u32 s{sXR}, s{sXR}, {XR:#x}")
    a(f"s_lshl_b32 s{sH0}, s{sCH0}, 12")
    a(f"s_add_u32 s{sH0}, s{sH0}, {HT:#x}")
    a(f"s_lshl_b32 s{sH1}, s{sCH1}, 12")
    a(f"s_add_u32 s{sH1}, s{sH1}, {HT:#x}")
    a(f"s_add_u32 s{sH2}, s{sH1}, 4096")
    a(f"s_lshl_b32 s{sFHO}, s{sW}, 8")
    a(f"s_add_u32 s{sFHO}, s{sFHO}, s2")
    a(f"s_lshl_b32 s{sFHO}, s{sFHO}, 6")
    a(f"s_add_u32 s{sFHO}, s{sFHO}, {FH:#x}")
    a(f"v_lshrrev_b32 v{t1}, 3, v{vLANE}     ; q")
    a(f"v_mul_u32_u24 v{t3}, 5, v{t1}")
    a(f"v_add_u32 v30, 2, v{t3}")
    a(f"v_mul_u32_u24 v{t4}, 5, v{t2}")
    a(f"v_and_b32 v{t5}, 1, v{t1}")
    a(f"v_mul_u32_u24 v{t5}, 3, v{t5}")
    a(f"v_add_u32 v31, v{t4}, v{t5}")
    a(f"v_and_b32 v32, 7, v{vLANE}")
    a(f"v_and_b32 v33, 1, v{t2}              ; (row>>1)&1")
    a(f"s_and_b32 s75, s{sW}, 1")
    a(f"s_lshl_b32 s75, s75, 1")
    a("v_or_b32 v33, s75, v33")
    a("v_lshlrev_b32 v33, 1, v33")
    a("v_xor_b32 v33, v33, v32")
    a("v_lshlrev_b32 v33, 4, v33")
    a(f"s_mul_i32 s75, s{sW}, 40")
    a("v_add_u32 v30, s75, v30")
    a("v_lshl_add_u32 v30, v30, 12, v33")
    a("v_accvgpr_write_b32 a240, v30")
    a(f"s_mul_i32 s75, s{sW}, 20")
    a("v_add_u32 v31, s75, v31")
    a("v_lshl_add_u32 v31, v31, 12, v33")
    a("v_accvgpr_write_b32 a241, v31")
    a(f"s_lshl_b32 s75, s{sW}, 3")
    a(f"v_lshlrev_b32 v30, 5, v{t1}")
    a("v_add3_u32 v30, v30, v32, s75       ; 32s'+8w+j")
    a("v_lshlrev_b32 v31, 6, v30")
    a("v_accvgpr_write_b32 a243, v31")
    a("v_and_b32 v30, 127, v30")
    a("v_lshlrev_b32 v30, 7, v30")
    a("v_accvgpr_write_b32 a242, v30")
    a(f"s_lshr_b32 s75, s{sTB}, 2")
    a("s_lshl_b32 s75, s75, 14")
    a(f"s_add_u32 s{sPH1}, s75, {FH + 65536:#x}")
    a(f"s_add_u32 s{sPH2}, s75, {FH + 131072:#x}")
    a(f"s_bfe_u32 s76, s{sTB}, 0x10001")
    a("s_lshl_b32 s76, s76, 6")
    a("s_add_u32 s75, s75, s76")
    a(f"s_add_u32 s{sPH0}, s75, {FH:#x}")
    a(f"s_lshl_b32 s{sACT}, s{sTB}, 8")
    a(f"s_add_u32 s{sACT}, s{sACT}, {HT:#x}")
    a(f"s_lshl_b32 s{sM0}, s{sW}, 10")
    a(f"v_bfe_u32 v{t1}, v{vLANE}, 2, 2      ; rr")
    a(f"v_lshl_add_u32 v{t3}, v{t2}, 3, v{t1}")
    a(f"v_lshlrev_b32 v{t3}, 7, v{t3}        ; row*128")
    a(f"v_and_b32 v{t4}, 1, v{t2}")
    a(f"v_lshrrev_b32 v{t5}, 1, v{t1}")
    a(f"v_lshl_add_u32 v{t4}, v{t4}, 1, v{t5}")
    a(f"v_xor_b32 v30, s{sW}, v{t4}")
    a(f"v_lshl_add_u32 v30, v30, 5, v{t3}")
    a(f"v_and_b32 v31, 3, v{vLANE}")
    a("v_lshl_add_u32 v30, v31, 3, v30")
    a("v_accvgpr_write_b32 a244, v30")
    a(f"s_cmp_ge_u32 s{sW}, 2")
    a(f"s_cselect_b64 s[{RW}:{RW+1}], s[{RWD}:{RWD+1}], s[{RW}:{RW+1}]")
    a(f"s_mul_i32 s{sWJ}, s{sJ}, 192")
    a(f"s_mul_i32 s{sM3}, s{sW}, 3072")
    a(f"s_and_b32 s76, s{sW}, 1")
    a("s_lshl_b32 s75, s76, 4")
    for n in range(3):
        a(f"v_add_u32 v32, {64*n}, v{vLANE}")
        a("v_mul_u32_u24 v33, 5462, v32")
        a("v_lshrrev_b32 v33, 16, v33          ; L'/12")
        a("v_mul_u32_u24 v34, 12, v33")
        a("v_sub_u32 v32, v32, v34")
        a("v_lshlrev_b32 v32, 4, v32")
        a("v_add_u32 v33, s75, v33             ; row")
        a("v_mul_u32_u24 v34, 5, v33")
        a("v_add_u32 v34, 2, v34")
        a("v_mul_u32_u24 v34, 3072, v34")
        a(f"v_add_u32 v{vWA+n}, v34, v32")
        a("v_lshrrev_b32 v34, 1, v33")
        a("v_mul_u32_u24 v34, 5, v34")
        a("v_and_b32 v33, 1, v33")
        a("v_mul_u32_u24 v33, 3, v33")
        a("v_add_u32 v34, v34, v33")
        a("v_mul_u32_u24 v34, 3072, v34")
        a(f"v_add_u32 v{vWB+n}, v34, v32")
    a(f"v_lshl_add_u32 v{t3}, v{t2}, 3, v{t1}")
    a(f"v_mul_u32_u24 v{t4}, 192, v{t3}")
    a(f"s_mul_i32 s75, s{sW}, 48")
    a(f"s_add_u32 s75, s75, {RT[2]}")
    a(f"v_add_u32 v{t4}, s75, v{t4}")
    a(f"v_lshl_add_u32 v{vT0}, v31, 3, v{t4}")
    a(f"v_add_u32 v{vT0+1}, 6144, v{vT0}")
    a(f"v_bfe_u32 v{t5}, v{vLANE}, 1, 1")
    a(f"v_mul_u32_u24 v{t5}, 6144, v{t5}")
    a(f"v_lshl_add_u32 v{t5}, v{t0}, 3, v{t5}")
    a(f"v_add3_u32 v{vT0+2}, v{t4}, v{t5}, 32")
    a("s_lshl_b32 s75, s2, 1")
    a("s_add_u32 s75, s75, s76")
    a("s_mul_i32 s75, s75, 30")
    a(f"v_min_u32 v250, 29, v{vLANE}")
    a("v_add_lshl_u32 v250, v250, s75, 7")
    stamp(a, "f1")
    a(f"v_mul_u32_u24 v24, 6554, v{vLANE}")
    a("v_lshrrev_b32 v24, 16, v24          ; L/10")
    a("v_mul_u32_u24 v24, 1120, v24")
    a(f"v_add_u32 v{vW2V}, v24, v{vL16}")
    a(f"s_lshl_b32 s75, s{sW}, 8")
    a("s_add_u32 s75, s75, s2              ; task")
    a("s_lshr_b32 s72, s75, 3")
    a("s_and_b32 s73, s75, 7")
    a(f"s_lshl_b32 s{sFW2O}, s75, 6")
    a(f"s_add_u32 s{sFW2O}, s{sFW2O}, {FW2:#x}")
    a(f"s_mul_i32 s{sW2R}, s72, {32*1280}")
    a("s_mul_i32 s74, s73, 160")
    a(f"s_add_u32 s{sW2R}, s{sW2R}, s74")
    a(f"s_mul_i32 s{sW2ST}, s73, 245760")
    a("s_mul_i32 s74, s72, 5120")
    a(f"s_add_u32 s{sW2ST}, s{sW2ST}, s74")
    a(f"s_add_u32 s{sW2ST}, s{sW2ST}, {W2P:#x}")
    a("s_cmp_lt_u32 s75, 384")
    a(f"s_cselect_b32 s{sW2ST}, s{sW2ST}, {BIG:#x}")
    a(f"s_cselect_b32 s{sFW2O}, s{sFW2O}, {BIG:#x}")
    a(f"s_mul_i32 s{sWT}, s{sW}, 5888")
    a(f"s_add_u32 s{sWT}, s{sWT}, {WTS}")
    a(f"v_mul_u32_u24 v24, 160, v{t3}")
    a(f"v_add_u32 v24, s{sWT}, v24")
    a(f"v_and_b32 v25, 3, v{vLANE}")
    a(f"v_lshl_add_u32 v{vW2R0}, v25, 4, v24")
    a(f"v_lshl_add_u32 v{vW2R1}, v25, 3, v24")
    a(f"s_mul_i32 s{sTAG}, s{sTAG}, 0x9E3779B1")
    a(f"s_add_u32 s{sTAG}, s{sTAG}, 0x7F4A7C15")
    a(f"v_mov_b32 v{vTAGV}, s{sTAG}")
    a(f"s_and_b32 s74, s{sP}, 1")
    for r in range(3):
        lo, hi = DSEL[r]
        if r == 0:
            a(f"s_lshl_b32 s73, s{sE}, 1")
            a("s_sub_u32 s73, s74, s73")
            a("s_add_u32 s73, s73, 2")
        else:
            a(f"s_add_u32 s73, s74, s{sE}")
            if r == 2:
                a("s_add_u32 s73, s73, 1")
        a("s_lshl_b32 s73, s73, 4")
        a(f"s_lshr_b64 s[{lo}:{hi}], s[78:79], s73")
        a(f"s_lshl_b32 s{lo}, s{lo}, 16")
        a(f"s_mov_b32 s{hi}, s{lo}")
    a(f"s_mov_b32 s76, {LOG2E:#x}")
    a(f"s_mov_b32 s77, {f2u(0.15915494309189535):#x}")
    a("s_mov_b32 m0, s63")
    a(f"s_mov_b32 s75, s{sW}                ; unit")
    a("s_waitcnt vmcnt(14)")
    a(f"s_cmp_eq_u32 s{sW}, 0")
    a("s_cbranch_scc1 P0W")
    a("s_waitcnt vmcnt(11)")
    a.label("P0W")
    a("; @clearvm")
    stamp(a, "job")
    a.label("KGEN")
    stamp(a, "k0")
    A_, B_, C_, LD_ = PB, PB + 2, PB + 4, PB + 6
    a(f"v_mul_f32 v32, {LOG2E:#x}, v{LD_}")
    a("v_exp_f32 v32, v32")
    a("v_cvt_pk_bf16_f32 v32, v32, v32")
    a("v_lshlrev_b32 v32, 16, v32          ; dt")
    a(f"v_pk_mul_f32 v[24:25], {vr(A_,2)}, v[32:33] op_sel:[0,0] op_sel_hi:[1,0]")
    a(f"v_pk_mul_f32 v[26:27], {vr(B_,2)}, v[32:33] op_sel:[0,0] op_sel_hi:[1,0]")
    a("v_pk_mul_f32 v[24:25], v[24:25], s[76:77]")
    P, Q, CV = 40, 56, 72
    p1, qq, w8 = 88, 90, 92
    RA = 104
    Rr = lambda k: RA + 2 * k
    R0 = Rr(0)
    cmuls(a, [(R0, C_, 26)])
    ev = [(P + 2, 8.0, 96), (p1, 1.0, 98), (qq, 256.0, 100)]
    for dst, sc, t in ev:
        if sc == 1.0:
            a(f"v_fract_f32 v{t+1}, v25")
        else:
            a(f"v_mul_f32 v{t}, {f2u(sc):#x}, v24")
            a(f"v_mul_f32 v{t+1}, {f2u(sc):#x}, v25")
            a(f"v_fract_f32 v{t+1}, v{t+1}")
    for dst, sc, t in ev:
        a(f"v_exp_f32 v{t}, v{24 if sc == 1.0 else t}")
        a(f"v_cos_f32 v{dst}, v{t+1}")
        a(f"v_sin_f32 v{dst+1}, v{t+1}")
    for dst, sc, t in ev:
        a(f"v_pk_mul_f32 {vr(dst,2)}, {vr(dst,2)}, {vr(t,2)} op_sel:[0,0] op_sel_hi:[1,0]")
    stamp(a, "k1")
    W = lambda k: P + 2 * k
    p2, p4, q2 = 96, 98, 100
    cmuls(a, [(W(2), W(1), W(1)), (p2, p1, p1), (q2, qq, qq), (Rr(1), R0, p1)])
    cmuls(a, [(W(3), W(2), W(1)), (W(4), W(2), W(2)), (p4, p2, p2), (Rr(2), R0, p2), (Rr(3), Rr(1), p2)])
    cmuls(a, [(W(5), W(4), W(1)), (W(6), W(4), W(2)), (W(7), W(4), W(3)), (Q, W(4), W(4))])
    AOFF = 32 * 272

    def put(vals, cv, neg):
        for k, (r, col) in enumerate(vals):
            if r is None:
                a(f"v_mov_b32 v{cv+k}, 0x3f80")
            else:
                a(f"v_cvt_pk_bf16_f32 v{cv+k}, v{r}, {'-' if neg else ''}v{r+1}")
        for k, (r, col) in enumerate(vals):
            a(f"ds_write_addtid_b32 v{cv+k} offset:{STG+272*col+(AOFF if neg else 0)}")

    stamp(a, "k2")
    a(f"v_pk_mov_b32 {vr(w8,2)}, {vr(Q,2)}, {vr(Q,2)} op_sel:[0,1]")
    cmuls(a, [(Q + 2 * k, P + 2 * k, w8) for k in range(1, 8)])
    put([(None, 0)] + [(P + 2 * k, k) for k in range(1, 8)] + [(Q + 2 * k, 8 + k) for k in range(8)], CV, False)
    cmuls(a, [(P + 2 * k, Q + 2 * k, w8) for k in range(8)])
    cmuls(a, [(Q + 2 * k, P + 2 * k, w8) for k in range(8)])
    put([(P + 2 * k, 16 + k) for k in range(8)] + [(Q + 2 * k, 24 + k) for k in range(8)], CV, False)
    FB, FA = 40, 148
    for s in range(8):
        a(f"ds_read_b128 {vr(FB+4*s,4)}, v35 offset:{32*s}")
    stamp(a, "k3")
    cmuls(a, [(Rr(4 + k), Rr(k), p4) for k in range(4)] + [(Rr(8), R0, qq), (Rr(9), Rr(2), qq), (Rr(12), R0, q2)])
    cmuls(a, [(Rr(10), Rr(4), qq), (Rr(11), Rr(6), qq), (Rr(13), Rr(4), q2), (Rr(14), Rr(8), q2), (Rr(16), Rr(12), q2)])
    cmuls(a, [(Rr(15), Rr(10), q2), (Rr(17), Rr(14), q2), (Rr(18), Rr(16), q2)])
    cmuls(a, [(Rr(20), Rr(17), q2), (Rr(21), Rr(18), q2)])
    stamp(a, "k4")
    put([(Rr(k), k) for k in list(range(19)) + [20, 21]], CV, True)
    for s in range(8):
        a(f"ds_read_b128 {vr(FA+4*s,4)}, v35 offset:{AOFF+32*s}")
    stamp(a, "k5")
    DK = 180
    for s in range(8):
        a(f"v_mfma_f32_32x32x16_bf16 {vr(DK,16)}, {vr(FA+4*s,4)}, {vr(FB+4*s,4)}, {'0' if s == 0 else vr(DK,16)}")
    stamp(a, "k6")
    a("s_add_u32 s75, s75, 4")
    a(f"ds_write_b128 v8, {vr(DK,4)}")
    a(f"ds_write_b64 v9, {vr(DK+4,2)}")
    a(f"ds_write_b64 v10, {vr(DK+6,2)}")
    for r in range(3):
        a(f"ds_write_b32 v11, v{DK+8+r} offset:{2048+128*r}")
    for r in range(8, 12):
        a(f"v_add_u32 v{r}, {4*TABS}, v{r}")
    a("s_cmp_ge_u32 s75, 8")
    a("s_cbranch_scc1 KG2")
    a("s_waitcnt vmcnt(0)")
    a("s_barrier")
    stamp(a, "xq")
    a(f"s_cmp_eq_u32 s{sW}, 0")
    a("s_cbranch_scc1 KNEXT1")
    a(f"s_cmp_eq_u32 s{sW}, 1")
    a("s_cbranch_scc1 PRE1")
    for i in range(8):
        a(f"ds_read2_b32 {vr(40+4*i,2)}, v{cRA} offset0:{20*i} offset1:{20*i+1}")
        a(f"ds_read2_b32 {vr(42+4*i,2)}, v{cRB} offset0:{20*i} offset1:{20*i+1}")
    a(f"s_and_b32 s78, s{sW}, 1")
    a("s_lshl_b32 s78, s78, 21")
    a("s_lshl_b32 s79, s2, 6")
    a("s_add_u32 s78, s78, s79")
    a(f"s_add_u32 s78, s78, {XR:#x}")
    a("s_mov_b32 s72, 0x05040100")
    a("s_mov_b32 s73, 0x07060302")
    for i in range(8):
        a(f"v_mov_b32 v{104+4*i+3}, s{sTAG}")
    for i in range(8):
        b = 40 + 4 * i
        o = 104 + 4 * i
        a(f"v_perm_b32 v32, v{b+1}, v{b}, v{cS01}")
        a(f"v_perm_b32 v33, v{b+3}, v{b+2}, v{cS01}")
        a(f"v_perm_b32 v34, v{b+1}, v{b}, v{cS2}")
        a(f"v_perm_b32 v38, v{b+3}, v{b+2}, v{cS2}")
        a(f"v_perm_b32 v{o}, v33, v32, s72")
        a(f"v_perm_b32 v{o+1}, v33, v32, s73")
        a(f"v_perm_b32 v{o+2}, v38, v34, s72")
        a(f"buffer_store_dwordx4 {vr(o,4)}, v{cST}, {sr(RWS)}, s78 offen sc1")
        if i < 7:
            a(f"s_add_u32 s78, s78, {16*16384}")
    stamp(a, "recs")
    a("s_branch KNEXT1")
    a.label("PRE1")
    SB = 40
    for c in range(10):
        a(f"ds_read_b128 {vr(SB+4*c,4)}, v{cSA} offset:{128*c}")
    a(f"v_and_b32 v38, 15, v{vLANE}")
    a("v_cmp_eq_u32 vcc, 0, v38")
    a(f"v_mov_b32 v38, {BIG:#x}")
    a(f"v_mov_b32 v107, s{sTAG}")
    a(f"v_cndmask_b32 v38, v38, v{vLANE}, vcc")
    a("s_lshl_b32 s78, s2, 6")
    a(f"s_add_u32 s78, s78, {S1:#x}")
    for k in range(40):
        a(f"v_dot2_f32_bf16 v32, v{SB+k}, s{sONE}, {'0' if k == 0 else 'v32'}")
        a(f"v_dot2_f32_bf16 v33, v{SB+k}, v{SB+k}, {'0' if k == 0 else 'v33'}")
    for m in ("quad_perm:[1,0,3,2]", "quad_perm:[2,3,0,1]", "row_half_mirror"):
        a(f"v_add_f32_dpp v32, v32, v32 {m} row_mask:0xf bank_mask:0xf")
        a(f"v_add_f32_dpp v33, v33, v33 {m} row_mask:0xf bank_mask:0xf")
    ln_den(a, 32, 33, 34)
    a("v_mov_b32 v104, v33")
    a("v_mov_b32_dpp v105, v33 row_ror:8 row_mask:0xf bank_mask:0xf")
    a("v_mov_b32_dpp v34, v32 row_ror:8 row_mask:0xf bank_mask:0xf")
    a("v_cvt_pk_bf16_f32 v106, v32, v34")
    a(f"buffer_store_dwordx4 v[104:107], v38, {sr(RWS)}, s78 offen sc1")
    stamp(a, "recs")
    a.label("KNEXT1")
    a.label("KNEXT")
    for k in range(0, 16, 2):
        a(f"v_pk_mov_b32 {vr(PB+k,2)}, {vr(PB+8+k,2)}, {vr(PB+8+k,2)} op_sel:[0,1]")
    a("s_branch KGEN")
    a.label("KG2")
    a("s_cmp_eq_u32 s75, 8")
    a("s_cbranch_scc1 KNEXT")
    stamp(a, "kgen")
    XRV, STV = 196, 212

    def recv_loads():
        a(f"s_mov_b32 s73, s{sXR}")
        a(f"s_mov_b32 s74, {S1:#x}")
        for i in range(4):
            a(f"buffer_load_dwordx4 {vr(XRV+4*i,4)}, v{vH}, {sr(RWS)}, s73 offen sc1")
            a(f"buffer_load_dwordx4 {vr(STV+4*i,4)}, v{vH}, {sr(RWS)}, s74 offen sc1")
            if i < 3:
                a("s_add_u32 s73, s73, 4096")
                a("s_add_u32 s74, s74, 4096")

    a("s_waitcnt lgkmcnt(0)")
    a("s_barrier")
    recv_loads()
    stamp(a, "bar1")
    a(f"s_cmp_eq_u32 s{sW}, 3")
    a("s_cbranch_scc1 NOPAD")
    for r in range(40, 44):
        a(f"v_mov_b32 v{r}, 0")
    a(f"s_mul_i32 s75, s{sW}, {CHS}")
    a(f"s_add_u32 s75, s75, {CHB}")
    a(f"v_add_u32 v16, s75, v{vL16}")
    a(f"v_and_b32 v17, 48, v{vL16}")
    a("v_add_u32 v17, s75, v17")
    a("v_mov_b32 v18, s75")
    a(f"ds_write_b128 v16, v[40:43] offset:{C_U0}")
    a(f"ds_write_b128 v16, v[40:43] offset:{C_U2}")
    a(f"ds_write_b128 v17, v[40:43] offset:{C_KO+4096}")
    a(f"ds_write_b128 v17, v[40:43] offset:{C_KE+4096}")
    a(f"ds_write_b32 v18, v40 offset:{C_U2+1024}")
    a.label("NOPAD")
    KB = CHB + C_KO
    KD = C_KE - C_KO

    def pk(dst, lo, hi):
        a(f"v_cvt_pk_bf16_f32 v{dst}, v{lo}, v{hi}")

    a(f"v_cmp_eq_u32 vcc, 0, v{vLANE}")
    a(f"s_cmp_eq_u32 s{sW}, 0")
    a("s_cbranch_scc0 EXPN")
    a(f"v_subrev_u32 v17, 4, v{vL16}")
    a("v_max_i32 v17, 0, v17")
    for rc in range(3):
        for t in range(3):
            a(f"ds_read_b128 {vr(44+16*rc+4*t,4)}, v{vL16} offset:{TABS*(3*rc+t)}")
            a(f"ds_read_b32 v{56+16*rc+t}, v17 offset:{TABS*(3*rc+t)}")
    a(f"v_lshlrev_b32 v18, 3, v{vLANE}")
    a(f"v_sub_u32 v18, {KB+2*2044}, v18")
    for rc in range(3):
        b = 44 + 16 * rc
        o = 96 + 4 * rc
        for t in (1, 2):
            a(f"v_pk_add_f32 {vr(b,2)}, {vr(b,2)}, {vr(b+4*t,2)}")
            a(f"v_pk_add_f32 {vr(b+2,2)}, {vr(b+2,2)}, {vr(b+4*t+2,2)}")
            a(f"v_add_f32 v{b+12}, v{b+12}, v{b+12+t}")
        a(f"v_cndmask_b32 v{b+12}, v{b+12}, 0, vcc")
        pk(o, b + 3, b + 2); pk(o + 1, b + 1, b); pk(o + 2, b + 2, b + 1); pk(o + 3, b, b + 12)
        a(f"ds_write_b64 v18, {vr(o,2)} offset:{CHS*rc}")
        a(f"ds_write_b64 v18, {vr(o+2,2)} offset:{CHS*rc+KD}")
    a("s_branch EXPD")
    a.label("EXPN")
    a(f"s_lshl_b32 s75, s{sW}, 9")
    a("s_add_u32 s75, s75, 508")
    a(f"v_lshlrev_b32 v16, 3, v{vLANE}")
    a("v_add_u32 v16, s75, v16")
    for rc in range(3):
        for t in range(3):
            b = 44 + 12 * rc + 4 * t
            off = TABS * (3 * rc + t)
            a(f"ds_read_b64 {vr(b,2)}, v16 offset:{off+4}")
            a(f"ds_read_b32 v{b+2}, v16 offset:{off+12}")
            a(f"ds_read_b32 v{b+3}, v16 offset:{off}")
    for rc in range(3):
        b = 44 + 12 * rc
        for t in (1, 2):
            a(f"v_pk_add_f32 {vr(b,2)}, {vr(b,2)}, {vr(b+4*t,2)}")
            a(f"v_pk_add_f32 {vr(b+2,2)}, {vr(b+2,2)}, {vr(b+4*t+2,2)}")
    a(f"s_cmp_eq_u32 s{sW}, 2")
    a("s_cbranch_scc1 EXP2")
    a(f"s_cmp_eq_u32 s{sW}, 3")
    a("s_cbranch_scc1 EXP3")
    a(f"v_lshlrev_b32 v18, 3, v{vLANE}")
    a(f"v_sub_u32 v18, {KB+2*(2044-256)}, v18")
    for rc in range(3):
        va, vb, vc, vm = (44 + 12 * rc + k for k in range(4))
        o = 96 + 4 * rc
        a(f"v_cndmask_b32 v{vm}, v{va}, v{vm}, vcc")
        pk(o, vc, vb); pk(o + 1, va, va); pk(o + 2, vb, va); pk(o + 3, va, vm)
        a(f"ds_write_b64 v18, {vr(o,2)} offset:{CHS*rc}")
        a(f"ds_write_b64 v18, {vr(o+2,2)} offset:{CHS*rc+KD}")
    a("s_branch EXPD")
    a.label("EXP2")
    a(f"v_sub_u32 v18, {KB+2*(2040-512)}, v{vL16}")
    for rc in range(3):
        va, vb, vc, vm = (44 + 12 * rc + k for k in range(4))
        o = 96 + 8 * rc
        for k, (lo, hi) in enumerate([(vc, vc), (vb, vb), (vb, va), (va, va), (vc, vb), (vb, vb), (va, va), (va, va)]):
            pk(o + k, lo, hi)
        a(f"ds_write_b128 v18, {vr(o,4)} offset:{CHS*rc}")
        a(f"ds_write_b128 v18, {vr(o+4,4)} offset:{CHS*rc+KD}")
    a("s_branch EXPD")
    a.label("EXP3")
    a(f"v_lshlrev_b32 v18, 5, v{vLANE}")
    a(f"v_sub_u32 v18, {KB+2*(2032-1024)}, v18")
    for rc in range(3):
        va, vb, vc, vm = (44 + 12 * rc + k for k in range(4))
        o = 96 + 16 * rc
        pat = [(vc, vc), (vc, vc), (vb, vb), (vb, vb), (vb, vb), (vb, va), (va, va), (va, va),
               (vc, vc), (vc, vb), (vb, vb), (vb, vb), (vb, vb), (va, va), (va, va), (va, va)]
        for k, (lo, hi) in enumerate(pat):
            pk(o + k, lo, hi)
            if k & 3 == 3:
                a(f"ds_write_b128 v18, {vr(o+k-3,4)} offset:{CHS*rc+(KD if k >= 8 else 0)+(16 if k & 4 else 0)}")
    a.label("EXPD")
    stamp(a, "exp")
    a(f"s_mov_b32 s{sT}, 0")
    a.label("RCHK")
    a(f"v_xor_b32 v16, s{sTAG}, v{XRV+3}")
    for r in [XRV + 7, XRV + 11, XRV + 15, STV + 3, STV + 7, STV + 11, STV + 15]:
        a(f"v_xor_b32 v18, s{sTAG}, v{r}")
        a("v_or_b32 v16, v16, v18")
    a("v_cmp_ne_u32 vcc, 0, v16")
    a("s_cbranch_vccz RDONE")
    a(f"s_add_u32 s{sT}, s{sT}, 1")
    a(f"s_cmp_gt_u32 s{sT}, {SPIN}")
    a("s_cbranch_scc1 RDONE")
    a("s_sleep 4")
    recv_loads()
    a("s_waitcnt vmcnt(0)")
    a("s_branch RCHK")
    a.label("RDONE")
    stamp(a, "recv")
    nm = Lst()
    for i in range(4):
        st = STV + 4 * i
        nm(f"v_and_b32 v{st+3}, 0xffff0000, v{st+2}")
        nm(f"v_lshlrev_b32 v{st+2}, 16, v{st+2}")
    for i in range(4):
        st = STV + 4 * i
        nm(f"v_pk_mul_f32 {vr(st+2,2)}, {vr(st+2,2)}, {vr(st,2)} neg_lo:[1,0] neg_hi:[1,0]")
    for rc in range(3):
        X, U = 40 + 8 * rc, 64 + 8 * (rc & 1)
        for i in range(4):
            nm(f"v_lshlrev_b32 v{X+2*i}, 16, v{XRV+4*i+rc}")
            nm(f"v_and_b32 v{X+2*i+1}, 0xffff0000, v{XRV+4*i+rc}")
        for i in range(4):
            st = STV + 4 * i
            nm(f"v_pk_fma_f32 {vr(U+2*i,2)}, {vr(X+2*i,2)}, {vr(st,2)}, {vr(st+2,2)}")
        for i in range(4):
            nm(f"v_cvt_pk_bf16_f32 v{80+4*rc+i}, v{U+2*i}, v{U+2*i+1}")
        for i in range(4):
            nm(f"v_pk_fma_f32 {vr(X+2*i,2)}, {vr(U+2*i,2)}, s[{DSEL[rc][0]}:{DSEL[rc][1]}], {vr(X+2*i,2)}")
        for i in range(0, 4, 2):
            o = CHS * rc + 1024 * i + C_U0 + 1024
            nm(f"ds_write2st64_b32 v{vPU}, v{80+4*rc+i}, v{81+4*rc+i} offset0:{o//256} offset1:{o//256+4}")
        for i in range(4):
            nm(f"ds_write_b32 v{vPU}, v{80+4*rc+i} offset:{CHS*rc+1024*i+C_U2+1028}")
        for i in range(0, 4, 2):
            o = (8192 * rc + 2048 * i) // 512
            nm(f"ds_write2st64_b64 v{vPB}, {vr(X+2*i,2)}, {vr(X+2*i+2,2)} offset0:{o} offset1:{o+4}")
    w2d = []
    for n in range(6):
        w2d.append([f"s_add_u32 m0, s{sWT}, {960*n}",
                    f"s_add_u32 s75, s{sW2R}, {6*1280*n}",
                    f"buffer_load_dwordx4 v{vW2V}, {sr(RX)}, s75 offen lds ; @def:w2raw"])
    rest = interleave(a, nm, wd(0) + w2d, start=0, every=8)
    assert not rest
    a(f"buffer_load_dword v254, v250, {sr(RW)}, 0 offen")

    a("s_waitcnt lgkmcnt(0)")
    a("s_barrier")
    stamp(a, "bar2")
    ACCS = [16, 48]
    BASE = 80
    EP = 104
    free = list(range(136, 228, 4))
    def pairs_of(rnd, k):
        ps = []
        for o in range(k + 1):
            if k + o <= 7 and (rnd > 0 or (k + o) & 1):
                ps.append((k, o))
                if o != k:
                    ps.append((o, k))
        return ps

    groups = [(rnd, r, k) for rnd in range(3) for r in range(2) for k in range(8)]
    fa, fb = {}, {}

    def issue(gk):
        rnd, r, k = gk
        fa[gk] = free.pop(0)
        fb[gk] = free.pop(0)
        ro = 64 * (1 - r) + CHS * rnd
        return [f"ds_read_b64 {vr(fa[gk],2)}, v{vA} offset:{512*(7-k)+ro}",
                f"ds_read_b64 {vr(fa[gk]+2,2)}, v{vA} offset:{512*(7-k)+ro+8}",
                f"ds_read_b128 {vr(fb[gk],4)}, v{vB0 if rnd == 0 else vB} offset:{512*k+ro} ; @def:cv{rnd}_{r}_{k}"]

    def last_level(rnd, idx):
        return max(k for k in range(8) for (q, c) in pairs_of(rnd, k) if idx in (q, c))

    def epi_fill(rnd, plain=True, toks=""):
        f = [[f"; @use:red{rnd} {toks}", "s_barrier"]]
        r0, r1, ws, ps = [(vRZ0, vRZ1, 4096, 2048), (vRR0, vRR1, 8192, 4096), (vRQ0, vRQ1, 8192, 4096)][rnd]
        for w in range(4):
            f.append(f"ds_read_b128 {vr(EP+8*w,4)}, v{r0} offset:{ws*w}")
            f.append(f"ds_read_b128 {vr(EP+4+8*w,4)}, v{r1} offset:{ws*w+ps} ; @def:ep{rnd}_{w}")
        ymap = [0, 4, 2, 6]
        b = BASE + 8 * rnd
        for w in range(4):
            for p in range(4):
                src = EP + 8 * w + ymap[p]
                if plain:
                    g = [f"v_add_f32 v{b+2*p}, v{b+2*p}, v{src}"]
                    if p == 0:
                        g = [f"; @use:ep{rnd}_{w}"] + g
                    f.append(g)
                    f.append(f"v_add_f32 v{b+2*p+1}, v{b+2*p+1}, v{src+1}")
                else:
                    f.append(f"v_pk_add_f32 {vr(b+2*p,2)}, {vr(b+2*p,2)}, {vr(src,2)}")
        for p in range(4):
            f.append(f"v_cvt_pk_bf16_f32 v{b+p}, v{b+2*p}, v{b+2*p+1}")
        f.append(f"buffer_store_dwordx4 {vr(b,4)}, v{vH0 if rnd == 0 else vH}, {sr(RWS)}, s{[sH0, sH1, sH2][rnd]} offen sc1 ; @def:ht{rnd}")
        return f

    def hflag(rnd):
        g = [f"; @use:ht{rnd}", f"buffer_store_dword v{vTAGV}, v{vFLAG}, {sr(RWS)}, s{sFHO} offen sc1"]
        if rnd < 2:
            g.append(f"s_add_u32 s{sFHO}, s{sFHO}, 65536")
        return g

    def w2_job():
        JF = EP
        f = []
        for rt in range(5):
            off = 64 * (rt >> 1) + 8 * (rt & 1) if rt < 4 else 128
            g = [f"ds_read_b64_tr_b16 {vr(JF+4*rt,2)}, v{vW2R0 if rt < 4 else vW2R1} offset:{off}"]
            f.append(["; @use:w2raw"] + g if rt == 0 else g)
            f.append(f"ds_read_b64_tr_b16 {vr(JF+4*rt+2,2)}, v{vW2R0 if rt < 4 else vW2R1} offset:{off+640}")
        f += ["s_nop 0"] * 4
        for rt in range(5):
            if rt == 4:
                f.append(f"s_add_u32 s{sW2ST}, s{sW2ST}, 4096")
            f.append(f"buffer_store_dwordx4 {vr(JF+4*rt,4)}, v{vL16}, {sr(RWS)}, s{sW2ST} offen offset:{1024*(rt&3)} sc1 ; @def:w2st")
        return f

    vD0, vD1, vPL0, vPL1 = 128, 129, 130, 131
    vRA = 132
    vCS0, vCS1 = 136, 137
    vRES = 138
    vSR, vMW, vGW, vMR, vSC = 141, 142, 143, 144, 145
    EPO = 148
    TMP = 160
    SVH = [172, 174]
    HRES = [176, 182]
    CS = 188
    RS, GR, ONE, NM = 200, 204, 208, 212
    vSW = 216
    MS = 26624

    def cs(s):
        return [f"v_mfma_f32_16x16x32_bf16 {vr(CS+4*r,4)}, {ar(12*s+4*r,4)}, {vr(ONE,4)}, {'0' if s == 0 else vr(CS+4*r,4)}" for r in range(3)]

    def dma(h, s):
        drow = 160 * s if s < 4 else 80 * ((s - 4) & 7) + (1 if s >= 12 else 0)
        return [f"s_add_u32 m0, s{sM0}, {HALF*h+4096*s}",
                f"s_add_u32 s75, s{sACT}, {drow*4096+128*h}",
                f"buffer_load_dwordx4 v{vD0 if s < 4 else vD1}, {sr(RWS)}, s75 offen sc1 lds ; @def:d{h}_{s}"]

    PF = 4
    for gi in range(PF):
        emit(a, issue(groups[gi]))
    for rc in range(3):
        a(f"ds_read_b128 {vr(BASE+8*rc,4)}, v{vOB} offset:{8192*rc}")
        a(f"ds_read_b128 {vr(BASE+8*rc+4,4)}, v{vOB} offset:{8192*rc+16}")
    rq = []
    fl = lambda l: [t for g in l for t in g]
    for rnd in range(3):
        acc = ACCS[rnd & 1]
        touched = set()
        stamp(a, f"r{rnd}")
        if rnd == 0:
            other = []
        elif rnd == 1:
            other = epi_fill(0) + [["; @use:wd0", "s_barrier"]] + wr(0) + w2_job()
        else:
            other = epi_fill(1, toks="@use:wr1") + fl(wd(1) + wd(2)) + ["v_accvgpr_read_b32 v8, a242", "v_accvgpr_read_b32 v9, a243"]
        nm_ = 0
        for gi, (rn, r, k) in enumerate(groups):
            if rn != rnd:
                continue
            ps = pairs_of(rnd, k)
            if gi + PF < len(groups):
                rq += issue(groups[gi + PF])
            if ps:
                while any(f"@def:cv{rnd}_{r}_{k}" in t for t in rq):
                    a(rq.pop(0))
                a(f"; @use:cv{rnd}_{r}_{k}")
            for pi, (q, c) in enumerate(ps):
                t = (q + c) >> 1 if rnd == 0 else q + c
                cin = vr(acc + 4 * t, 4) if t in touched else "0"
                touched.add(t)
                a(f"v_mfma_f32_16x16x32_bf16 {vr(acc+4*t,4)}, {vr(fa[(rnd,r,q)],4)}, {vr(fb[(rnd,r,c)],4)}, {cin}")
                nm_ += 1
                slots = 2 if pi + 1 < len(ps) else 1
                if rq and slots:
                    a(rq.pop(0))
                    slots -= 1
                if len(rq) > 6 and slots:
                    a(rq.pop(0))
                    slots -= 1
                while slots and other and nm_ >= 3:
                    emit(a, [other.pop(0)])
                    slots -= 1
            for idx in range(8):
                if last_level(rnd, idx) == k:
                    free.append(fa[(rnd, r, idx)])
                    free.append(fb[(rnd, r, idx)])
        print(f"round {rnd}: {len(other)} fillers left over")
        emit(a, other)
        stamp(a, f"w{rnd}")
        if rnd == 2:
            emit(a, [hflag(1)])
        nt = 4 if rnd == 0 else 8
        for c in range(nt):
            tok = f" ; @def:red{rnd}" if c == nt - 1 else ""
            a(f"ds_write_b128 v{[vRW0, vRW1, vRW2][rnd]}, {vr(acc+4*c,4)} offset:{512*c}{tok}")
        if rnd == 1:
            emit(a, [hflag(0)])
    assert not rq
    for k in range(4):
        a(f"v_mov_b32 v{ONE+k}, s{sONE}")
    a(f"buffer_load_dword v{vPD}, v8, {sr(RWS)}, s{sPH0} offen sc1")
    emit(a, epi_fill(2, plain=False))
    stamp(a, "conv")
    a(f"buffer_load_dword v{TMP}, v9, {sr(RWS)}, s{sPH1} offen sc1")
    for k, r in enumerate([vD0, vD1, vPL0, vPL1, vRA]):
        a(f"v_accvgpr_read_b32 v{r}, a{240+k}")
    for ct in range(1, 4):
        a(f"v_xor_b32 v{vRA+ct}, {32*ct}, v{vRA}")
    a(f"v_cmp_ne_u32 vcc, s{sTAG}, v{vPD}")
    a("s_cmp_eq_u64 vcc, 0")
    a(f"s_cselect_b32 s64, s{sACT}, {BIG:#x}")
    a("s_cselect_b32 s63, 1, 0")
    emit(a, [[t.replace(f"s{sACT},", "s64,") for t in dma(0, s)] for s in range(4)])
    a("; @use:wd2")
    a("s_barrier")
    emit(a, wr(1) + wr(2))
    interleave(a, [m for s in range(0, 6) for m in cs(s)], wd(3), start=2, every=3)
    emit(a, [hflag(2), ["; @use:w2st", f"buffer_store_dword v{vTAGV}, v{vFLAG}, {sr(RWS)}, s{sFW2O} offen sc1"]])
    stamp(a, "flag2")
    a("s_cmp_eq_u32 s63, 1")
    a("s_cbranch_scc1 HAVE0")
    poll(a, vPL0, sPH0, vPD)
    emit(a, [[t.split(" ; @def")[0] for t in dma(0, s)] for s in range(4)])
    a("s_waitcnt vmcnt(0)")
    a.label("HAVE0")
    stamp(a, "pollH0")
    BF = 96

    def reads(h, s):
        o = []
        gs = 20 * h + s
        for ct in range(4):
            for hh in range(2):
                tok = f" ; @def:bf{gs}" if ct == 3 and hh == 1 else ""
                o.append(f"ds_read_b64_tr_b16 {vr(BF+16*(gs&1)+4*ct+2*hh,2)}, v{vRA+ct} offset:{4096*(gs%16)+512*hh}{tok}")
        if gs % 16 == 15:
            o += [f"v_add_u32 v{vRA+ct}, 0x10000, v{vRA+ct}" for ct in range(4)]
        return o

    def mf(h, s):
        gs = 20 * h + s
        b0 = vr(BF + 16 * (gs & 1), 4)
        o = [f"v_mfma_f32_16x16x32_bf16 {vr(RS,4)}, {vr(ONE,4)}, {b0}, {'0' if s == 0 else vr(RS,4)}",
             f"v_mfma_f32_16x16x32_bf16 {vr(GR,4)}, {b0}, {b0}, {'0' if s == 0 else vr(GR,4)}"]
        for ct in range(4):
            for r in range(3):
                acc = vr(48 * h + 12 * ct + 4 * r, 4)
                o.append(f"v_mfma_f32_16x16x32_bf16 {acc}, {ar(12*s+4*r,4)}, {vr(BF+16*(gs&1)+4*ct,4)}, {'0' if s == 0 else acc}")
        return o

    def sync(toks):
        a("; " + " ".join("@use:" + t for t in toks))
        a("s_barrier")

    def res_reads(h):
        o = []
        for sg in range(3):
            o.append(f"ds_read_b64_tr_b16 {vr(HRES[h]+2*sg,2)}, v{vRES+sg}" + (f" ; @def:res{h}" if sg == 2 else ""))
        if h == 0:
            o += [f"v_add_u32 v{vRES+sg}, {HALF}, v{vRES+sg}" for sg in range(3)]
        return o

    def stat_calc():
        return [f"v_mul_f32 v{NM}, {f2u(-1.0/D):#x}, v{RS}",
                f"v_cndmask_b32 v{TMP}, v{GR}, v{GR+1}, s[66:67]",
                f"v_cndmask_b32 v{TMP+1}, v{GR+2}, v{GR+3}, s[66:67]",
                f"v_cndmask_b32 v{TMP}, v{TMP}, v{TMP+1}, s[68:69]"]

    def stat_write(h):
        return [f"ds_write_b32 v{vMW}, v{NM} offset:{512*h}",
                f"ds_write_b32 v{vGW}, v{TMP} offset:{512*h} ; @def:mw{h}"]

    def stat_reads(h):
        o = []
        for ct in range(1, 4):
            o.append(f"v_xor_b32 v{vMR}, {128*ct}, v{vMW}")
            o.append(f"ds_read_b32 v{NM+ct}, v{vMR} offset:{512*h}")
        o.append(f"ds_read2_b32 {vr(SVH[h],2)}, v{vSC} offset0:{128*h} offset1:{128*h+16}")
        return o

    def epi1(h, plain):
        so = 13312 * h
        o = []

        def corr(ct):
            for r in range(3):
                b = 48 * h + 12 * ct + 4 * r
                if plain:
                    for k in range(4):
                        o.append(f"v_fma_f32 v{b+k}, v{NM+ct}, v{CS+4*r+k}, v{b+k}")
                else:
                    sel = "op_sel:[1,0,0] op_sel_hi:[1,1,1]" if ct & 1 else "op_sel:[0,0,0] op_sel_hi:[0,1,1]"
                    for k in (0, 2):
                        o.append(f"v_pk_fma_f32 {vr(b+k,2)}, {vr(NM+(ct&2),2)}, {vr(CS+4*r+k,2)}, {vr(b+k,2)} {sel}")

        def prod(lst):
            for g_, u_, ad in lst:
                for k in range(4):
                    o.append(f"v_max_f32 v{g_+k}, 0, v{g_+k}")
            for g_, u_, ad in lst:
                if plain:
                    for k in range(4):
                        o.append(f"v_mul_f32 v{g_+k}, v{g_+k}, v{u_+k}")
                else:
                    for k in (0, 2):
                        o.append(f"v_pk_mul_f32 {vr(g_+k,2)}, {vr(g_+k,2)}, {vr(u_+k,2)}")
            for g_, u_, ad in lst:
                o.append(f"v_cvt_pk_bf16_f32 v{g_}, v{g_}, v{g_+1}")
                o.append(f"v_cvt_pk_bf16_f32 v{g_+1}, v{g_+2}, v{g_+3}")
            for g_, u_, ad in lst:
                o.append(f"ds_write_b64 v{ad}, {vr(g_,2)} offset:{so}")

        for p in range(2):
            x, y = 48 * h + 24 * p, 48 * h + 24 * p + 12
            corr(2 * p)
            corr(2 * p + 1)
            for k in range(4):
                o.append(f"v_permlane32_swap_b32 v{x+8+k}, v{y+8+k}")
            prod([(x, x + 4, vSW + 2 * p), (y, y + 4, vSW + 2 * p + 1), (x + 8, y + 8, vSW + 4 + p)])
        o[-1] += f" ; @def:stg{h}"
        return o

    def epi2(h):
        o = [[f"; @use:stg{h}", "s_barrier"]]
        for ksl in range(3):
            o.append(f"ds_read_b128 {vr(EPO+4*ksl,4)}, v{vSR} offset:{13312*h+64*ksl}")
        if h == 0:
            o += ["s_nop 0"] * 6
        for ksl in range(3):
            tok = f" ; @def:hm{h}" if ksl == 2 else ""
            o.append(f"buffer_store_dwordx4 {vr(EPO+4*ksl,4)}, v{vL16}, {sr(RWS)}, s{[sHMA, sHMB][h]} offen offset:{1024*ksl} sc1{tok}")
        return o

    def mflag(h):
        return [f"; @use:hm{h}", f"buffer_store_dword v{vTAGV}, v{vFLAG}, {sr(RWS)}, s{[sFMA, sFMB][h]} offen sc1"]

    vW2P, vW2M = 244, 245
    vPM, vHM, vO4, vO2 = 246, 247, 249, 250
    vQ = 228
    sHML, sFMP, sOUTO = 4, 5, 6
    RB = 32768
    w2n = [0]

    def w2_load():
        n = w2n[0]
        w2n[0] += 1
        rt = n % 5
        v = vW2P if rt < 2 else vW2M if rt < 4 else vL16
        off = {0: 0, 1: 1024, 2: 0, 3: 1024, 4: 2048}[rt]
        g = [f"buffer_load_dwordx4 {ar(4*n,4)}, v{v}, {sr(RWS)}, s{sW2A if rt < 4 else sW2B} offen offset:{off} sc1"]
        if rt == 4:
            g += [f"s_add_u32 s{sW2A}, s{sW2A}, 5120", f"s_add_u32 s{sW2B}, s{sW2B}, 5120"]
        return g

    G = lambda *x: ["; @use:none"] + list(x)
    su = Lst()
    u0, u1, u2, u3, u4, u5, u6, u7 = (TMP + 2 + k for k in range(8))
    su(f"s_and_b32 s73, s{sJ}, 7")
    su("s_lshl_b32 s73, s73, 6")
    su(f"s_add_u32 s{sFW2P}, s73, {FW2:#x}")
    su(f"v_min_u32 v{vPL0}, 11, v{vLANE}")
    su(f"s_mul_i32 s73, s{sW}, 12")
    su(f"v_add_u32 v{vPL0}, s73, v{vPL0}")
    su(f"v_lshlrev_b32 v{vPL0}, 9, v{vPL0}")
    su(f"v_lshrrev_b32 v{u0}, 4, v{vLANE}     ; g")
    su(f"v_bfe_u32 v{u1}, v{vLANE}, 2, 2      ; rr")
    su(f"v_and_b32 v{u2}, 3, v{vLANE}         ; cc")
    su(f"s_lshr_b32 s72, s{sJ}, 3")
    su("s_lshl_b32 s72, s72, 1")
    su(f"s_lshr_b32 s73, s{sW}, 1")
    su("s_add_u32 s72, s72, s73")
    su(f"s_and_b32 s73, s{sJ}, 7")
    su("s_lshl_b32 s73, s73, 4              ; 16*db")
    su(f"s_and_b32 s74, s{sW}, 1")
    su("s_lshl_b32 s74, s74, 5")
    for sg in range(3):
        if sg < 2:
            su(f"v_lshl_add_u32 v{u3}, v{u0}, 3, v{u1}")
            su(f"v_add3_u32 v{u3}, v{u3}, s74, {4*sg}")
        else:
            su(f"v_lshl_add_u32 v{u3}, v{u0}, 2, v{u1}")
            su(f"v_add_u32 v{u3}, 64, v{u3}")
        su(f"v_mul_u32_u24 v{u4}, 205, v{u3}")
        su(f"v_lshrrev_b32 v{u4}, 10, v{u4}       ; dl/5")
        su(f"v_mul_u32_u24 v{u5}, 5, v{u4}")
        su(f"v_sub_u32 v{u5}, v{u3}, v{u5}         ; r5")
        su(f"v_add_u32 v{u4}, s73, v{u4}          ; P")
        su(f"v_cmp_lt_u32 s[76:77], 2, v{u5}")
        su(f"v_cmp_eq_u32 s[78:79], 2, v{u5}")
        su(f"v_subrev_u32 v{u7}, 3, v{u5}")
        su(f"v_cndmask_b32 v{u7}, v{u5}, v{u7}, s[76:77]")
        su(f"v_cndmask_b32 v{u6}, 0, 1, s[76:77]")
        su(f"v_lshl_add_u32 v{u6}, v{u4}, 1, v{u6}")
        su(f"v_lshl_add_u32 v{u6}, v{u7}, 8, v{u6}")
        su(f"v_add_u32 v{u6}, 128, v{u6}")
        su(f"v_cndmask_b32 v{u6}, v{u6}, v{u4}, s[78:79]   ; kappa")
        su(f"v_bfe_u32 v{u4}, v{u6}, 1, 1")
        su(f"v_bfe_u32 v{u5}, v{u6}, 3, 1")
        su(f"v_lshl_add_u32 v{u4}, v{u5}, 1, v{u4}")
        su(f"v_xor_b32 v{u4}, s72, v{u4}")
        su(f"v_lshlrev_b32 v{u6}, 7, v{u6}")
        su(f"v_lshl_add_u32 v{u6}, v{u4}, 5, v{u6}")
        su(f"v_lshl_add_u32 v{vRES+sg}, v{u2}, 3, v{u6}")
    su(f"v_and_b32 v{u3}, 15, v{vLANE}        ; n")
    su(f"v_lshlrev_b32 v{u4}, 2, v{u3}")
    su(f"s_lshl_b32 s73, s{sW}, 7")
    su(f"s_add_u32 s73, s73, {MS}")
    su(f"v_add_u32 v{vMW}, s73, v{u4}")
    su("s_lshl_b32 s73, s72, 7")
    su(f"s_add_u32 s73, s73, {MS}")
    su(f"v_add_u32 v{vSC}, s73, v{u4}")
    su(f"v_cmp_eq_u32 s[76:77], v{u0}, v{u1}")
    su(f"v_add_u32 v{u5}, 64, v{vMW}")
    su(f"v_mov_b32 v{u6}, {MS+1024}")
    su(f"v_cndmask_b32 v{vGW}, v{u6}, v{u5}, s[76:77]")
    su("s_mov_b32 s66, 0xaaaaaaaa")
    su("s_mov_b32 s67, 0xaaaaaaaa")
    su("s_mov_b32 s68, 0xcccccccc")
    su("s_mov_b32 s69, 0xcccccccc")
    su(f"s_lshl_b32 s73, s{sTB}, 3")
    su("s_add_u32 s73, s73, s72")
    su(f"s_mul_i32 s{sOUTO}, s73, {16*1280}")
    su(f"s_and_b32 s73, s{sJ}, 7")
    su("s_mul_i32 s73, s73, 160")
    su(f"s_add_u32 s{sOUTO}, s{sOUTO}, s73")
    su(f"v_mul_u32_u24 v{u3}, 1280, v{u3}")
    su("s_lshl_b32 s73, s74, 1              ; 64*(w&1)")
    su(f"v_lshl_add_u32 v{u4}, v{u0}, 4, v{u3}")
    su(f"v_add_u32 v{vO4}, s73, v{u4}")
    su(f"s_and_b32 s73, s{sW}, 1")
    su(f"s_mul_i32 s73, s73, {BIG:#x}")
    su("s_add_u32 s73, s73, 128")
    su(f"v_lshl_add_u32 v{u4}, v{u0}, 3, v{u3}")
    su(f"v_add_u32 v{vO2}, s73, v{u4}")
    su(f"v_and_b32 v{u3}, 15, v{vLANE}")
    su(f"v_mul_u32_u24 v{u3}, 208, v{u3}")
    su(f"s_mul_i32 s73, s{sW}, 3328")
    su(f"v_lshl_add_u32 v{u4}, v{u0}, 4, v{u3}")
    su(f"v_add_u32 v{vSR}, s73, v{u4}")
    su(f"s_mul_i32 s76, s{sW}, 48")
    su(f"v_add_u32 v{u3}, s76, v{u3}")
    su(f"v_lshl_add_u32 v{u4}, v{u0}, 3, v{u3}")
    for ct in range(4):
        su(f"s_xor_b32 s73, s{sW}, {ct}")
        su("s_mul_i32 s73, s73, 3328")
        su(f"v_add_u32 v{vSW+ct}, s73, v{u4}")
    su(f"v_and_b32 v{u4}, 1, v{u0}")
    su(f"v_lshl_add_u32 v{u3}, v{u4}, 3, v{u3}")
    su(f"v_lshrrev_b32 v{u4}, 5, v{vLANE}")
    su(f"v_xor_b32 v{u4}, s{sW}, v{u4}")
    su(f"v_mul_u32_u24 v{u5}, 3328, v{u4}")
    su(f"v_add3_u32 v{vSW+4}, v{u5}, v{u3}, 32")
    su(f"v_xor_b32 v{u4}, 2, v{u4}")
    su(f"v_mul_u32_u24 v{u5}, 3328, v{u4}")
    su(f"v_add3_u32 v{vSW+5}, v{u5}, v{u3}, 32")
    su(f"s_lshl_b32 s73, s{sTB}, 3")
    su(f"s_add_u32 s73, s73, s{sW}")
    su("s_mul_i32 s73, s73, 49152")
    su(f"s_mul_i32 s74, s{sJ}, 3072")
    su("s_add_u32 s73, s73, s74")
    su(f"s_add_u32 s{sHMA}, s73, {HM:#x}")
    su(f"s_add_u32 s{sHMB}, s73, {HM + 4*49152:#x}")
    su(f"s_lshl_b32 s73, s{sTB}, 4")
    su(f"s_add_u32 s73, s73, s{sJ}")
    su("s_lshl_b32 s73, s73, 2")
    su(f"s_add_u32 s73, s73, s{sW}")
    su("s_lshl_b32 s73, s73, 6")
    su(f"s_add_u32 s{sFMA}, s73, {FM:#x}")
    su(f"s_add_u32 s{sFMB}, s73, {FM + 65536:#x}")
    su(f"s_and_b32 s73, s{sJ}, 7")
    su("s_mul_i32 s74, s73, 245760")
    su(f"s_mul_i32 s73, s{sW}, 61440")
    su("s_add_u32 s74, s74, s73")
    su(f"s_add_u32 s{sW2A}, s74, {W2P:#x}")
    su(f"s_add_u32 s{sW2B}, s74, {W2P + 2048:#x}")
    su(f"s_and_b32 s73, s{sW}, 1")
    su("s_lshl_b32 s73, s73, 11")
    su(f"v_add_u32 v{vW2P}, s73, v{vL16}")
    su(f"v_xor_b32 v{vW2M}, 0x800, v{vW2P}")
    suA = list(su)
    su = Lst()
    su(f"s_lshr_b32 s72, s{sJ}, 3            ; gamma")
    su(f"v_bfe_u32 v{u0}, v{vLANE}, 1, 2")
    su(f"s_lshl_b32 s73, s{sW}, 2")
    su(f"v_add_u32 v{u0}, s73, v{u0}")
    su(f"v_lshlrev_b32 v{u0}, 2, v{u0}")
    su(f"v_and_b32 v{u1}, 1, v{vLANE}")
    su("s_lshl_b32 s73, s72, 1")
    su(f"v_add3_u32 v{u0}, v{u0}, v{u1}, s73    ; 4j+wave")
    su(f"v_lshlrev_b32 v{vPM}, 6, v{u0}")
    su(f"s_lshl_b32 s{sFMP}, s{sTB}, 12")
    su(f"s_add_u32 s{sFMP}, s{sFMP}, {FM:#x}")
    su(f"s_lshr_b32 s73, s{sW}, 1")
    su("s_mul_i32 s74, s73, 49152")
    su(f"v_add_u32 v{vHM}, s74, v{vL16}")
    su("s_xor_b32 s73, s73, 1")
    su("s_mul_i32 s74, s73, 49152")
    su(f"v_add_u32 v{vHM+1}, s74, v{vL16}")
    su(f"s_lshl_b32 s73, s{sTB}, 2")
    su("s_add_u32 s73, s73, s72")
    su("s_mul_i32 s73, s73, 98304")
    su(f"s_mul_i32 s74, s{sW}, 12288")
    su("s_add_u32 s73, s73, s74")
    su(f"s_add_u32 s{sHML}, s73, {HM:#x}")
    for rel in range(1, 4):
        su(f"s_xor_b32 s73, s{sW}, {rel}")
        su("s_mul_i32 s73, s73, 6144")
        su(f"s_add_u32 s73, s73, {RB + (rel-1)*2048}")
        su(f"v_add_u32 v{vQ+rel-1}, s73, v{vL16}")
    su(f"s_lshr_b32 s73, s{sW}, 1")
    su("s_lshl_b32 s73, s73, 12")
    su(f"s_add_u32 s73, s73, {RB + 24576}")
    su(f"v_add_u32 v{vQ+6}, s73, v{vL16}")
    su(f"v_add_u32 v{vQ+3}, s{sM0}, v{vQ+6}")
    su(f"v_xor_b32 v{vQ+4}, 0x1000, v{vQ+3}")
    su(f"s_mul_i32 s73, s{sW}, 6144")
    su(f"s_add_u32 s73, s73, {RB}")
    su(f"v_add_u32 v{vQ+5}, s73, v{vL16}")
    HX = [160, 132]
    suB = list(su)

    def flat(lst):
        o = []
        for g in lst:
            if isinstance(g, list) and not any("@use" in t for t in g):
                o += g
            else:
                o.append(g)
        return o

    def step(main, rd, extra, vm=(), width=2):
        rd = list(rd)
        extra = flat(extra)
        vm = list(vm)
        pos = {}
        for k, g in enumerate(vm):
            pos.setdefault(1 + (k * (len(main) - 1)) // len(vm), []).extend(g)
        carry = []
        for i, m in enumerate(main):
            a(m)
            slots = width if i + 1 < len(main) else width - 1
            if i in pos:
                carry += pos[i]
            if rd:
                a(rd.pop(0))
                slots -= 1
            while slots and carry:
                a(carry.pop(0))
                slots -= 1
            while slots and extra:
                emit(a, [extra.pop(0)])
                slots -= 1
        emit(a, rd)
        emit(a, carry)
        return extra

    sync(["d0_3"])
    stamp(a, "acts")
    emit(a, reads(0, 0))
    poll(a, vPL1, sPH1, TMP, pre_issued=True)
    stamp(a, "pollH1")
    Dm = lambda h, lo, hi: [dma(h, k) for k in range(lo, hi)]
    pl2 = [f"buffer_load_dword v{vPD}, v{vPL1}, {sr(RWS)}, s{sPH2} offen sc1"]
    plw = [f"buffer_load_dword v{vPD}, v{vPL0}, {sr(RWS)}, s{sFW2P} offen sc1"]
    fw2flag = ["; @use:w2st", f"buffer_store_dword v{vTAGV}, v{vFLAG}, {sr(RWS)}, s{sFW2O} offen sc1"]
    plan = {0: Dm(0, 4, 8), 1: wd(4)[:5], 2: wd(4)[5:] + Dm(0, 8, 10) + wd(5)[:2], 3: Dm(0, 10, 12) + wd(5)[2:4], 4: wd(5)[4:] + [pl2],
            5: wd(6)[:4], 6: wd(6)[4:] + Dm(0, 12, 14), 7: Dm(0, 14, 16) + wd(7)[:2], 8: wd(7)[2:],
            9: Dm(0, 16, 18) + wd(8)[:2], 10: wd(8)[2:], 11: Dm(0, 18, 20) + wd(9)[:2], 12: wd(9)[2:],
            13: Dm(1, 0, 2) + Dm(1, 14, 15), 14: Dm(1, 15, 18), 15: Dm(1, 8, 11), 16: Dm(1, 11, 14) + [plw], 17: Dm(1, 2, 5), 18: Dm(1, 5, 8), 19: Dm(1, 18, 20)}
    syncs = {3: (["wd3", "d0_7"], 3), 5: (["wr7", "wd4"], 4), 7: (["wr9", "wd5", "d0_11"], 5), 9: (["wr11", "wd6"], 6),
             11: (["wr13", "wd7", "d0_15"], 7), 13: (["wr15", "wd8"], 8), 15: (["wr17", "wd9", "d0_19"], 9), 17: (["wr19", "d1_1"], None)}
    q = suA
    for s in range(20):
        if s == 6:
            poll(a, vPL1, sPH2, vPD, pre_issued=True)
            stamp(a, "pollH2")
        if s in syncs:
            sync(syncs[s][0])
            if syncs[s][1]:
                q = wr(syncs[s][1]) + q
        stamp(a, f"a{s}")
        a(f"; @use:bf{s} @use:wr{s}")
        main = mf(0, s) + (cs(s) if s >= 6 else [])
        if s == 19:
            assert not q
            poll(a, vPL0, sFW2P, vPD, pre_issued=True)
            q = 3 * ["s_nop 0"] + stat_calc()
        q = step(main, reads(0, s + 1) if s < 19 else res_reads(0) + reads(1, 0), q, plan[s], width=3 if s < 8 else 2)
        if not q and s < 19 and suA:
            print("pass A set-up done in step", s)
            suA = None
    emit(a, q)
    stamp(a, "passA")
    sync(["res0"])
    emit(a, stat_write(0))
    q = ["s_nop 0", ["; @use:mw0 @use:d1_4", "s_barrier"]] + stat_reads(0) + epi1(0, True) + epi2(0) + suB
    for s in range(20):
        if s == 3:
            sync(["d1_19"])
        stamp(a, f"b{s}")
        a(f"; @use:bf{20+s}")
        vm = []
        while len(vm) < (3 if s & 1 else 2) and w2n[0] < 3 * s:
            vm.append(w2_load())
        if s == 13:
            vm.append(mflag(0))
        if s == 17:
            vm.append([f"buffer_load_dword v{vPD}, v{vPM}, {sr(RWS)}, s{sFMP} offen sc1"])
        if s == 19:
            assert not q
            q = 6 * ["s_nop 0"] + stat_calc() + stat_write(1)
        had = len(q)
        q = step(mf(1, s), reads(1, s + 1) if s < 19 else res_reads(1), q, vm)
        if had > len(suB) >= len(q):
            print("epilogue A done in step", s)
    assert not q
    stamp(a, "passB")
    sync(["mw1"])
    emit(a, stat_reads(1))
    HF = 0

    def hm_loads(h, order):
        o = []
        for ks, c in order:
            o.append([f"s_add_u32 s75, s{sHML}, {4*49152*h + 4096*(ks>>2)}",
                      f"buffer_load_dwordx4 {vr(HF+8*ks+4*c,4)}, v{vHM+c}, {sr(RWS)}, s75 offen offset:{1024*(ks&3)} sc1"])
        return o

    ksmaj = [(ks, c) for ks in range(12) for c in range(2)]
    cmaj = [(ks, c) for c in (1, 0) for ks in range(12)]
    wl = []
    while w2n[0] < 60:
        wl.append(w2_load())
    print("W2 loads left after pass B:", len(wl))
    poll(a, vPM, sFMP, vPD, pre_issued=True)
    stamp(a, "pollMA")
    hl = hm_loads(0, ksmaj)
    rest = interleave(a, epi1(1, False), hl[:12], start=2, every=6)
    assert not rest
    hl = hl[12:]
    emit(a, epi2(1))
    stamp(a, "epiB")
    AC = 188
    RDR = 96
    rdr = [96 + 4 * k for k in range(8)] + [148, 152]

    def g2_pass(h, order, loads, pre, extra):
        emit(a, loads[:pre])
        loads = loads[pre:]
        fill = Lst()
        den_from(fill, SVH[h], SVH[h] + 1, 146)
        for k in range(6):
            fill(f"v_lshlrev_b32 v{HX[h]+2*k}, 16, v{HRES[h]+k}")
            fill(f"v_and_b32 v{HX[h]+2*k+1}, 0xffff0000, v{HRES[h]+k}")
        ro = 32768 * h
        wr1 = [(vQ + 1, 20, 0), (vQ + 1, 24, 1024), (vQ + 2, 28, 0), (vQ + 2, 32, 1024), (vQ + 4, 36, 0)]
        wr0 = [(vQ, 8, 0), (vQ, 12, 1024), (vQ + 3, 16, 0)]
        wf = lambda l: [f"ds_write_b128 v{va_}, {vr(AC+r,4)} offset:{ro+off}" for va_, r, off in l]
        n = 0
        for i, (ks, c) in enumerate(order):
            for r in range(5):
                acc = vr(AC + 20 * c + 4 * r, 4)
                for g in loads:
                    for t in g:
                        assert not t.startswith(f"buffer_load_dwordx4 {ar(20*ks+4*r,4)},") and not t.startswith(f"buffer_load_dwordx4 {vr(HF+8*ks+4*c,4)},"), t
                a(f"v_mfma_f32_16x16x32_bf16 {acc}, {ar(20*ks+4*r,4)}, {vr(HF+8*ks+4*c,4)}, {'0' if ks == 0 else acc}")
                n += 1
                if n in extra:
                    emit(a, [extra[n]])
                elif loads and n % 3 == 0:
                    emit(a, [loads.pop(0)])
                elif fill:
                    a(fill.pop(0))
                elif order is cmaj and n > 70 and n % 5 == 0 and wr1:
                    emit(a, wf([wr1.pop(0)]))
        assert not loads and not fill
        emit(a, wf(wr1 + wr0))

    def g2_fin(h):
        ro = 32768 * h
        a("s_waitcnt lgkmcnt(0)")
        a("s_barrier")
        for k in range(6):
            a(f"ds_read_b128 {vr(rdr[k],4)}, v{vQ+5} offset:{ro+1024*k}")
        for k in range(4):
            a(f"ds_read_b128 {vr(rdr[6+k],4)}, v{vQ+6} offset:{ro+1024*k}")
        for k in range(6):
            for e in (0, 2):
                a(f"v_pk_add_f32 {vr(AC+4*(k&1)+e,2)}, {vr(AC+4*(k&1)+e,2)}, {vr(rdr[k]+e,2)}")
        for e in (0, 2):
            a(f"v_pk_add_f32 {vr(rdr[6]+e,2)}, {vr(rdr[6]+e,2)}, {vr(rdr[7]+e,2)}")
            a(f"v_pk_add_f32 {vr(rdr[8]+e,2)}, {vr(rdr[8]+e,2)}, {vr(rdr[9]+e,2)}")
        for e in (0, 2):
            a(f"v_pk_add_f32 {vr(AC+8+e,2)}, {vr(rdr[6]+e,2)}, {vr(rdr[8]+e,2)}")
        for k in range(6):
            a(f"v_pk_fma_f32 {vr(AC+2*k,2)}, {vr(AC+2*k,2)}, {vr(SVH[h],2)}, {vr(HX[h]+2*k,2)} op_sel:[0,1,0] op_sel_hi:[1,1,1]")
        for k in range(6):
            a(f"v_cvt_pk_bf16_f32 v{96+k}, v{AC+2*k}, v{AC+2*k+1}")
        a(f"buffer_store_dwordx4 v[96:99], v{vO4}, {sr(ROUT)}, s{sOUTO} offen")
        a(f"buffer_store_dwordx2 v[100:101], v{vO2}, {sr(ROUT)}, s{sOUTO} offen")
        if h == 0:
            a(f"s_add_u32 s{sOUTO}, s{sOUTO}, {64*1280}")

    mix = []
    for k in range(max(len(hl), len(wl))):
        if k < len(hl):
            mix.append(hl[k])
        if k < len(wl):
            mix.append(wl[k])
    print("g2A loads", len(mix))
    g2_pass(0, ksmaj, mix, 2, {55: mflag(1), 110: [f"s_add_u32 s{sFMP}, s{sFMP}, 65536",
                                                  f"buffer_load_dword v{vPD}, v{vPM}, {sr(RWS)}, s{sFMP} offen sc1"]})
    stamp(a, "g2A")
    poll(a, vPM, sFMP, vPD, pre_issued=True)
    stamp(a, "pollMB")
    hl = hm_loads(1, cmaj)
    emit(a, hl[:12])
    g2_fin(0)
    stamp(a, "finA")
    g2_pass(1, cmaj, hl[12:], 0, {})
    stamp(a, "g2B")
    g2_fin(1)
    a("s_cmp_eq_u32 s2, 0")
    a("s_cbranch_scc0 NOGEN")
    a(f"s_cmp_eq_u32 s{sW}, 0")
    a("s_cbranch_scc0 NOGEN")
    a(f"buffer_store_dword v{vTAGV}, v{vFLAG}, {sr(RWS)}, 0 offen sc1")
    a.label("NOGEN")
    if PROF:
        a("s_waitcnt vmcnt(0)")
        a("s_memtime s[100:101]")
        a("s_memrealtime s[76:77]")
        a("s_waitcnt lgkmcnt(0)")
        a("v_mov_b32 v1, 0")
        for k in range(11):
            a(f"v_writelane_b32 v1, s{80+2*k}, {k}")
        a("v_writelane_b32 v1, s76, 11")
        a(f"s_add_u32 s40, s{sWS}, {PROFBASE:#x}")
        a(f"s_addc_u32 s41, s{sWS+1}, 0")
        a("s_mov_b32 s42, 0x40000")
        a(f"v_lshlrev_b32 v2, 2, v{vLANE}")
        a("s_lshl_b32 s72, s2, 2")
        a(f"s_add_u32 s72, s72, s{sW}")
        a("s_lshl_b32 s72, s72, 7")
        a("s_mov_b64 exec, 0xffffffff")
        a("buffer_store_dword v1, v2, s[40:43], s72 offen")
    a.label("END")
    a("s_endpgm")
    return a


def main(path):
    ref = open(f"cdna_kernels/{NAME}.s.ref").read().split("\n")
    head = [l for l in ref if l.startswith(";") and "@launch" not in l]
    out = head[:]
    out.append("; @launch grid=(256,1,1) block=(256,1,1) lds=163840")
    out.append('.amdgcn_target "amdgcn-amd-amdhsa--gfx950"')
    out.append(".text")
    a = gen()
    for i in a.ins:
        if "CODE_LIM" in i.text:
            i.text = i.text.replace("CODE_LIM", "0x1230")
    b, d, e = kernel_text(NAME + "_kernel", a, auto=True, align=True)
    size = sum(getattr(i, "size", 0) for i in a.ins)
    lim = (size - 256) & ~15
    b = b.replace("v_min_u32 v2, 0x1230, v2", f"v_min_u32 v2, {lim:#x}, v2")
    out.append(b)
    out.append('.section .rodata,"a"')
    out.append(d)
    open(path, "w").write("\n".join(out))


if __name__ == "__main__":
    main(sys.argv[1] if len(sys.argv) > 1 else f"cdna_kernels/{NAME}.s")
```

```python
import os
import sys
import struct
from asmgen import Asm, kernel_text

NAME = "sequential_preLN__ssm_conv_s4__glu_gated_reglu__prompt"
L, D, N, F = 2048, 640, 192, 1536
PROF = bool(os.environ.get("PROF", ""))
PROFBASE = 0x2000000

FW2 = 0x1000
GEN, FW, FH, FM, S1, ST2 = 0x0, 0x70000, 0x10000, 0x40000, 0x60000, 0x80000
CSP = 0xC0000
XR, HT, W1P, W2P, HM, WS_END = 0x100000, 0x500000, 0x800000, 0xC00000, 0xE00000, 0x1400000
SZ_X = D * L * 2
SZ_W = D * F * 2
TAB, TABS = 0, 2816
STG, STGS = 25600, 15232
XQ = 88832
WTS = 114688
R0B, R1B = 0, 24320
BSB = 25600
CHB, CHS = 57344, 18944
RT = [139264, 114688, 90112]
C_U0, C_U2, C_KO, C_KE = 0, 5152, 10304, 14528
R2B = CHB
HALF = 81920
SPIN = 200000

sWG, sW = 2, 3
sX, sPAR, sLDT, sDSK, sWGP, sWUP, sWDP, sOUT, sWS = 4, 6, 18, 20, 24, 26, 28, 30, 34
RWS, RX, RW, RWD, ROUT = 36, 40, 44, 48, 52
sTAG = 56
sP, sE, sCH0, sCH1 = 57, 58, 59, 60
sTB, sJ = 61, 62
sLO, sHI, sONE = 63, 64, 65
sD0 = 22
DSEL = [(22, 23), (66, 67), (68, 69)]
sT = 70
vLANE, vL16, vFLAG, vTAGV, vW1 = 240, 241, 242, 243, 244
BIG = 0x7FFFFFF0


def f2u(x):
    return struct.unpack("<I", struct.pack("<f", x))[0]


def vr(b, n):
    return f"v[{b}:{b+n-1}]"


def ar(b, n):
    return f"a[{b}:{b+n-1}]"


def sr(b, n=4):
    return f"s[{b}:{b+n-1}]"


class Lst(list):
    def __call__(self, t):
        self.append(t)


PSEL = [x for x in os.environ.get("PROF", "").split(",") if x]
assert len(PSEL) <= 8


def stamp(a, name):
    if name in PSEL:
        k = PSEL.index(name)
        a(f"s_memtime s[{84+2*k}:{85+2*k}] ; stamp")


def srd(a, s, base, size):
    a(f"s_mov_b32 s{s}, s{base}")
    a(f"s_mov_b32 s{s+1}, s{base+1}")
    a(f"s_mov_b32 s{s+2}, {size:#x}")
    a(f"s_mov_b32 s{s+3}, 0x20000")


def interleave(a, main, fill, start=0, per=1, every=1):
    k = 0
    for i, m in enumerate(main):
        for t in (m if isinstance(m, list) else [m]):
            a(t)
        if i >= start and (i - start) % every == 0:
            for _ in range(per):
                if k < len(fill):
                    g = fill[k]
                    for t in (g if isinstance(g, list) else [g]):
                        a(t)
                    k += 1
    return fill[k:]


def emit(a, lst):
    for g in lst:
        for t in (g if isinstance(g, list) else [g]):
            a(t)


def ln_den(a, vs, vq, t0):
    inv = f2u(1.0 / D)
    a(f"v_mul_f32 v{vs}, {inv:#x}, v{vs}")
    a(f"v_mul_f32 v{vq}, {inv:#x}, v{vq}")
    a(f"v_fma_f32 v{vq}, -v{vs}, v{vs}, v{vq}")
    a(f"v_max_f32 v{vq}, 0, v{vq}")
    a(f"v_cvt_pk_bf16_f32 v{t0}, v{vq}, v{vq}")
    a(f"v_lshlrev_b32 v{vq}, 16, v{t0}")
    a(f"v_add_f32 v{vq}, {f2u(1e-5):#x}, v{vq}")
    a(f"v_cvt_pk_bf16_f32 v{t0}, v{vq}, v{vq}")
    a(f"v_lshlrev_b32 v{vq}, 16, v{t0}")
    a(f"v_sqrt_f32 v{vq}, v{vq}")
    a(f"v_cvt_pk_bf16_f32 v{t0}, v{vq}, v{vq}")
    a(f"v_lshlrev_b32 v{vq}, 16, v{t0}")
    a(f"v_rcp_f32 v{vq}, v{vq}")


def den_from(a, vm, vq, t0):
    a(f"v_mul_f32 v{vq}, {f2u(1.0 / D):#x}, v{vq}")
    a(f"v_fma_f32 v{vq}, -v{vm}, v{vm}, v{vq}")
    a(f"v_max_f32 v{vq}, 0, v{vq}")
    a(f"v_cvt_pk_bf16_f32 v{t0}, v{vq}, v{vq}")
    a(f"v_lshlrev_b32 v{vq}, 16, v{t0}")
    a(f"v_add_f32 v{vq}, {f2u(1e-5):#x}, v{vq}")
    a(f"v_cvt_pk_bf16_f32 v{t0}, v{vq}, v{vq}")
    a(f"v_lshlrev_b32 v{vq}, 16, v{t0}")
    a(f"v_sqrt_f32 v{vq}, v{vq}")
    a(f"v_cvt_pk_bf16_f32 v{t0}, v{vq}, v{vq}")
    a(f"v_lshlrev_b32 v{vq}, 16, v{t0}")
    a(f"v_rcp_f32 v{vq}, v{vq}")
    a(f"v_mul_f32 v{vq}, v{vq}, v{vq}")


def cmuls(a, lst):
    for d, x, y in lst:
        assert d not in (x, y)
        a(f"v_pk_mul_f32 {vr(d,2)}, {vr(x,2)}, {vr(y,2)} op_sel:[0,0] op_sel_hi:[0,1]")
    for d, x, y in lst:
        a(f"v_pk_fma_f32 {vr(d,2)}, {vr(x,2)}, {vr(y,2)}, {vr(d,2)} op_sel:[1,1,0] op_sel_hi:[1,0,1] neg_lo:[1,0,0]")


_pollid = [0]


def poll(a, vaddr, soff, vdst, pre_issued=False):
    n = _pollid[0]
    _pollid[0] += 1
    a(f"s_mov_b32 s{sT}, 0")
    if pre_issued:
        a(f"v_cmp_ne_u32 vcc, s{sTAG}, v{vdst}")
        a(f"s_cbranch_vccz POLLD{n}")
    a.label(f"POLL{n}")
    a(f"buffer_load_dword v{vdst}, v{vaddr}, {sr(RWS)}, s{soff} offen sc1")
    a(f"s_add_u32 s{sT}, s{sT}, 1")
    a(f"s_cmp_gt_u32 s{sT}, {SPIN}")
    a("s_waitcnt vmcnt(0)")
    a(f"s_cbranch_scc1 POLLD{n}")
    a(f"v_cmp_ne_u32 vcc, s{sTAG}, v{vdst}")
    a(f"s_cbranch_vccnz POLL{n}")
    a.label(f"POLLD{n}")


def flag_store(a, soff):
    a(f"buffer_store_dword v{vTAGV}, v{vFLAG}, {sr(RWS)}, s{soff} offen sc1")


W1EV = int(os.environ.get("W1EV", "5"))
NW1C = int(os.environ.get("NW1C", "48"))
W1AT = int(os.environ.get("W1AT", "0"))
NW1A = int(os.environ.get("NW1A", "6"))
NW1B = int(os.environ.get("NW1B", "9"))


sW1D, sW1STEP, sW1ST, sCSST, sFWO, sFHO, sH0, sH1, sH2 = 4, 5, 6, 7, 8, 9, 10, 11, 12
sW1L, sCSL, sPH0, sPH1, sPH2, sACT, sM0, sXR, sWT = 13, 14, 15, 16, 17, 18, 19, 20, 21
sHMA, sHMB, sFMA, sFMB, sW2R, sW2ST, sFW2O, sFW2P, sW2A, sW2B = 24, 25, 26, 27, 28, 29, 30, 31, 32, 33
sFWP = 71
vH, vA, vB, vB0, vRW1, vRW0, vRW2 = 1, 2, 3, 4, 5, 6, 7
vRR0, vRR1, vRQ0, vRQ1 = 12, 13, 14, 15
vRZ0, vRZ1, vH0, vPU, vPB, vOB = 244, 245, 246, 247, 248, 249
vPD = 255
vWA, vWB, vT0 = 230, 233, 251
sWJ, sM3 = 13, 14
vW2V, vW2R0, vW2R1 = 236, 237, 238


def gen():
    a = Asm()
    a("s_cmp_ge_u32 s2, 256")
    a("s_cbranch_scc1 END")
    if PROF:
        a("s_memrealtime s[80:81] ; stamp")
        a("s_memtime s[82:83] ; stamp")
    a("s_load_dwordx16 s[4:19], s[0:1], 0")
    a("s_load_dwordx16 s[20:35], s[0:1], 64")
    a("v_lshrrev_b32 v1, 6, v0")
    a(f"v_and_b32 v{vLANE}, 63, v0")
    a(f"v_readfirstlane_b32 s{sW}, v1")
    a(f"v_lshlrev_b32 v{vL16}, 4, v{vLANE}")
    a("s_getpc_b64 s[70:71]")
    a("s_lshr_b32 s72, s2, 3")
    a("s_lshl_b32 s72, s72, 12")
    a(f"v_lshlrev_b32 v{vH}, 4, v0           ; 16*tid")
    a(f"v_add_u32 v2, s72, v{vH}")
    a("v_min_u32 v2, CODE_LIM, v2")
    a("global_load_dwordx4 v[196:199], v2, s[70:71]")
    a(f"s_lshr_b32 s{sP}, s2, 1")
    a(f"s_and_b32 s{sE}, s2, 1")
    a(f"s_mul_i32 s{sCH0}, s{sP}, 5")
    a(f"s_mul_i32 s{sCH1}, s{sE}, 3")
    a(f"s_add_u32 s{sCH1}, s{sCH1}, s{sCH0}")
    a(f"s_add_u32 s{sCH0}, s{sCH0}, 2")
    a(f"s_and_b32 s{sTB}, s2, 1")
    a(f"s_lshl_b32 s{sTB}, s{sTB}, 3")
    a("s_bfe_u32 s72, s2, 0x30003")
    a(f"s_add_u32 s{sTB}, s{sTB}, s72")
    a(f"s_bfe_u32 s{sJ}, s2, 0x20001")
    a(f"s_lshl_b32 s{sJ}, s{sJ}, 2")
    a("s_lshr_b32 s72, s2, 6")
    a(f"s_add_u32 s{sJ}, s{sJ}, s72")
    a(f"s_mov_b32 s{sONE}, 0x3f803f80")
    a(f"v_cmp_eq_u32 vcc, 0, v{vLANE}")
    a(f"v_mov_b32 v{vFLAG}, {BIG:#x}")
    a(f"v_cndmask_b32 v{vFLAG}, v{vFLAG}, 0, vcc")
    PB = 200
    TH = [0, 0, 1, 2, 0, 1, 2, 0, 1, 2]

    def wd(g):
        o = []
        for s in (2 * g, 2 * g + 1):
            drow = 160 * s if s < 4 else 80 * ((s - 4) & 7) + (1 if s >= 12 else 0)
            for n in range(3):
                x = [f"s_add_u32 s71, s{sWJ}, {drow*3072}"] if n == 0 else []
                x += [f"s_add_u32 m0, s{sM3}, {RT[TH[g]]+12288*(s&1)+1024*n}"]
                if n:
                    x += ["s_nop 0"] if False else []
                x += [f"buffer_load_dwordx4 v{(vWA if s < 4 else vWB)+n}, {sr(RW)}, s71 offen lds ; @def:wd{g}"]
                o.append(x)
        return o

    def wr(g):
        o = []
        for s in (2 * g, 2 * g + 1):
            for r in range(3):
                for hh in range(2):
                    tok = f" ; @def:wr{s}" if r == 2 and hh == 1 else ""
                    o.append(f"ds_read_b64_tr_b16 {ar(12*s+4*r+2*hh,2)}, v{vT0+r} offset:{RT[TH[g]]-RT[2]+12288*(s&1)+768*hh}{tok}")
        return o

    for it in range(3):
        a(f"s_add_u32 s75, s{sW}, {4*it}      ; unit")
        a("s_mul_i32 s76, s75, 11")
        a("s_lshr_b32 s76, s76, 5            ; rc = u/3")
        a("s_mul_i32 s77, s76, 3")
        a("s_sub_u32 s77, s75, s77           ; third")
        a(f"s_add_u32 s78, s{sCH1}, s76")
        a("s_sub_u32 s78, s78, 1")
        a("s_cmp_eq_u32 s76, 0")
        a(f"s_cselect_b32 s78, s{sCH0}, s78   ; channel")
        a("s_min_u32 s78, s78, 639")
        a("s_lshl_b32 s79, s78, 1")
        a(f"v_mov_b32 v{19+it}, s79")
        a("s_mul_i32 s78, s78, 384")
        a("s_lshl_b32 s77, s77, 7")
        a("s_add_u32 s78, s78, s77")
        a(f"v_lshlrev_b32 v{16+it}, 1, v{vLANE}")
        a(f"v_add_u32 v{16+it}, s78, v{16+it}")
    for r in range(PB, PB + 24):
        a(f"v_mov_b32 v{r}, 0")
    a(f"s_mul_i32 s75, s{sP}, 5")
    a(f"s_lshl_b32 s76, s{sE}, 1")
    a("s_add_u32 s75, s75, s76             ; cb")
    a("s_lshl_b32 s76, s75, 1")
    a("s_and_b32 s76, s76, 0xfffc")
    a("s_mul_i32 s72, s2, 10240            ; first row byte offset")
    a(f"s_sub_u32 s74, s{sW}, 1")
    a("s_lshl_b32 s74, s74, 10")
    a("s_add_u32 s73, s72, s74")
    a(f"s_add_u32 s74, s74, {XQ}")
    a("s_waitcnt lgkmcnt(0)")
    stamp(a, "karg")

    def param_loads(its):
        for it in its:
            for k in range(6):
                a(f"global_load_short_d16_hi v{PB+8*it+k}, v{16+it}, s[{sPAR+2*k}:{sPAR+2*k+1}]")
            a(f"global_load_short_d16_hi v{PB+8*it+6}, v{19+it}, s[{sLDT}:{sLDT+1}]")

    if os.environ.get("COLDT"):
        mode = os.environ["COLDT"]
        if mode == "w":
            srd(a, RW, sWGP, SZ_W); srd(a, RWD, sWUP, SZ_W); srd(a, RX, sWDP, SZ_W)
        srd(a, RWS, sWS, 0x8000000)
        a("s_lshl_b32 s70, s2, 2"); a(f"s_add_u32 s70, s70, s{sW}"); a("s_mul_i32 s70, s70, 1920")
        a("s_memtime s[82:83] ; stamp")
        if mode == "w":
            for k, r in enumerate((RW, RWD, RX)):
                a(f"buffer_load_dwordx4 v[{40+8*k}:{43+8*k}], v{vL16}, {sr(r)}, s70 offen")
                a(f"buffer_load_dwordx4 v[{44+8*k}:{47+8*k}], v{vL16}, {sr(r)}, s70 offen offset:1024")
        elif mode == "st":
            a("s_lshl_b32 s70, s70, 2"); a("s_add_u32 s70, s70, 0x3000000")
            for k in range(4):
                a(f"buffer_store_dwordx4 v[40:43], v{vL16}, {sr(RWS)}, s70 offen offset:{1024*k} sc1")
        elif mode == "ld":
            a("s_lshl_b32 s70, s70, 2"); a("s_add_u32 s70, s70, 0x3000000")
            for k in range(4):
                a(f"buffer_load_dwordx4 v[{40+4*k}:{43+4*k}], v{vL16}, {sr(RWS)}, s70 offen offset:{1024*k}")
        a("s_waitcnt vmcnt(0)")
        a("s_memtime s[84:85] ; stamp")
    param_loads([0])
    a(f"s_load_dword s{sTAG}, s[{sWS}:{sWS+1}], {GEN}")
    a(f"s_load_dwordx2 s[78:79], s[{sDSK}:{sDSK+1}], s76")
    srd(a, RX, sX, SZ_X)
    srd(a, RWS, sWS, WS_END)
    srd(a, RW, sWGP, SZ_W)
    srd(a, RWD, sWUP, SZ_W)
    srd(a, ROUT, sOUT, SZ_X)
    LOG2E = f2u(1.4426950408889634)
    a(f"s_mul_i32 s63, s{sW}, {STGS}")
    a(f"s_add_u32 s75, s63, {STG}")
    a(f"v_and_b32 v36, 31, v{vLANE}         ; b")
    a(f"v_bfe_u32 v37, v{vLANE}, 5, 1       ; h")
    a("v_mul_u32_u24 v35, 272, v36")
    a("v_lshl_add_u32 v35, v37, 4, v35")
    a("v_add_u32 v35, s75, v35")
    a(f"s_mul_i32 s75, s{sW}, {TABS}")
    a("v_lshlrev_b32 v8, 5, v36")
    a("v_lshl_add_u32 v8, v37, 4, v8")
    a("v_add_u32 v8, s75, v8")
    a("v_lshlrev_b32 v9, 4, v36")
    a("v_add_u32 v9, 1024, v9")
    a("v_lshlrev_b32 v10, 3, v36")
    a("v_add_u32 v10, 1536, v10")
    a("v_cmp_eq_u32 vcc, 1, v37")
    a("v_mov_b32 v11, 8")
    a("v_mov_b32 v24, 256")
    a("v_cndmask_b32 v9, v9, v10, vcc")
    a("v_cndmask_b32 v11, v11, v24, vcc")
    a("v_add_u32 v9, s75, v9")
    a("v_add_u32 v10, v9, v11")
    a("v_mul_u32_u24 v11, 384, v37")
    a("v_lshl_add_u32 v11, v36, 2, v11")
    a("v_add_u32 v11, s75, v11")
    cST, cRA, cRB, cS01, cS2, cSA = 224, 225, 226, 227, 228, 229
    a(f"v_lshrrev_b32 v24, 2, v{vLANE}      ; c16")
    a(f"v_and_b32 v25, 3, v{vLANE}          ; k")
    a("v_lshrrev_b32 v26, 1, v24")
    a("v_and_b32 v27, 1, v24               ; e")
    a("v_mul_u32_u24 v28, 5, v26")
    a("v_lshl_add_u32 v28, v27, 1, v28     ; cb")
    a("v_lshlrev_b32 v28, 1, v28")
    a("v_and_b32 v28, 0xfffc, v28")
    a("v_mul_u32_u24 v29, 2560, v25")
    a(f"s_and_b32 s76, s{sW}, 1")
    a("s_mul_i32 s75, s76, 640")
    a(f"s_add_u32 s75, s75, {XQ}")
    a(f"v_add3_u32 v{cRA}, v28, v29, s75")
    a(f"v_add_u32 v{cRB}, 1280, v{cRA}")
    a("v_and_b32 v26, 1, v26               ; parity")
    a("v_add_u32 v29, v26, v27             ; q1")
    a("v_lshlrev_b32 v30, 1, v27")
    a("v_sub_u32 v30, v26, v30")
    a("v_add_u32 v30, 2, v30               ; q0")
    a("v_lshl_add_u32 v30, v29, 16, v30")
    a("s_mov_b32 s75, 0x0202")
    a("v_mul_lo_u32 v30, v30, s75")
    a(f"v_add_u32 v{cS01}, 0x01000100, v30")
    a("v_add_u32 v29, 1, v29")
    a("s_mov_b32 s75, 0x02020202")
    a("v_mul_lo_u32 v29, v29, s75")
    a(f"v_add_u32 v{cS2}, 0x01000100, v29")
    a("v_lshlrev_b32 v24, 14, v24")
    a(f"v_lshl_add_u32 v{cST}, v25, 4, v24")
    a(f"v_lshrrev_b32 v24, 3, v{vLANE}")
    a("v_mul_u32_u24 v24, 1280, v24")
    a(f"v_and_b32 v25, 7, v{vLANE}")
    a("v_lshl_add_u32 v24, v25, 4, v24")
    a(f"v_add_u32 v{cSA}, {XQ}, v24")
    stamp(a, "f0")
    a(f"s_cmp_eq_u32 s{sW}, 0")
    a("s_cbranch_scc1 LD0")
    for n in range(4):
        a(f"s_add_u32 m0, s74, {3072*n}")
        a(f"s_add_u32 s75, s73, {3072*n}")
        if n == 3:
            a(f"s_cmp_eq_u32 s{sW}, 1")
            a(f"s_cselect_b32 s75, s75, {BIG:#x}")
        a(f"buffer_load_dwordx4 v{vL16}, {sr(RX)}, s75 offen lds")
    a("s_branch LDC")
    a.label("LD0")
    param_loads([2])
    a.label("LDC")
    param_loads([1])
    srd(a, RX, sWDP, SZ_W)
    t0, t1, t2, t3, t4, t5 = 24, 25, 26, 27, 28, 29
    a(f"v_and_b32 v{t0}, 1, v{vLANE}")
    a(f"v_bfe_u32 v{t1}, v{vLANE}, 1, 3")
    a(f"v_lshrrev_b32 v{t2}, 4, v{vLANE}     ; g")
    a(f"s_lshl_b32 s75, s{sW}, 7")
    a(f"s_sub_u32 s76, {CHB + C_KE + 2*252 - 64}, s75")
    a(f"v_mul_u32_u24 v{vA}, {C_KE-C_KO}, v{t0}")
    a(f"v_sub_u32 v{vA}, s76, v{vA}")
    a(f"v_lshlrev_b32 v{t3}, 3, v{t1}")
    a(f"v_sub_u32 v{vA}, v{vA}, v{t3}")
    a(f"v_lshl_add_u32 v{vA}, v{t2}, 4, v{vA}")
    a(f"s_sub_u32 s76, {CHB + C_U2 + 1024 - 64}, s75")
    a(f"v_mul_u32_u24 v{vB}, {C_U2-C_U0}, v{t0}")
    a(f"v_sub_u32 v{vB}, s76, v{vB}")
    a(f"v_lshl_add_u32 v{vB}, v{t1}, 6, v{vB}")
    a(f"v_lshl_add_u32 v{vB}, v{t2}, 4, v{vB}")
    a(f"s_lshl_b32 s76, s{sE}, 9")
    a(f"v_add_u32 v{vB0}, s76, v{vB}")
    a(f"v_subrev_u32 v{vB0}, 512, v{vB0}")
    a(f"v_bfe_u32 v{t3}, v{vLANE}, 2, 1")
    a(f"v_lshl_add_u32 v{t3}, v{t3}, 1, v{t0}")
    a(f"v_xor_b32 v{t3}, v{t3}, v{t2}")
    a(f"v_lshlrev_b32 v{t3}, 4, v{t3}")
    a(f"v_lshl_add_u32 v{t3}, v{t1}, 6, v{t3}")
    a(f"v_lshl_add_u32 v{t4}, v{t0}, 12, v{t3}")
    a(f"s_lshl_b32 s77, s{sW}, 13")
    a(f"s_add_u32 s76, s77, {R1B}")
    a(f"v_add_u32 v{vRW1}, s76, v{t4}")
    a(f"s_add_u32 s76, s77, {R2B}")
    a(f"v_add_u32 v{vRW2}, s76, v{t4}")
    a(f"v_lshl_add_u32 v{t4}, v{t0}, 11, v{t3}")
    a(f"s_lshl_b32 s77, s{sW}, 12")
    a(f"v_add_u32 v{vRW0}, s77, v{t4}")
    a(f"v_bfe_u32 v{t3}, v0, 3, 1")
    a(f"v_lshlrev_b32 v{t3}, 1, v{t3}")
    a(f"v_xor_b32 v{t3}, v{t3}, v0")
    a(f"v_lshlrev_b32 v{t3}, 4, v{t3}")
    a(f"v_add_u32 v{vRR0}, {R1B}, v{t3}")
    a(f"v_xor_b32 v{vRR1}, 16, v{vRR0}")
    a(f"v_add_u32 v{vRQ0}, {R2B}, v{t3}")
    a(f"v_xor_b32 v{vRQ1}, 16, v{vRQ0}")
    a(f"v_and_b32 v{t3}, 511, v{t3}")
    a(f"s_lshl_b32 s77, s{sW}, 9")
    a(f"v_add_u32 v{vRZ0}, s77, v{t3}")
    a(f"v_xor_b32 v{vRZ1}, 16, v{vRZ0}")
    a(f"v_bfe_u32 v{t3}, v{vLANE}, 5, 1")
    a(f"v_cmp_eq_u32 vcc, s{sE}, v{t3}")
    a(f"v_mov_b32 v{vH0}, {BIG:#x}")
    a(f"v_lshlrev_b32 v{vPU}, 2, v0")
    a(f"v_cndmask_b32 v{vH0}, v{vH0}, v{vH}, vcc")
    a(f"v_add_u32 v{vPU}, {CHB}, v{vPU}")
    a(f"v_lshlrev_b32 v{vPB}, 3, v0")
    a(f"v_add_u32 v{vPB}, {BSB}, v{vPB}")
    a(f"v_lshlrev_b32 v{vOB}, 5, v0")
    a(f"v_add_u32 v{vOB}, {BSB}, v{vOB}")
    a(f"s_lshl_b32 s{sXR}, s2, 14")
    a(f"s_add_u32 s{sXR}, s{sXR}, {XR:#x}")
    a(f"s_lshl_b32 s{sH0}, s{sCH0}, 12")
    a(f"s_add_u32 s{sH0}, s{sH0}, {HT:#x}")
    a(f"s_lshl_b32 s{sH1}, s{sCH1}, 12")
    a(f"s_add_u32 s{sH1}, s{sH1}, {HT:#x}")
    a(f"s_add_u32 s{sH2}, s{sH1}, 4096")
    a(f"s_lshl_b32 s{sFHO}, s{sW}, 8")
    a(f"s_add_u32 s{sFHO}, s{sFHO}, s2")
    a(f"s_lshl_b32 s{sFHO}, s{sFHO}, 6")
    a(f"s_add_u32 s{sFHO}, s{sFHO}, {FH:#x}")
    a(f"v_lshrrev_b32 v{t1}, 3, v{vLANE}     ; q")
    a(f"v_mul_u32_u24 v{t3}, 5, v{t1}")
    a(f"v_add_u32 v30, 2, v{t3}")
    a(f"v_mul_u32_u24 v{t4}, 5, v{t2}")
    a(f"v_and_b32 v{t5}, 1, v{t1}")
    a(f"v_mul_u32_u24 v{t5}, 3, v{t5}")
    a(f"v_add_u32 v31, v{t4}, v{t5}")
    a(f"v_and_b32 v32, 7, v{vLANE}")
    a(f"v_and_b32 v33, 1, v{t2}              ; (row>>1)&1")
    a(f"s_and_b32 s75, s{sW}, 1")
    a(f"s_lshl_b32 s75, s75, 1")
    a("v_or_b32 v33, s75, v33")
    a("v_lshlrev_b32 v33, 1, v33")
    a("v_xor_b32 v33, v33, v32")
    a("v_lshlrev_b32 v33, 4, v33")
    a(f"s_mul_i32 s75, s{sW}, 40")
    a("v_add_u32 v30, s75, v30")
    a("v_lshl_add_u32 v30, v30, 12, v33")
    a("v_accvgpr_write_b32 a240, v30")
    a(f"s_mul_i32 s75, s{sW}, 20")
    a("v_add_u32 v31, s75, v31")
    a("v_lshl_add_u32 v31, v31, 12, v33")
    a("v_accvgpr_write_b32 a241, v31")
    a(f"s_lshl_b32 s75, s{sW}, 3")
    a(f"v_lshlrev_b32 v30, 5, v{t1}")
    a("v_add3_u32 v30, v30, v32, s75       ; 32s'+8w+j")
    a("v_lshlrev_b32 v31, 6, v30")
    a("v_accvgpr_write_b32 a243, v31")
    a("v_and_b32 v30, 127, v30")
    a("v_lshlrev_b32 v30, 7, v30")
    a("v_accvgpr_write_b32 a242, v30")
    a(f"s_lshr_b32 s75, s{sTB}, 2")
    a("s_lshl_b32 s75, s75, 14")
    a(f"s_add_u32 s{sPH1}, s75, {FH + 65536:#x}")
    a(f"s_add_u32 s{sPH2}, s75, {FH + 131072:#x}")
    a(f"s_bfe_u32 s76, s{sTB}, 0x10001")
    a("s_lshl_b32 s76, s76, 6")
    a("s_add_u32 s75, s75, s76")
    a(f"s_add_u32 s{sPH0}, s75, {FH:#x}")
    a(f"s_lshl_b32 s{sACT}, s{sTB}, 8")
    a(f"s_add_u32 s{sACT}, s{sACT}, {HT:#x}")
    a(f"s_lshl_b32 s{sM0}, s{sW}, 10")
    a(f"v_bfe_u32 v{t1}, v{vLANE}, 2, 2      ; rr")
    a(f"v_lshl_add_u32 v{t3}, v{t2}, 3, v{t1}")
    a(f"v_lshlrev_b32 v{t3}, 7, v{t3}        ; row*128")
    a(f"v_and_b32 v{t4}, 1, v{t2}")
    a(f"v_lshrrev_b32 v{t5}, 1, v{t1}")
    a(f"v_lshl_add_u32 v{t4}, v{t4}, 1, v{t5}")
    a(f"v_xor_b32 v30, s{sW}, v{t4}")
    a(f"v_lshl_add_u32 v30, v30, 5, v{t3}")
    a(f"v_and_b32 v31, 3, v{vLANE}")
    a("v_lshl_add_u32 v30, v31, 3, v30")
    a("v_accvgpr_write_b32 a244, v30")
    a(f"s_cmp_ge_u32 s{sW}, 2")
    a(f"s_cselect_b64 s[{RW}:{RW+1}], s[{RWD}:{RWD+1}], s[{RW}:{RW+1}]")
    a(f"s_mul_i32 s{sWJ}, s{sJ}, 192")
    a(f"s_mul_i32 s{sM3}, s{sW}, 3072")
    a(f"s_and_b32 s76, s{sW}, 1")
    a("s_lshl_b32 s75, s76, 4")
    for n in range(3):
        a(f"v_add_u32 v32, {64*n}, v{vLANE}")
        a("v_mul_u32_u24 v33, 5462, v32")
        a("v_lshrrev_b32 v33, 16, v33          ; L'/12")
        a("v_mul_u32_u24 v34, 12, v33")
        a("v_sub_u32 v32, v32, v34")
        a("v_lshlrev_b32 v32, 4, v32")
        a("v_add_u32 v33, s75, v33             ; row")
        a("v_mul_u32_u24 v34, 5, v33")
        a("v_add_u32 v34, 2, v34")
        a("v_mul_u32_u24 v34, 3072, v34")
        a(f"v_add_u32 v{vWA+n}, v34, v32")
        a("v_lshrrev_b32 v34, 1, v33")
        a("v_mul_u32_u24 v34, 5, v34")
        a("v_and_b32 v33, 1, v33")
        a("v_mul_u32_u24 v33, 3, v33")
        a("v_add_u32 v34, v34, v33")
        a("v_mul_u32_u24 v34, 3072, v34")
        a(f"v_add_u32 v{vWB+n}, v34, v32")
    a(f"v_lshl_add_u32 v{t3}, v{t2}, 3, v{t1}")
    a(f"v_mul_u32_u24 v{t4}, 192, v{t3}")
    a(f"s_mul_i32 s75, s{sW}, 48")
    a(f"s_add_u32 s75, s75, {RT[2]}")
    a(f"v_add_u32 v{t4}, s75, v{t4}")
    a(f"v_lshl_add_u32 v{vT0}, v31, 3, v{t4}")
    a(f"v_add_u32 v{vT0+1}, 6144, v{vT0}")
    a(f"v_bfe_u32 v{t5}, v{vLANE}, 1, 1")
    a(f"v_mul_u32_u24 v{t5}, 6144, v{t5}")
    a(f"v_lshl_add_u32 v{t5}, v{t0}, 3, v{t5}")
    a(f"v_add3_u32 v{vT0+2}, v{t4}, v{t5}, 32")
    a("s_lshl_b32 s75, s2, 1")
    a("s_add_u32 s75, s75, s76")
    a("s_mul_i32 s75, s75, 30")
    a(f"v_min_u32 v250, 29, v{vLANE}")
    a("v_add_lshl_u32 v250, v250, s75, 7")
    stamp(a, "f1")
    a(f"v_mul_u32_u24 v24, 6554, v{vLANE}")
    a("v_lshrrev_b32 v24, 16, v24          ; L/10")
    a("v_mul_u32_u24 v24, 1120, v24")
    a(f"v_add_u32 v{vW2V}, v24, v{vL16}")
    a(f"s_lshl_b32 s75, s{sW}, 8")
    a("s_add_u32 s75, s75, s2              ; task")
    a("s_lshr_b32 s72, s75, 3")
    a("s_and_b32 s73, s75, 7")
    a(f"s_lshl_b32 s{sFW2O}, s75, 6")
    a(f"s_add_u32 s{sFW2O}, s{sFW2O}, {FW2:#x}")
    a(f"s_mul_i32 s{sW2R}, s72, {32*1280}")
    a("s_mul_i32 s74, s73, 160")
    a(f"s_add_u32 s{sW2R}, s{sW2R}, s74")
    a(f"s_mul_i32 s{sW2ST}, s73, 245760")
    a("s_mul_i32 s74, s72, 5120")
    a(f"s_add_u32 s{sW2ST}, s{sW2ST}, s74")
    a(f"s_add_u32 s{sW2ST}, s{sW2ST}, {W2P:#x}")
    a("s_cmp_lt_u32 s75, 384")
    a(f"s_cselect_b32 s{sW2ST}, s{sW2ST}, {BIG:#x}")
    a(f"s_cselect_b32 s{sFW2O}, s{sFW2O}, {BIG:#x}")
    a(f"s_mul_i32 s{sWT}, s{sW}, 5888")
    a(f"s_add_u32 s{sWT}, s{sWT}, {WTS}")
    a(f"v_mul_u32_u24 v24, 160, v{t3}")
    a(f"v_add_u32 v24, s{sWT}, v24")
    a(f"v_and_b32 v25, 3, v{vLANE}")
    a(f"v_lshl_add_u32 v{vW2R0}, v25, 4, v24")
    a(f"v_lshl_add_u32 v{vW2R1}, v25, 3, v24")
    a(f"s_mul_i32 s{sTAG}, s{sTAG}, 0x9E3779B1")
    a(f"s_add_u32 s{sTAG}, s{sTAG}, 0x7F4A7C15")
    a(f"v_mov_b32 v{vTAGV}, s{sTAG}")
    a(f"s_and_b32 s74, s{sP}, 1")
    for r in range(3):
        lo, hi = DSEL[r]
        if r == 0:
            a(f"s_lshl_b32 s73, s{sE}, 1")
            a("s_sub_u32 s73, s74, s73")
            a("s_add_u32 s73, s73, 2")
        else:
            a(f"s_add_u32 s73, s74, s{sE}")
            if r == 2:
                a("s_add_u32 s73, s73, 1")
        a("s_lshl_b32 s73, s73, 4")
        a(f"s_lshr_b64 s[{lo}:{hi}], s[78:79], s73")
        a(f"s_lshl_b32 s{lo}, s{lo}, 16")
        a(f"s_mov_b32 s{hi}, s{lo}")
    a(f"s_mov_b32 s76, {LOG2E:#x}")
    a(f"s_mov_b32 s77, {f2u(0.15915494309189535):#x}")
    a("s_mov_b32 m0, s63")
    a(f"s_mov_b32 s75, s{sW}                ; unit")
    a("s_waitcnt vmcnt(14)                 ; first parameters")
    a(f"s_cmp_eq_u32 s{sW}, 0")
    a("s_cbranch_scc1 P0W")
    a("s_waitcnt vmcnt(11)")
    a.label("P0W")
    a("; @clearvm")
    stamp(a, "job")
    a.label("KGEN")
    stamp(a, "k0")
    A_, B_, C_, LD_ = PB, PB + 2, PB + 4, PB + 6
    a(f"v_mul_f32 v32, {LOG2E:#x}, v{LD_}")
    a("v_exp_f32 v32, v32")
    a("v_cvt_pk_bf16_f32 v32, v32, v32")
    a("v_lshlrev_b32 v32, 16, v32          ; dt")
    a(f"v_pk_mul_f32 v[24:25], {vr(A_,2)}, v[32:33] op_sel:[0,0] op_sel_hi:[1,0]")
    a(f"v_pk_mul_f32 v[26:27], {vr(B_,2)}, v[32:33] op_sel:[0,0] op_sel_hi:[1,0]")
    a("v_pk_mul_f32 v[24:25], v[24:25], s[76:77]")
    P, Q, CV = 40, 56, 72
    p1, qq, w8 = 88, 90, 92
    RA = 104
    Rr = lambda k: RA + 2 * k
    R0 = Rr(0)
    cmuls(a, [(R0, C_, 26)])
    ev = [(P + 2, 8.0, 96), (p1, 1.0, 98), (qq, 256.0, 100)]
    for dst, sc, t in ev:
        if sc == 1.0:
            a(f"v_fract_f32 v{t+1}, v25")
        else:
            a(f"v_mul_f32 v{t}, {f2u(sc):#x}, v24")
            a(f"v_mul_f32 v{t+1}, {f2u(sc):#x}, v25")
            a(f"v_fract_f32 v{t+1}, v{t+1}")
    for dst, sc, t in ev:
        a(f"v_exp_f32 v{t}, v{24 if sc == 1.0 else t}")
        a(f"v_cos_f32 v{dst}, v{t+1}")
        a(f"v_sin_f32 v{dst+1}, v{t+1}")
    for dst, sc, t in ev:
        a(f"v_pk_mul_f32 {vr(dst,2)}, {vr(dst,2)}, {vr(t,2)} op_sel:[0,0] op_sel_hi:[1,0]")
    stamp(a, "k1")
    W = lambda k: P + 2 * k
    p2, p4, q2 = 96, 98, 100
    cmuls(a, [(W(2), W(1), W(1)), (p2, p1, p1), (q2, qq, qq), (Rr(1), R0, p1)])
    cmuls(a, [(W(3), W(2), W(1)), (W(4), W(2), W(2)), (p4, p2, p2), (Rr(2), R0, p2), (Rr(3), Rr(1), p2)])
    cmuls(a, [(W(5), W(4), W(1)), (W(6), W(4), W(2)), (W(7), W(4), W(3)), (Q, W(4), W(4))])
    AOFF = 32 * 272

    def put(vals, cv, neg):
        for k, (r, col) in enumerate(vals):
            if r is None:
                a(f"v_mov_b32 v{cv+k}, 0x3f80")
            else:
                a(f"v_cvt_pk_bf16_f32 v{cv+k}, v{r}, {'-' if neg else ''}v{r+1}")
        for k, (r, col) in enumerate(vals):
            a(f"ds_write_addtid_b32 v{cv+k} offset:{STG+272*col+(AOFF if neg else 0)}")

    stamp(a, "k2")
    a(f"v_pk_mov_b32 {vr(w8,2)}, {vr(Q,2)}, {vr(Q,2)} op_sel:[0,1]")
    cmuls(a, [(Q + 2 * k, P + 2 * k, w8) for k in range(1, 8)])
    put([(None, 0)] + [(P + 2 * k, k) for k in range(1, 8)] + [(Q + 2 * k, 8 + k) for k in range(8)], CV, False)
    cmuls(a, [(P + 2 * k, Q + 2 * k, w8) for k in range(8)])
    cmuls(a, [(Q + 2 * k, P + 2 * k, w8) for k in range(8)])
    put([(P + 2 * k, 16 + k) for k in range(8)] + [(Q + 2 * k, 24 + k) for k in range(8)], CV, False)
    FB, FA = 40, 148
    for s in range(8):
        a(f"ds_read_b128 {vr(FB+4*s,4)}, v35 offset:{32*s}")
    stamp(a, "k3")
    cmuls(a, [(Rr(4 + k), Rr(k), p4) for k in range(4)] + [(Rr(8), R0, qq), (Rr(9), Rr(2), qq), (Rr(12), R0, q2)])
    cmuls(a, [(Rr(10), Rr(4), qq), (Rr(11), Rr(6), qq), (Rr(13), Rr(4), q2), (Rr(14), Rr(8), q2), (Rr(16), Rr(12), q2)])
    cmuls(a, [(Rr(15), Rr(10), q2), (Rr(17), Rr(14), q2), (Rr(18), Rr(16), q2)])
    cmuls(a, [(Rr(20), Rr(17), q2), (Rr(21), Rr(18), q2)])
    stamp(a, "k4")
    put([(Rr(k), k) for k in list(range(19)) + [20, 21]], CV, True)
    for s in range(8):
        a(f"ds_read_b128 {vr(FA+4*s,4)}, v35 offset:{AOFF+32*s}")
    stamp(a, "k5")
    DK = 180
    for s in range(8):
        a(f"v_mfma_f32_32x32x16_bf16 {vr(DK,16)}, {vr(FA+4*s,4)}, {vr(FB+4*s,4)}, {'0' if s == 0 else vr(DK,16)}")
    stamp(a, "k6")
    a("s_add_u32 s75, s75, 4")
    a(f"ds_write_b128 v8, {vr(DK,4)}")
    a(f"ds_write_b64 v9, {vr(DK+4,2)}")
    a(f"ds_write_b64 v10, {vr(DK+6,2)}")
    for r in range(3):
        a(f"ds_write_b32 v11, v{DK+8+r} offset:{2048+128*r}")
    for r in range(8, 12):
        a(f"v_add_u32 v{r}, {4*TABS}, v{r}")
    a("s_cmp_ge_u32 s75, 8")
    a("s_cbranch_scc1 KG2")
    a("s_waitcnt vmcnt(0)")
    a("s_barrier")
    stamp(a, "xq")
    a(f"s_cmp_eq_u32 s{sW}, 0")
    a("s_cbranch_scc1 KNEXT1")
    a(f"s_cmp_eq_u32 s{sW}, 1")
    a("s_cbranch_scc1 PRE1")
    for i in range(8):
        a(f"ds_read2_b32 {vr(40+4*i,2)}, v{cRA} offset0:{20*i} offset1:{20*i+1}")
        a(f"ds_read2_b32 {vr(42+4*i,2)}, v{cRB} offset0:{20*i} offset1:{20*i+1}")
    a(f"s_and_b32 s78, s{sW}, 1")
    a("s_lshl_b32 s78, s78, 21")
    a("s_lshl_b32 s79, s2, 6")
    a("s_add_u32 s78, s78, s79")
    a(f"s_add_u32 s78, s78, {XR:#x}")
    a("s_mov_b32 s72, 0x05040100")
    a("s_mov_b32 s73, 0x07060302")
    for i in range(8):
        a(f"v_mov_b32 v{104+4*i+3}, s{sTAG}")
    for i in range(8):
        b = 40 + 4 * i
        o = 104 + 4 * i
        a(f"v_perm_b32 v32, v{b+1}, v{b}, v{cS01}")
        a(f"v_perm_b32 v33, v{b+3}, v{b+2}, v{cS01}")
        a(f"v_perm_b32 v34, v{b+1}, v{b}, v{cS2}")
        a(f"v_perm_b32 v38, v{b+3}, v{b+2}, v{cS2}")
        a(f"v_perm_b32 v{o}, v33, v32, s72")
        a(f"v_perm_b32 v{o+1}, v33, v32, s73")
        a(f"v_perm_b32 v{o+2}, v38, v34, s72")
        a(f"buffer_store_dwordx4 {vr(o,4)}, v{cST}, {sr(RWS)}, s78 offen sc1")
        if i < 7:
            a(f"s_add_u32 s78, s78, {16*16384}")
    stamp(a, "recs")
    a("s_branch KNEXT1")
    a.label("PRE1")
    SB = 40
    for c in range(10):
        a(f"ds_read_b128 {vr(SB+4*c,4)}, v{cSA} offset:{128*c}")
    a(f"v_and_b32 v38, 15, v{vLANE}")
    a("v_cmp_eq_u32 vcc, 0, v38")
    a(f"v_mov_b32 v38, {BIG:#x}")
    a(f"v_mov_b32 v107, s{sTAG}")
    a(f"v_cndmask_b32 v38, v38, v{vLANE}, vcc")
    a("s_lshl_b32 s78, s2, 6")
    a(f"s_add_u32 s78, s78, {S1:#x}")
    for k in range(40):
        a(f"v_dot2_f32_bf16 v32, v{SB+k}, s{sONE}, {'0' if k == 0 else 'v32'}")
        a(f"v_dot2_f32_bf16 v33, v{SB+k}, v{SB+k}, {'0' if k == 0 else 'v33'}")
    for m in ("quad_perm:[1,0,3,2]", "quad_perm:[2,3,0,1]", "row_half_mirror"):
        a(f"v_add_f32_dpp v32, v32, v32 {m} row_mask:0xf bank_mask:0xf")
        a(f"v_add_f32_dpp v33, v33, v33 {m} row_mask:0xf bank_mask:0xf")
    ln_den(a, 32, 33, 34)
    a("v_mov_b32 v104, v33")
    a("v_mov_b32_dpp v105, v33 row_ror:8 row_mask:0xf bank_mask:0xf")
    a("v_mov_b32_dpp v34, v32 row_ror:8 row_mask:0xf bank_mask:0xf")
    a("v_cvt_pk_bf16_f32 v106, v32, v34")
    a(f"buffer_store_dwordx4 v[104:107], v38, {sr(RWS)}, s78 offen sc1")
    stamp(a, "recs")
    a.label("KNEXT1")
    a.label("KNEXT")
    for k in range(0, 16, 2):
        a(f"v_pk_mov_b32 {vr(PB+k,2)}, {vr(PB+8+k,2)}, {vr(PB+8+k,2)} op_sel:[0,1]")
    a("s_branch KGEN")
    a.label("KG2")
    a("s_cmp_eq_u32 s75, 8")
    a("s_cbranch_scc1 KNEXT")
    stamp(a, "kgen")
    XRV, STV = 196, 212

    def recv_loads():
        a(f"s_mov_b32 s73, s{sXR}")
        a(f"s_mov_b32 s74, {S1:#x}")
        for i in range(4):
            a(f"buffer_load_dwordx4 {vr(XRV+4*i,4)}, v{vH}, {sr(RWS)}, s73 offen sc1")
            a(f"buffer_load_dwordx4 {vr(STV+4*i,4)}, v{vH}, {sr(RWS)}, s74 offen sc1")
            if i < 3:
                a("s_add_u32 s73, s73, 4096")
                a("s_add_u32 s74, s74, 4096")

    a("s_waitcnt lgkmcnt(0)")
    a("s_barrier")
    recv_loads()
    stamp(a, "bar1")
    a(f"s_cmp_eq_u32 s{sW}, 3")
    a("s_cbranch_scc1 NOPAD")
    for r in range(40, 44):
        a(f"v_mov_b32 v{r}, 0")
    a(f"s_mul_i32 s75, s{sW}, {CHS}")
    a(f"s_add_u32 s75, s75, {CHB}")
    a(f"v_add_u32 v16, s75, v{vL16}")
    a(f"v_and_b32 v17, 48, v{vL16}")
    a("v_add_u32 v17, s75, v17")
    a("v_mov_b32 v18, s75")
    a(f"ds_write_b128 v16, v[40:43] offset:{C_U0}")
    a(f"ds_write_b128 v16, v[40:43] offset:{C_U2}")
    a(f"ds_write_b128 v17, v[40:43] offset:{C_KO+4096}")
    a(f"ds_write_b128 v17, v[40:43] offset:{C_KE+4096}")
    a(f"ds_write_b32 v18, v40 offset:{C_U2+1024}")
    a.label("NOPAD")
    KB = CHB + C_KO
    KD = C_KE - C_KO

    def pk(dst, lo, hi):
        a(f"v_cvt_pk_bf16_f32 v{dst}, v{lo}, v{hi}")

    a(f"v_cmp_eq_u32 vcc, 0, v{vLANE}")
    a(f"s_cmp_eq_u32 s{sW}, 0")
    a("s_cbranch_scc0 EXPN")
    a(f"v_subrev_u32 v17, 4, v{vL16}")
    a("v_max_i32 v17, 0, v17")
    for rc in range(3):
        for t in range(3):
            a(f"ds_read_b128 {vr(44+16*rc+4*t,4)}, v{vL16} offset:{TABS*(3*rc+t)}")
            a(f"ds_read_b32 v{56+16*rc+t}, v17 offset:{TABS*(3*rc+t)}")
    a(f"v_lshlrev_b32 v18, 3, v{vLANE}")
    a(f"v_sub_u32 v18, {KB+2*2044}, v18")
    for rc in range(3):
        b = 44 + 16 * rc
        o = 96 + 4 * rc
        for t in (1, 2):
            a(f"v_pk_add_f32 {vr(b,2)}, {vr(b,2)}, {vr(b+4*t,2)}")
            a(f"v_pk_add_f32 {vr(b+2,2)}, {vr(b+2,2)}, {vr(b+4*t+2,2)}")
            a(f"v_add_f32 v{b+12}, v{b+12}, v{b+12+t}")
        a(f"v_cndmask_b32 v{b+12}, v{b+12}, 0, vcc")
        pk(o, b + 3, b + 2); pk(o + 1, b + 1, b); pk(o + 2, b + 2, b + 1); pk(o + 3, b, b + 12)
        a(f"ds_write_b64 v18, {vr(o,2)} offset:{CHS*rc}")
        a(f"ds_write_b64 v18, {vr(o+2,2)} offset:{CHS*rc+KD}")
    a("s_branch EXPD")
    a.label("EXPN")
    a(f"s_lshl_b32 s75, s{sW}, 9")
    a("s_add_u32 s75, s75, 508")
    a(f"v_lshlrev_b32 v16, 3, v{vLANE}")
    a("v_add_u32 v16, s75, v16")
    for rc in range(3):
        for t in range(3):
            b = 44 + 12 * rc + 4 * t
            off = TABS * (3 * rc + t)
            a(f"ds_read_b64 {vr(b,2)}, v16 offset:{off+4}")
            a(f"ds_read_b32 v{b+2}, v16 offset:{off+12}")
            a(f"ds_read_b32 v{b+3}, v16 offset:{off}")
    for rc in range(3):
        b = 44 + 12 * rc
        for t in (1, 2):
            a(f"v_pk_add_f32 {vr(b,2)}, {vr(b,2)}, {vr(b+4*t,2)}")
            a(f"v_pk_add_f32 {vr(b+2,2)}, {vr(b+2,2)}, {vr(b+4*t+2,2)}")
    a(f"s_cmp_eq_u32 s{sW}, 2")
    a("s_cbranch_scc1 EXP2")
    a(f"s_cmp_eq_u32 s{sW}, 3")
    a("s_cbranch_scc1 EXP3")
    a(f"v_lshlrev_b32 v18, 3, v{vLANE}")
    a(f"v_sub_u32 v18, {KB+2*(2044-256)}, v18")
    for rc in range(3):
        va, vb, vc, vm = (44 + 12 * rc + k for k in range(4))
        o = 96 + 4 * rc
        a(f"v_cndmask_b32 v{vm}, v{va}, v{vm}, vcc")
        pk(o, vc, vb); pk(o + 1, va, va); pk(o + 2, vb, va); pk(o + 3, va, vm)
        a(f"ds_write_b64 v18, {vr(o,2)} offset:{CHS*rc}")
        a(f"ds_write_b64 v18, {vr(o+2,2)} offset:{CHS*rc+KD}")
    a("s_branch EXPD")
    a.label("EXP2")
    a(f"v_sub_u32 v18, {KB+2*(2040-512)}, v{vL16}")
    for rc in range(3):
        va, vb, vc, vm = (44 + 12 * rc + k for k in range(4))
        o = 96 + 8 * rc
        for k, (lo, hi) in enumerate([(vc, vc), (vb, vb), (vb, va), (va, va), (vc, vb), (vb, vb), (va, va), (va, va)]):
            pk(o + k, lo, hi)
        a(f"ds_write_b128 v18, {vr(o,4)} offset:{CHS*rc}")
        a(f"ds_write_b128 v18, {vr(o+4,4)} offset:{CHS*rc+KD}")
    a("s_branch EXPD")
    a.label("EXP3")
    a(f"v_lshlrev_b32 v18, 5, v{vLANE}")
    a(f"v_sub_u32 v18, {KB+2*(2032-1024)}, v18")
    for rc in range(3):
        va, vb, vc, vm = (44 + 12 * rc + k for k in range(4))
        o = 96 + 16 * rc
        pat = [(vc, vc), (vc, vc), (vb, vb), (vb, vb), (vb, vb), (vb, va), (va, va), (va, va),
               (vc, vc), (vc, vb), (vb, vb), (vb, vb), (vb, vb), (va, va), (va, va), (va, va)]
        for k, (lo, hi) in enumerate(pat):
            pk(o + k, lo, hi)
            if k & 3 == 3:
                a(f"ds_write_b128 v18, {vr(o+k-3,4)} offset:{CHS*rc+(KD if k >= 8 else 0)+(16 if k & 4 else 0)}")
    a.label("EXPD")
    stamp(a, "exp")
    a(f"s_mov_b32 s{sT}, 0")
    a.label("RCHK")
    a(f"v_xor_b32 v16, s{sTAG}, v{XRV+3}")
    for r in [XRV + 7, XRV + 11, XRV + 15, STV + 3, STV + 7, STV + 11, STV + 15]:
        a(f"v_xor_b32 v18, s{sTAG}, v{r}")
        a("v_or_b32 v16, v16, v18")
    a("v_cmp_ne_u32 vcc, 0, v16")
    a("s_cbranch_vccz RDONE")
    a(f"s_add_u32 s{sT}, s{sT}, 1")
    a(f"s_cmp_gt_u32 s{sT}, {SPIN}")
    a("s_cbranch_scc1 RDONE")
    a("s_sleep 4")
    recv_loads()
    a("s_waitcnt vmcnt(0)")
    a("s_branch RCHK")
    a.label("RDONE")
    stamp(a, "recv")
    nm = Lst()
    for i in range(4):
        st = STV + 4 * i
        nm(f"v_and_b32 v{st+3}, 0xffff0000, v{st+2}")
        nm(f"v_lshlrev_b32 v{st+2}, 16, v{st+2}")
    for i in range(4):
        st = STV + 4 * i
        nm(f"v_pk_mul_f32 {vr(st+2,2)}, {vr(st+2,2)}, {vr(st,2)} neg_lo:[1,0] neg_hi:[1,0]")
    for rc in range(3):
        X, U = 40 + 8 * rc, 64 + 8 * (rc & 1)
        for i in range(4):
            nm(f"v_lshlrev_b32 v{X+2*i}, 16, v{XRV+4*i+rc}")
            nm(f"v_and_b32 v{X+2*i+1}, 0xffff0000, v{XRV+4*i+rc}")
        for i in range(4):
            st = STV + 4 * i
            nm(f"v_pk_fma_f32 {vr(U+2*i,2)}, {vr(X+2*i,2)}, {vr(st,2)}, {vr(st+2,2)}")
        for i in range(4):
            nm(f"v_cvt_pk_bf16_f32 v{80+4*rc+i}, v{U+2*i}, v{U+2*i+1}")
        for i in range(4):
            nm(f"v_pk_fma_f32 {vr(X+2*i,2)}, {vr(U+2*i,2)}, s[{DSEL[rc][0]}:{DSEL[rc][1]}], {vr(X+2*i,2)}")
        for i in range(0, 4, 2):
            o = CHS * rc + 1024 * i + C_U0 + 1024
            nm(f"ds_write2st64_b32 v{vPU}, v{80+4*rc+i}, v{81+4*rc+i} offset0:{o//256} offset1:{o//256+4}")
        for i in range(4):
            nm(f"ds_write_b32 v{vPU}, v{80+4*rc+i} offset:{CHS*rc+1024*i+C_U2+1028}")
        for i in range(0, 4, 2):
            o = (8192 * rc + 2048 * i) // 512
            nm(f"ds_write2st64_b64 v{vPB}, {vr(X+2*i,2)}, {vr(X+2*i+2,2)} offset0:{o} offset1:{o+4}")
    w2d = []
    for n in range(6):
        w2d.append([f"s_add_u32 m0, s{sWT}, {960*n}",
                    f"s_add_u32 s75, s{sW2R}, {6*1280*n}",
                    f"buffer_load_dwordx4 v{vW2V}, {sr(RX)}, s75 offen lds ; @def:w2raw"])
    rest = interleave(a, nm, wd(0) + w2d, start=0, every=8)
    assert not rest
    a(f"buffer_load_dword v254, v250, {sr(RW)}, 0 offen")

    a("s_waitcnt lgkmcnt(0)")
    a("s_barrier")
    stamp(a, "bar2")
    ACCS = [16, 48]
    BASE = 80
    EP = 104
    free = list(range(136, 228, 4))
    def pairs_of(rnd, k):
        ps = []
        for o in range(k + 1):
            if k + o <= 7 and (rnd > 0 or (k + o) & 1):
                ps.append((k, o))
                if o != k:
                    ps.append((o, k))
        return ps

    groups = [(rnd, r, k) for rnd in range(3) for r in range(2) for k in range(8)]
    fa, fb = {}, {}

    def issue(gk):
        rnd, r, k = gk
        fa[gk] = free.pop(0)
        fb[gk] = free.pop(0)
        ro = 64 * (1 - r) + CHS * rnd
        return [f"ds_read_b64 {vr(fa[gk],2)}, v{vA} offset:{512*(7-k)+ro}",
                f"ds_read_b64 {vr(fa[gk]+2,2)}, v{vA} offset:{512*(7-k)+ro+8}",
                f"ds_read_b128 {vr(fb[gk],4)}, v{vB0 if rnd == 0 else vB} offset:{512*k+ro} ; @def:cv{rnd}_{r}_{k}"]

    def last_level(rnd, idx):
        return max(k for k in range(8) for (q, c) in pairs_of(rnd, k) if idx in (q, c))

    def epi_fill(rnd, plain=True, toks=""):
        f = [[f"; @use:red{rnd} {toks}", "s_barrier"]]
        r0, r1, ws, ps = [(vRZ0, vRZ1, 4096, 2048), (vRR0, vRR1, 8192, 4096), (vRQ0, vRQ1, 8192, 4096)][rnd]
        for w in range(4):
            f.append(f"ds_read_b128 {vr(EP+8*w,4)}, v{r0} offset:{ws*w}")
            f.append(f"ds_read_b128 {vr(EP+4+8*w,4)}, v{r1} offset:{ws*w+ps} ; @def:ep{rnd}_{w}")
        ymap = [0, 4, 2, 6]
        b = BASE + 8 * rnd
        for w in range(4):
            for p in range(4):
                src = EP + 8 * w + ymap[p]
                if plain:
                    g = [f"v_add_f32 v{b+2*p}, v{b+2*p}, v{src}"]
                    if p == 0:
                        g = [f"; @use:ep{rnd}_{w}"] + g
                    f.append(g)
                    f.append(f"v_add_f32 v{b+2*p+1}, v{b+2*p+1}, v{src+1}")
                else:
                    f.append(f"v_pk_add_f32 {vr(b+2*p,2)}, {vr(b+2*p,2)}, {vr(src,2)}")
        for p in range(4):
            f.append(f"v_cvt_pk_bf16_f32 v{b+p}, v{b+2*p}, v{b+2*p+1}")
        f.append(f"buffer_store_dwordx4 {vr(b,4)}, v{vH0 if rnd == 0 else vH}, {sr(RWS)}, s{[sH0, sH1, sH2][rnd]} offen sc1 ; @def:ht{rnd}")
        return f

    def hflag(rnd):
        g = [f"; @use:ht{rnd}", f"buffer_store_dword v{vTAGV}, v{vFLAG}, {sr(RWS)}, s{sFHO} offen sc1"]
        if rnd < 2:
            g.append(f"s_add_u32 s{sFHO}, s{sFHO}, 65536")
        return g

    def w2_job():
        JF = EP
        f = []
        for rt in range(5):
            off = 64 * (rt >> 1) + 8 * (rt & 1) if rt < 4 else 128
            g = [f"ds_read_b64_tr_b16 {vr(JF+4*rt,2)}, v{vW2R0 if rt < 4 else vW2R1} offset:{off}"]
            f.append(["; @use:w2raw"] + g if rt == 0 else g)
            f.append(f"ds_read_b64_tr_b16 {vr(JF+4*rt+2,2)}, v{vW2R0 if rt < 4 else vW2R1} offset:{off+640}")
        f += ["s_nop 0"] * 4
        for rt in range(5):
            if rt == 4:
                f.append(f"s_add_u32 s{sW2ST}, s{sW2ST}, 4096")
            f.append(f"buffer_store_dwordx4 {vr(JF+4*rt,4)}, v{vL16}, {sr(RWS)}, s{sW2ST} offen offset:{1024*(rt&3)} sc1 ; @def:w2st")
        return f

    vD0, vD1, vPL0, vPL1 = 128, 129, 130, 131
    vRA = 132
    vCS0, vCS1 = 136, 137
    vRES = 138
    vSR, vMW, vGW, vMR, vSC = 141, 142, 143, 144, 145
    EPO = 148
    TMP = 160
    SVH = [172, 174]
    HRES = [176, 182]
    CS = 188
    RS, GR, ONE, NM = 200, 204, 208, 212
    vSW = 216
    MS = 26624

    def cs(s):
        return [f"v_mfma_f32_16x16x32_bf16 {vr(CS+4*r,4)}, {ar(12*s+4*r,4)}, {vr(ONE,4)}, {'0' if s == 0 else vr(CS+4*r,4)}" for r in range(3)]

    def dma(h, s):
        drow = 160 * s if s < 4 else 80 * ((s - 4) & 7) + (1 if s >= 12 else 0)
        return [f"s_add_u32 m0, s{sM0}, {HALF*h+4096*s}",
                f"s_add_u32 s75, s{sACT}, {drow*4096+128*h}",
                f"buffer_load_dwordx4 v{vD0 if s < 4 else vD1}, {sr(RWS)}, s75 offen sc1 lds ; @def:d{h}_{s}"]

    PF = 4
    for gi in range(PF):
        emit(a, issue(groups[gi]))
    for rc in range(3):
        a(f"ds_read_b128 {vr(BASE+8*rc,4)}, v{vOB} offset:{8192*rc}")
        a(f"ds_read_b128 {vr(BASE+8*rc+4,4)}, v{vOB} offset:{8192*rc+16}")
    rq = []
    fl = lambda l: [t for g in l for t in g]
    for rnd in range(3):
        acc = ACCS[rnd & 1]
        touched = set()
        stamp(a, f"r{rnd}")
        if rnd == 0:
            other = []
        elif rnd == 1:
            other = epi_fill(0) + [["; @use:wd0", "s_barrier"]] + wr(0) + w2_job()
        else:
            other = epi_fill(1, toks="@use:wr1") + fl(wd(1) + wd(2)) + ["v_accvgpr_read_b32 v8, a242", "v_accvgpr_read_b32 v9, a243"]
        nm_ = 0
        for gi, (rn, r, k) in enumerate(groups):
            if rn != rnd:
                continue
            ps = pairs_of(rnd, k)
            if gi + PF < len(groups):
                rq += issue(groups[gi + PF])
            if ps:
                while any(f"@def:cv{rnd}_{r}_{k}" in t for t in rq):
                    a(rq.pop(0))
                a(f"; @use:cv{rnd}_{r}_{k}")
            for pi, (q, c) in enumerate(ps):
                t = (q + c) >> 1 if rnd == 0 else q + c
                cin = vr(acc + 4 * t, 4) if t in touched else "0"
                touched.add(t)
                a(f"v_mfma_f32_16x16x32_bf16 {vr(acc+4*t,4)}, {vr(fa[(rnd,r,q)],4)}, {vr(fb[(rnd,r,c)],4)}, {cin}")
                nm_ += 1
                slots = 2 if pi + 1 < len(ps) else 1
                if rq and slots:
                    a(rq.pop(0))
                    slots -= 1
                if len(rq) > 6 and slots:
                    a(rq.pop(0))
                    slots -= 1
                while slots and other and nm_ >= 3:
                    emit(a, [other.pop(0)])
                    slots -= 1
            for idx in range(8):
                if last_level(rnd, idx) == k:
                    free.append(fa[(rnd, r, idx)])
                    free.append(fb[(rnd, r, idx)])
        print(f"round {rnd}: {len(other)} fillers left over")
        emit(a, other)
        stamp(a, f"w{rnd}")
        if rnd == 2:
            emit(a, [hflag(1)])
        nt = 4 if rnd == 0 else 8
        for c in range(nt):
            tok = f" ; @def:red{rnd}" if c == nt - 1 else ""
            a(f"ds_write_b128 v{[vRW0, vRW1, vRW2][rnd]}, {vr(acc+4*c,4)} offset:{512*c}{tok}")
        if rnd == 1:
            emit(a, [hflag(0)])
    assert not rq
    for k in range(4):
        a(f"v_mov_b32 v{ONE+k}, s{sONE}")
    a(f"buffer_load_dword v{vPD}, v8, {sr(RWS)}, s{sPH0} offen sc1")
    emit(a, epi_fill(2, plain=False))
    stamp(a, "conv")
    a(f"buffer_load_dword v{TMP}, v9, {sr(RWS)}, s{sPH1} offen sc1")
    for k, r in enumerate([vD0, vD1, vPL0, vPL1, vRA]):
        a(f"v_accvgpr_read_b32 v{r}, a{240+k}")
    for ct in range(1, 4):
        a(f"v_xor_b32 v{vRA+ct}, {32*ct}, v{vRA}")
    a(f"v_cmp_ne_u32 vcc, s{sTAG}, v{vPD}")
    a("s_cmp_eq_u64 vcc, 0")
    a(f"s_cselect_b32 s64, s{sACT}, {BIG:#x}")
    a("s_cselect_b32 s63, 1, 0")
    emit(a, [[t.replace(f"s{sACT},", "s64,") for t in dma(0, s)] for s in range(4)])
    a("; @use:wd2")
    a("s_barrier")
    emit(a, wr(1) + wr(2))
    interleave(a, [m for s in range(0, 6) for m in cs(s)], wd(3), start=2, every=3)
    emit(a, [hflag(2), ["; @use:w2st", f"buffer_store_dword v{vTAGV}, v{vFLAG}, {sr(RWS)}, s{sFW2O} offen sc1"]])
    stamp(a, "flag2")
    a("s_cmp_eq_u32 s63, 1")
    a("s_cbranch_scc1 HAVE0")
    poll(a, vPL0, sPH0, vPD)
    emit(a, [[t.split(" ; @def")[0] for t in dma(0, s)] for s in range(4)])
    a("s_waitcnt vmcnt(0)")
    a.label("HAVE0")
    stamp(a, "pollH0")
    BF = 96

    def reads(h, s):
        o = []
        gs = 20 * h + s
        for ct in range(4):
            for hh in range(2):
                tok = f" ; @def:bf{gs}" if ct == 3 and hh == 1 else ""
                o.append(f"ds_read_b64_tr_b16 {vr(BF+16*(gs&1)+4*ct+2*hh,2)}, v{vRA+ct} offset:{4096*(gs%16)+512*hh}{tok}")
        if gs % 16 == 15:
            o += [f"v_add_u32 v{vRA+ct}, 0x10000, v{vRA+ct}" for ct in range(4)]
        return o

    def mf(h, s):
        gs = 20 * h + s
        b0 = vr(BF + 16 * (gs & 1), 4)
        o = [f"v_mfma_f32_16x16x32_bf16 {vr(RS,4)}, {vr(ONE,4)}, {b0}, {'0' if s == 0 else vr(RS,4)}",
             f"v_mfma_f32_16x16x32_bf16 {vr(GR,4)}, {b0}, {b0}, {'0' if s == 0 else vr(GR,4)}"]
        for ct in range(4):
            for r in range(3):
                acc = vr(48 * h + 12 * ct + 4 * r, 4)
                o.append(f"v_mfma_f32_16x16x32_bf16 {acc}, {ar(12*s+4*r,4)}, {vr(BF+16*(gs&1)+4*ct,4)}, {'0' if s == 0 else acc}")
        return o

    def sync(toks):
        a("; " + " ".join("@use:" + t for t in toks))
        a("s_barrier")

    def res_reads(h):
        o = []
        for sg in range(3):
            o.append(f"ds_read_b64_tr_b16 {vr(HRES[h]+2*sg,2)}, v{vRES+sg}" + (f" ; @def:res{h}" if sg == 2 else ""))
        if h == 0:
            o += [f"v_add_u32 v{vRES+sg}, {HALF}, v{vRES+sg}" for sg in range(3)]
        return o

    def stat_calc():
        return [f"v_mul_f32 v{NM}, {f2u(-1.0/D):#x}, v{RS}",
                f"v_cndmask_b32 v{TMP}, v{GR}, v{GR+1}, s[66:67]",
                f"v_cndmask_b32 v{TMP+1}, v{GR+2}, v{GR+3}, s[66:67]",
                f"v_cndmask_b32 v{TMP}, v{TMP}, v{TMP+1}, s[68:69]"]

    def stat_write(h):
        return [f"ds_write_b32 v{vMW}, v{NM} offset:{512*h}",
                f"ds_write_b32 v{vGW}, v{TMP} offset:{512*h} ; @def:mw{h}"]

    def stat_reads(h):
        o = []
        for ct in range(1, 4):
            o.append(f"v_xor_b32 v{vMR}, {128*ct}, v{vMW}")
            o.append(f"ds_read_b32 v{NM+ct}, v{vMR} offset:{512*h}")
        o.append(f"ds_read2_b32 {vr(SVH[h],2)}, v{vSC} offset0:{128*h} offset1:{128*h+16}")
        return o

    def epi1(h, plain):
        so = 13312 * h
        o = []

        def corr(ct):
            for r in range(3):
                b = 48 * h + 12 * ct + 4 * r
                if plain:
                    for k in range(4):
                        o.append(f"v_fma_f32 v{b+k}, v{NM+ct}, v{CS+4*r+k}, v{b+k}")
                else:
                    sel = "op_sel:[1,0,0] op_sel_hi:[1,1,1]" if ct & 1 else "op_sel:[0,0,0] op_sel_hi:[0,1,1]"
                    for k in (0, 2):
                        o.append(f"v_pk_fma_f32 {vr(b+k,2)}, {vr(NM+(ct&2),2)}, {vr(CS+4*r+k,2)}, {vr(b+k,2)} {sel}")

        def prod(lst):
            for g_, u_, ad in lst:
                for k in range(4):
                    o.append(f"v_max_f32 v{g_+k}, 0, v{g_+k}")
            for g_, u_, ad in lst:
                if plain:
                    for k in range(4):
                        o.append(f"v_mul_f32 v{g_+k}, v{g_+k}, v{u_+k}")
                else:
                    for k in (0, 2):
                        o.append(f"v_pk_mul_f32 {vr(g_+k,2)}, {vr(g_+k,2)}, {vr(u_+k,2)}")
            for g_, u_, ad in lst:
                o.append(f"v_cvt_pk_bf16_f32 v{g_}, v{g_}, v{g_+1}")
                o.append(f"v_cvt_pk_bf16_f32 v{g_+1}, v{g_+2}, v{g_+3}")
            for g_, u_, ad in lst:
                o.append(f"ds_write_b64 v{ad}, {vr(g_,2)} offset:{so}")

        for p in range(2):
            x, y = 48 * h + 24 * p, 48 * h + 24 * p + 12
            corr(2 * p)
            corr(2 * p + 1)
            for k in range(4):
                o.append(f"v_permlane32_swap_b32 v{x+8+k}, v{y+8+k}")
            prod([(x, x + 4, vSW + 2 * p), (y, y + 4, vSW + 2 * p + 1), (x + 8, y + 8, vSW + 4 + p)])
        o[-1] += f" ; @def:stg{h}"
        return o

    def epi2(h):
        o = [[f"; @use:stg{h}", "s_barrier"]]
        for ksl in range(3):
            o.append(f"ds_read_b128 {vr(EPO+4*ksl,4)}, v{vSR} offset:{13312*h+64*ksl}")
        if h == 0:
            o += ["s_nop 0"] * 6
        for ksl in range(3):
            tok = f" ; @def:hm{h}" if ksl == 2 else ""
            o.append(f"buffer_store_dwordx4 {vr(EPO+4*ksl,4)}, v{vL16}, {sr(RWS)}, s{[sHMA, sHMB][h]} offen offset:{1024*ksl} sc1{tok}")
        return o

    def mflag(h):
        return [f"; @use:hm{h}", f"buffer_store_dword v{vTAGV}, v{vFLAG}, {sr(RWS)}, s{[sFMA, sFMB][h]} offen sc1"]

    vW2P, vW2M = 244, 245
    vPM, vHM, vO4, vO2 = 246, 247, 249, 250
    vQ = 228
    sHML, sFMP, sOUTO = 4, 5, 6
    RB = 32768
    w2n = [0]

    def w2_load():
        n = w2n[0]
        w2n[0] += 1
        rt = n % 5
        v = vW2P if rt < 2 else vW2M if rt < 4 else vL16
        off = {0: 0, 1: 1024, 2: 0, 3: 1024, 4: 2048}[rt]
        g = [f"buffer_load_dwordx4 {ar(4*n,4)}, v{v}, {sr(RWS)}, s{sW2A if rt < 4 else sW2B} offen offset:{off} sc1"]
        if rt == 4:
            g += [f"s_add_u32 s{sW2A}, s{sW2A}, 5120", f"s_add_u32 s{sW2B}, s{sW2B}, 5120"]
        return g

    G = lambda *x: ["; @use:none"] + list(x)
    su = Lst()
    u0, u1, u2, u3, u4, u5, u6, u7 = (TMP + 2 + k for k in range(8))
    su(f"s_and_b32 s73, s{sJ}, 7")
    su("s_lshl_b32 s73, s73, 6")
    su(f"s_add_u32 s{sFW2P}, s73, {FW2:#x}")
    su(f"v_min_u32 v{vPL0}, 11, v{vLANE}")
    su(f"s_mul_i32 s73, s{sW}, 12")
    su(f"v_add_u32 v{vPL0}, s73, v{vPL0}")
    su(f"v_lshlrev_b32 v{vPL0}, 9, v{vPL0}")
    su(f"v_lshrrev_b32 v{u0}, 4, v{vLANE}     ; g")
    su(f"v_bfe_u32 v{u1}, v{vLANE}, 2, 2      ; rr")
    su(f"v_and_b32 v{u2}, 3, v{vLANE}         ; cc")
    su(f"s_lshr_b32 s72, s{sJ}, 3")
    su("s_lshl_b32 s72, s72, 1")
    su(f"s_lshr_b32 s73, s{sW}, 1")
    su("s_add_u32 s72, s72, s73")
    su(f"s_and_b32 s73, s{sJ}, 7")
    su("s_lshl_b32 s73, s73, 4              ; 16*db")
    su(f"s_and_b32 s74, s{sW}, 1")
    su("s_lshl_b32 s74, s74, 5")
    for sg in range(3):
        if sg < 2:
            su(f"v_lshl_add_u32 v{u3}, v{u0}, 3, v{u1}")
            su(f"v_add3_u32 v{u3}, v{u3}, s74, {4*sg}")
        else:
            su(f"v_lshl_add_u32 v{u3}, v{u0}, 2, v{u1}")
            su(f"v_add_u32 v{u3}, 64, v{u3}")
        su(f"v_mul_u32_u24 v{u4}, 205, v{u3}")
        su(f"v_lshrrev_b32 v{u4}, 10, v{u4}       ; dl/5")
        su(f"v_mul_u32_u24 v{u5}, 5, v{u4}")
        su(f"v_sub_u32 v{u5}, v{u3}, v{u5}         ; r5")
        su(f"v_add_u32 v{u4}, s73, v{u4}          ; P")
        su(f"v_cmp_lt_u32 s[76:77], 2, v{u5}")
        su(f"v_cmp_eq_u32 s[78:79], 2, v{u5}")
        su(f"v_subrev_u32 v{u7}, 3, v{u5}")
        su(f"v_cndmask_b32 v{u7}, v{u5}, v{u7}, s[76:77]")
        su(f"v_cndmask_b32 v{u6}, 0, 1, s[76:77]")
        su(f"v_lshl_add_u32 v{u6}, v{u4}, 1, v{u6}")
        su(f"v_lshl_add_u32 v{u6}, v{u7}, 8, v{u6}")
        su(f"v_add_u32 v{u6}, 128, v{u6}")
        su(f"v_cndmask_b32 v{u6}, v{u6}, v{u4}, s[78:79]   ; kappa")
        su(f"v_bfe_u32 v{u4}, v{u6}, 1, 1")
        su(f"v_bfe_u32 v{u5}, v{u6}, 3, 1")
        su(f"v_lshl_add_u32 v{u4}, v{u5}, 1, v{u4}")
        su(f"v_xor_b32 v{u4}, s72, v{u4}")
        su(f"v_lshlrev_b32 v{u6}, 7, v{u6}")
        su(f"v_lshl_add_u32 v{u6}, v{u4}, 5, v{u6}")
        su(f"v_lshl_add_u32 v{vRES+sg}, v{u2}, 3, v{u6}")
    su(f"v_and_b32 v{u3}, 15, v{vLANE}        ; n")
    su(f"v_lshlrev_b32 v{u4}, 2, v{u3}")
    su(f"s_lshl_b32 s73, s{sW}, 7")
    su(f"s_add_u32 s73, s73, {MS}")
    su(f"v_add_u32 v{vMW}, s73, v{u4}")
    su("s_lshl_b32 s73, s72, 7")
    su(f"s_add_u32 s73, s73, {MS}")
    su(f"v_add_u32 v{vSC}, s73, v{u4}")
    su(f"v_cmp_eq_u32 s[76:77], v{u0}, v{u1}")
    su(f"v_add_u32 v{u5}, 64, v{vMW}")
    su(f"v_mov_b32 v{u6}, {MS+1024}")
    su(f"v_cndmask_b32 v{vGW}, v{u6}, v{u5}, s[76:77]")
    su("s_mov_b32 s66, 0xaaaaaaaa")
    su("s_mov_b32 s67, 0xaaaaaaaa")
    su("s_mov_b32 s68, 0xcccccccc")
    su("s_mov_b32 s69, 0xcccccccc")
    su(f"s_lshl_b32 s73, s{sTB}, 3")
    su("s_add_u32 s73, s73, s72")
    su(f"s_mul_i32 s{sOUTO}, s73, {16*1280}")
    su(f"s_and_b32 s73, s{sJ}, 7")
    su("s_mul_i32 s73, s73, 160")
    su(f"s_add_u32 s{sOUTO}, s{sOUTO}, s73")
    su(f"v_mul_u32_u24 v{u3}, 1280, v{u3}")
    su("s_lshl_b32 s73, s74, 1              ; 64*(w&1)")
    su(f"v_lshl_add_u32 v{u4}, v{u0}, 4, v{u3}")
    su(f"v_add_u32 v{vO4}, s73, v{u4}")
    su(f"s_and_b32 s73, s{sW}, 1")
    su(f"s_mul_i32 s73, s73, {BIG:#x}")
    su("s_add_u32 s73, s73, 128")
    su(f"v_lshl_add_u32 v{u4}, v{u0}, 3, v{u3}")
    su(f"v_add_u32 v{vO2}, s73, v{u4}")
    su(f"v_and_b32 v{u3}, 15, v{vLANE}")
    su(f"v_mul_u32_u24 v{u3}, 208, v{u3}")
    su(f"s_mul_i32 s73, s{sW}, 3328")
    su(f"v_lshl_add_u32 v{u4}, v{u0}, 4, v{u3}")
    su(f"v_add_u32 v{vSR}, s73, v{u4}")
    su(f"s_mul_i32 s76, s{sW}, 48")
    su(f"v_add_u32 v{u3}, s76, v{u3}")
    su(f"v_lshl_add_u32 v{u4}, v{u0}, 3, v{u3}")
    for ct in range(4):
        su(f"s_xor_b32 s73, s{sW}, {ct}")
        su("s_mul_i32 s73, s73, 3328")
        su(f"v_add_u32 v{vSW+ct}, s73, v{u4}")
    su(f"v_and_b32 v{u4}, 1, v{u0}")
    su(f"v_lshl_add_u32 v{u3}, v{u4}, 3, v{u3}")
    su(f"v_lshrrev_b32 v{u4}, 5, v{vLANE}")
    su(f"v_xor_b32 v{u4}, s{sW}, v{u4}")
    su(f"v_mul_u32_u24 v{u5}, 3328, v{u4}")
    su(f"v_add3_u32 v{vSW+4}, v{u5}, v{u3}, 32")
    su(f"v_xor_b32 v{u4}, 2, v{u4}")
    su(f"v_mul_u32_u24 v{u5}, 3328, v{u4}")
    su(f"v_add3_u32 v{vSW+5}, v{u5}, v{u3}, 32")
    su(f"s_lshl_b32 s73, s{sTB}, 3")
    su(f"s_add_u32 s73, s73, s{sW}")
    su("s_mul_i32 s73, s73, 49152")
    su(f"s_mul_i32 s74, s{sJ}, 3072")
    su("s_add_u32 s73, s73, s74")
    su(f"s_add_u32 s{sHMA}, s73, {HM:#x}")
    su(f"s_add_u32 s{sHMB}, s73, {HM + 4*49152:#x}")
    su(f"s_lshl_b32 s73, s{sTB}, 4")
    su(f"s_add_u32 s73, s73, s{sJ}")
    su("s_lshl_b32 s73, s73, 2")
    su(f"s_add_u32 s73, s73, s{sW}")
    su("s_lshl_b32 s73, s73, 6")
    su(f"s_add_u32 s{sFMA}, s73, {FM:#x}")
    su(f"s_add_u32 s{sFMB}, s73, {FM + 65536:#x}")
    su(f"s_and_b32 s73, s{sJ}, 7")
    su("s_mul_i32 s74, s73, 245760")
    su(f"s_mul_i32 s73, s{sW}, 61440")
    su("s_add_u32 s74, s74, s73")
    su(f"s_add_u32 s{sW2A}, s74, {W2P:#x}")
    su(f"s_add_u32 s{sW2B}, s74, {W2P + 2048:#x}")
    su(f"s_and_b32 s73, s{sW}, 1")
    su("s_lshl_b32 s73, s73, 11")
    su(f"v_add_u32 v{vW2P}, s73, v{vL16}")
    su(f"v_xor_b32 v{vW2M}, 0x800, v{vW2P}")
    suA = list(su)
    su = Lst()
    su(f"s_lshr_b32 s72, s{sJ}, 3            ; gamma")
    su(f"v_bfe_u32 v{u0}, v{vLANE}, 1, 2")
    su(f"s_lshl_b32 s73, s{sW}, 2")
    su(f"v_add_u32 v{u0}, s73, v{u0}")
    su(f"v_lshlrev_b32 v{u0}, 2, v{u0}")
    su(f"v_and_b32 v{u1}, 1, v{vLANE}")
    su("s_lshl_b32 s73, s72, 1")
    su(f"v_add3_u32 v{u0}, v{u0}, v{u1}, s73    ; 4j+wave")
    su(f"v_lshlrev_b32 v{vPM}, 6, v{u0}")
    su(f"s_lshl_b32 s{sFMP}, s{sTB}, 12")
    su(f"s_add_u32 s{sFMP}, s{sFMP}, {FM:#x}")
    su(f"s_lshr_b32 s73, s{sW}, 1")
    su("s_mul_i32 s74, s73, 49152")
    su(f"v_add_u32 v{vHM}, s74, v{vL16}")
    su("s_xor_b32 s73, s73, 1")
    su("s_mul_i32 s74, s73, 49152")
    su(f"v_add_u32 v{vHM+1}, s74, v{vL16}")
    su(f"s_lshl_b32 s73, s{sTB}, 2")
    su("s_add_u32 s73, s73, s72")
    su("s_mul_i32 s73, s73, 98304")
    su(f"s_mul_i32 s74, s{sW}, 12288")
    su("s_add_u32 s73, s73, s74")
    su(f"s_add_u32 s{sHML}, s73, {HM:#x}")
    for rel in range(1, 4):
        su(f"s_xor_b32 s73, s{sW}, {rel}")
        su("s_mul_i32 s73, s73, 6144")
        su(f"s_add_u32 s73, s73, {RB + (rel-1)*2048}")
        su(f"v_add_u32 v{vQ+rel-1}, s73, v{vL16}")
    su(f"s_lshr_b32 s73, s{sW}, 1")
    su("s_lshl_b32 s73, s73, 12")
    su(f"s_add_u32 s73, s73, {RB + 24576}")
    su(f"v_add_u32 v{vQ+6}, s73, v{vL16}")
    su(f"v_add_u32 v{vQ+3}, s{sM0}, v{vQ+6}")
    su(f"v_xor_b32 v{vQ+4}, 0x1000, v{vQ+3}")
    su(f"s_mul_i32 s73, s{sW}, 6144")
    su(f"s_add_u32 s73, s73, {RB}")
    su(f"v_add_u32 v{vQ+5}, s73, v{vL16}")
    HX = [160, 132]
    suB = list(su)

    def flat(lst):
        o = []
        for g in lst:
            if isinstance(g, list) and not any("@use" in t for t in g):
                o += g
            else:
                o.append(g)
        return o

    def step(main, rd, extra, vm=(), width=2):
        rd = list(rd)
        extra = flat(extra)
        vm = list(vm)
        pos = {}
        for k, g in enumerate(vm):
            pos.setdefault(1 + (k * (len(main) - 1)) // len(vm), []).extend(g)
        carry = []
        for i, m in enumerate(main):
            a(m)
            slots = width if i + 1 < len(main) else width - 1
            if i in pos:
                carry += pos[i]
            if rd:
                a(rd.pop(0))
                slots -= 1
            while slots and carry:
                a(carry.pop(0))
                slots -= 1
            while slots and extra:
                emit(a, [extra.pop(0)])
                slots -= 1
        emit(a, rd)
        emit(a, carry)
        return extra

    sync(["d0_3"])
    stamp(a, "acts")
    emit(a, reads(0, 0))
    poll(a, vPL1, sPH1, TMP, pre_issued=True)
    stamp(a, "pollH1")
    Dm = lambda h, lo, hi: [dma(h, k) for k in range(lo, hi)]
    pl2 = [f"buffer_load_dword v{vPD}, v{vPL1}, {sr(RWS)}, s{sPH2} offen sc1"]
    plw = [f"buffer_load_dword v{vPD}, v{vPL0}, {sr(RWS)}, s{sFW2P} offen sc1"]
    fw2flag = ["; @use:w2st", f"buffer_store_dword v{vTAGV}, v{vFLAG}, {sr(RWS)}, s{sFW2O} offen sc1"]
    plan = {0: Dm(0, 4, 8), 1: wd(4)[:5], 2: wd(4)[5:] + Dm(0, 8, 10) + wd(5)[:2], 3: Dm(0, 10, 12) + wd(5)[2:4], 4: wd(5)[4:] + [pl2],
            5: wd(6)[:4], 6: wd(6)[4:] + Dm(0, 12, 14), 7: Dm(0, 14, 16) + wd(7)[:2], 8: wd(7)[2:],
            9: Dm(0, 16, 18) + wd(8)[:2], 10: wd(8)[2:], 11: Dm(0, 18, 20) + wd(9)[:2], 12: wd(9)[2:],
            13: Dm(1, 0, 2) + Dm(1, 14, 15), 14: Dm(1, 15, 18), 15: Dm(1, 8, 11), 16: Dm(1, 11, 14) + [plw], 17: Dm(1, 2, 5), 18: Dm(1, 5, 8), 19: Dm(1, 18, 20)}
    syncs = {3: (["wd3", "d0_7"], 3), 5: (["wr7", "wd4"], 4), 7: (["wr9", "wd5", "d0_11"], 5), 9: (["wr11", "wd6"], 6),
             11: (["wr13", "wd7", "d0_15"], 7), 13: (["wr15", "wd8"], 8), 15: (["wr17", "wd9", "d0_19"], 9), 17: (["wr19", "d1_1"], None)}
    q = suA
    for s in range(20):
        if s == 6:
            poll(a, vPL1, sPH2, vPD, pre_issued=True)
            stamp(a, "pollH2")
        if s in syncs:
            sync(syncs[s][0])
            if syncs[s][1]:
                q = wr(syncs[s][1]) + q
        stamp(a, f"a{s}")
        a(f"; @use:bf{s} @use:wr{s}")
        main = mf(0, s) + (cs(s) if s >= 6 else [])
        if s == 19:
            assert not q
            poll(a, vPL0, sFW2P, vPD, pre_issued=True)
            q = 3 * ["s_nop 0"] + stat_calc()
        q = step(main, reads(0, s + 1) if s < 19 else res_reads(0) + reads(1, 0), q, plan[s], width=3 if s < 8 else 2)
        if not q and s < 19 and suA:
            print("pass A set-up done in step", s)
            suA = None
    emit(a, q)
    stamp(a, "passA")
    sync(["res0"])
    emit(a, stat_write(0))
    q = ["s_nop 0", ["; @use:mw0 @use:d1_4", "s_barrier"]] + stat_reads(0) + epi1(0, True) + epi2(0) + suB
    for s in range(20):
        if s == 3:
            sync(["d1_19"])
        stamp(a, f"b{s}")
        a(f"; @use:bf{20+s}")
        vm = []
        while len(vm) < (3 if s & 1 else 2) and w2n[0] < 3 * s:
            vm.append(w2_load())
        if s == 13:
            vm.append(mflag(0))
        if s == 17:
            vm.append([f"buffer_load_dword v{vPD}, v{vPM}, {sr(RWS)}, s{sFMP} offen sc1"])
        if s == 19:
            assert not q
            q = 6 * ["s_nop 0"] + stat_calc() + stat_write(1)
        had = len(q)
        q = step(mf(1, s), reads(1, s + 1) if s < 19 else res_reads(1), q, vm)
        if had > len(suB) >= len(q):
            print("epilogue A done in step", s)
    assert not q
    stamp(a, "passB")
    sync(["mw1"])
    emit(a, stat_reads(1))
    HF = 0

    def hm_loads(h, order):
        o = []
        for ks, c in order:
            o.append([f"s_add_u32 s75, s{sHML}, {4*49152*h + 4096*(ks>>2)}",
                      f"buffer_load_dwordx4 {vr(HF+8*ks+4*c,4)}, v{vHM+c}, {sr(RWS)}, s75 offen offset:{1024*(ks&3)} sc1"])
        return o

    ksmaj = [(ks, c) for ks in range(12) for c in range(2)]
    cmaj = [(ks, c) for c in (1, 0) for ks in range(12)]
    wl = []
    while w2n[0] < 60:
        wl.append(w2_load())
    print("W2 loads left after pass B:", len(wl))
    poll(a, vPM, sFMP, vPD, pre_issued=True)
    stamp(a, "pollMA")
    hl = hm_loads(0, ksmaj)
    rest = interleave(a, epi1(1, False), hl[:12], start=2, every=6)
    assert not rest
    hl = hl[12:]
    emit(a, epi2(1))
    stamp(a, "epiB")
    AC = 188
    RDR = 96
    rdr = [96 + 4 * k for k in range(8)] + [148, 152]

    def g2_pass(h, order, loads, pre, extra):
        emit(a, loads[:pre])
        loads = loads[pre:]
        fill = Lst()
        den_from(fill, SVH[h], SVH[h] + 1, 146)
        for k in range(6):
            fill(f"v_lshlrev_b32 v{HX[h]+2*k}, 16, v{HRES[h]+k}")
            fill(f"v_and_b32 v{HX[h]+2*k+1}, 0xffff0000, v{HRES[h]+k}")
        ro = 32768 * h
        wr1 = [(vQ + 1, 20, 0), (vQ + 1, 24, 1024), (vQ + 2, 28, 0), (vQ + 2, 32, 1024), (vQ + 4, 36, 0)]
        wr0 = [(vQ, 8, 0), (vQ, 12, 1024), (vQ + 3, 16, 0)]
        wf = lambda l: [f"ds_write_b128 v{va_}, {vr(AC+r,4)} offset:{ro+off}" for va_, r, off in l]
        n = 0
        for i, (ks, c) in enumerate(order):
            for r in range(5):
                acc = vr(AC + 20 * c + 4 * r, 4)
                for g in loads:
                    for t in g:
                        assert not t.startswith(f"buffer_load_dwordx4 {ar(20*ks+4*r,4)},") and not t.startswith(f"buffer_load_dwordx4 {vr(HF+8*ks+4*c,4)},"), t
                a(f"v_mfma_f32_16x16x32_bf16 {acc}, {ar(20*ks+4*r,4)}, {vr(HF+8*ks+4*c,4)}, {'0' if ks == 0 else acc}")
                n += 1
                if n in extra:
                    emit(a, [extra[n]])
                elif loads and n % 3 == 0:
                    emit(a, [loads.pop(0)])
                elif fill:
                    a(fill.pop(0))
                elif order is cmaj and n > 70 and n % 5 == 0 and wr1:
                    emit(a, wf([wr1.pop(0)]))
        assert not loads and not fill
        emit(a, wf(wr1 + wr0))

    def g2_fin(h):
        ro = 32768 * h
        a("s_waitcnt lgkmcnt(0)")
        a("s_barrier")
        for k in range(6):
            a(f"ds_read_b128 {vr(rdr[k],4)}, v{vQ+5} offset:{ro+1024*k}")
        for k in range(4):
            a(f"ds_read_b128 {vr(rdr[6+k],4)}, v{vQ+6} offset:{ro+1024*k}")
        for k in range(6):
            for e in (0, 2):
                a(f"v_pk_add_f32 {vr(AC+4*(k&1)+e,2)}, {vr(AC+4*(k&1)+e,2)}, {vr(rdr[k]+e,2)}")
        for e in (0, 2):
            a(f"v_pk_add_f32 {vr(rdr[6]+e,2)}, {vr(rdr[6]+e,2)}, {vr(rdr[7]+e,2)}")
            a(f"v_pk_add_f32 {vr(rdr[8]+e,2)}, {vr(rdr[8]+e,2)}, {vr(rdr[9]+e,2)}")
        for e in (0, 2):
            a(f"v_pk_add_f32 {vr(AC+8+e,2)}, {vr(rdr[6]+e,2)}, {vr(rdr[8]+e,2)}")
        for k in range(6):
            a(f"v_pk_fma_f32 {vr(AC+2*k,2)}, {vr(AC+2*k,2)}, {vr(SVH[h],2)}, {vr(HX[h]+2*k,2)} op_sel:[0,1,0] op_sel_hi:[1,1,1]")
        for k in range(6):
            a(f"v_cvt_pk_bf16_f32 v{96+k}, v{AC+2*k}, v{AC+2*k+1}")
        a(f"buffer_store_dwordx4 v[96:99], v{vO4}, {sr(ROUT)}, s{sOUTO} offen")
        a(f"buffer_store_dwordx2 v[100:101], v{vO2}, {sr(ROUT)}, s{sOUTO} offen")
        if h == 0:
            a(f"s_add_u32 s{sOUTO}, s{sOUTO}, {64*1280}")

    mix = []
    for k in range(max(len(hl), len(wl))):
        if k < len(hl):
            mix.append(hl[k])
        if k < len(wl):
            mix.append(wl[k])
    print("g2A loads", len(mix))
    g2_pass(0, ksmaj, mix, 2, {55: mflag(1), 110: [f"s_add_u32 s{sFMP}, s{sFMP}, 65536",
                                                  f"buffer_load_dword v{vPD}, v{vPM}, {sr(RWS)}, s{sFMP} offen sc1"]})
    stamp(a, "g2A")
    poll(a, vPM, sFMP, vPD, pre_issued=True)
    stamp(a, "pollMB")
    hl = hm_loads(1, cmaj)
    emit(a, hl[:12])
    g2_fin(0)
    stamp(a, "finA")
    g2_pass(1, cmaj, hl[12:], 0, {})
    stamp(a, "g2B")
    g2_fin(1)
    a("s_cmp_eq_u32 s2, 0")
    a("s_cbranch_scc0 NOGEN")
    a(f"s_cmp_eq_u32 s{sW}, 0")
    a("s_cbranch_scc0 NOGEN")
    a(f"buffer_store_dword v{vTAGV}, v{vFLAG}, {sr(RWS)}, 0 offen sc1")
    a.label("NOGEN")
    if PROF:
        a("s_waitcnt vmcnt(0)")
        a("s_memtime s[100:101]")
        a("s_memrealtime s[76:77]")
        a("s_waitcnt lgkmcnt(0)")
        if os.environ.get("SPINX"):
            if os.environ["SPINX"] == "real":
                a("s_sub_u32 s72, s76, s80")
                a.label("SPINR")
                a("s_memrealtime s[74:75]")
                a("s_waitcnt lgkmcnt(0)")
                a("s_sub_u32 s73, s74, s76")
                a("s_cmp_lt_u32 s73, s72")
                a("s_cbranch_scc1 SPINR")
                a("s_endpgm")
            if os.environ["SPINX"] == "fix":
                a.label("SPINR")
                a("s_memrealtime s[74:75]")
                a("s_waitcnt lgkmcnt(0)")
                a("s_sub_u32 s73, s74, s80")
                a("s_cmp_lt_u32 s73, 6000")
                a("s_cbranch_scc1 SPINR")
                a("s_endpgm")
            src = 100 if os.environ["SPINX"] == "total" else 84
            a(f"s_sub_u32 s72, s{src}, s82")
            if os.environ.get("COLDT"):
                a(f"s_mul_i32 s72, s72, {os.environ.get('MULT', '8')}")
            a.label("SPINL")
            a("s_memtime s[74:75]")
            a("s_waitcnt lgkmcnt(0)")
            a("s_sub_u32 s73, s74, s100")
            a("s_cmp_lt_u32 s73, s72")
            a("s_cbranch_scc1 SPINL")
            a("s_endpgm")
        a("v_mov_b32 v1, 0")
        for k in range(11):
            a(f"v_writelane_b32 v1, s{80+2*k}, {k}")
        a("v_writelane_b32 v1, s76, 11")
        if os.environ.get("PROFDBG"):
            a("s_load_dwordx2 s[44:45], s[0:1], 112")
            a("s_waitcnt lgkmcnt(0)")
            a("s_mov_b32 s46, 256")
            a("s_mov_b32 s47, 0x20000")
            a("v_mov_b32 v3, 0")
            a("v_mov_b32 v4, 0")
            for k in range(9):
                a(f"s_sub_u32 s72, s{84+2*k}, s82")
                a("s_lshr_b32 s72, s72, 2")
                a(f"v_writelane_b32 v3, s72, {k}")
            a("s_sub_u32 s72, s100, s82")
            a("v_writelane_b32 v4, s72, 9")
            a("v_writelane_b32 v4, s76, 10")
            a("s_not_b32 s72, s80")
            a("v_writelane_b32 v4, s72, 11")
            for k in range(4):
                a(f"s_sub_u32 s72, s{84+4*k}, s82")
                a(f"v_writelane_b32 v4, s72, {12+k}")
            a(f"v_lshlrev_b32 v2, 2, v{vLANE}")
            a("s_mov_b64 exec, 0x1ff")
            a("buffer_atomic_add v3, v2, s[44:47], 0 offen")
            a("s_mov_b64 exec, 0xfe00")
            a("buffer_atomic_umax v4, v2, s[44:47], 0 offen")
            a("s_mov_b64 exec, -1")
        a(f"s_add_u32 s40, s{sWS}, {PROFBASE:#x}")
        a(f"s_addc_u32 s41, s{sWS+1}, 0")
        a("s_mov_b32 s42, 0x40000")
        a(f"v_lshlrev_b32 v2, 2, v{vLANE}")
        a("s_lshl_b32 s72, s2, 2")
        a(f"s_add_u32 s72, s72, s{sW}")
        a("s_lshl_b32 s72, s72, 7")
        a("s_mov_b64 exec, 0xffffffff")
        a("buffer_store_dword v1, v2, s[40:43], s72 offen")
    a.label("END")
    a("s_endpgm")
    return a


def main(path):
    ref = open(f"cdna_kernels/{NAME}.s.ref").read().split("\n")
    head = [l for l in ref if l.startswith(";") and "@launch" not in l]
    out = head[:]
    out.append("; @launch grid=(256,1,1) block=(256,1,1) lds=163840")
    out.append('.amdgcn_target "amdgcn-amd-amdhsa--gfx950"')
    out.append(".text")
    a = gen()
    for i in a.ins:
        if "CODE_LIM" in i.text:
            i.text = i.text.replace("CODE_LIM", "0x1230")
    b, d, e = kernel_text(NAME + "_kernel", a, auto=True, align=True)
    size = sum(getattr(i, "size", 0) for i in a.ins)
    lim = (size - 256) & ~15
    b = b.replace("v_min_u32 v2, 0x1230, v2", f"v_min_u32 v2, {lim:#x}, v2")
    out.append(b)
    out.append('.section .rodata,"a"')
    out.append(d)
    open(path, "w").write("\n".join(out))


if __name__ == "__main__":
    main(sys.argv[1] if len(sys.argv) > 1 else f"cdna_kernels/{NAME}.s")
```
